```python
import torch

def _softmax(x, axis=-1):
    return torch.softmax(x, dim=axis)
def _gelu(x):
    return torch.nn.functional.gelu(x, approximate="tanh")
def _silu(x):
    return torch.nn.functional.silu(x)
def _sigmoid(x):
    return torch.sigmoid(x)
def _layernorm(x, axis=-1, eps=1e-5):
    m = x.mean(dim=axis, keepdim=True)
    v = x.var(dim=axis, keepdim=True, unbiased=False)
    return (x - m) / torch.sqrt(v + eps)
def _scatter_add(tgt, idx, src, axis=0):
    return tgt.clone().index_add_(axis, idx, src)
def _segment_sum(src, seg, n):
    out = torch.zeros((n,) + src.shape[1:], dtype=src.dtype)
    return out.index_add_(0, seg, src)
def _pad(x, pw):
    flat = tuple(v for pair in reversed(pw) for v in pair)
    return torch.nn.functional.pad(x, flat)

kernel_name = 'sequential_preLN__gqa_block_cached__geglu_ffn__decode'

def setup_inputs():

    _w = (lambda a: (lambda t: t.to(torch.bfloat16) if t.is_floating_point() else t)(torch.as_tensor(a)))
    def _A_setup():
        B, Sq, D = 1, 1, 448
        Hq, Hkv, Sk, Dh = 16, 8, 32768, 256
        assert Hq % Hkv == 0, (Hq, Hkv)
        return {
            "x": _w((lambda *s: torch.randn(*s, dtype=torch.bfloat16) * 0.05)(B, Sq, D)),
            "k_cache": _w((lambda *s: torch.randn(*s, dtype=torch.bfloat16) * 3.2)(B, Hkv, Sk, Dh)),
            "v_cache": _w((lambda *s: torch.randn(*s, dtype=torch.bfloat16) * 0.4)(B, Hkv, Sk, Dh)),
            "wq": _w((lambda *s: torch.randn(*s, dtype=torch.bfloat16) * 3.2)(D, Hq * Dh) * (D ** -0.5)),
            "wo": _w((lambda *s: torch.randn(*s, dtype=torch.bfloat16) * 0.4)(Hq * Dh, D) * ((Hq * Dh) ** -0.5)),
        }
    _A_in = _A_setup()

    def _B_setup():
        B, S, D, F = 1, 1, 448, 1792
        return {
            "x": _w((lambda *s: torch.randn(*s, dtype=torch.bfloat16) * 0.05)(B, S, D)),
            "w_gate": _w((lambda *s: torch.randn(*s, dtype=torch.bfloat16) * 0.05)(D, F)),
            "w_up": _w((lambda *s: torch.randn(*s, dtype=torch.bfloat16) * 0.05)(D, F)),
            "w_down": _w((lambda *s: torch.randn(*s, dtype=torch.bfloat16) * 0.05)(F, D)),
        }
    _B_in = _B_setup()

    return {
        "A_x": _A_in["x"],
        "A_k_cache": _A_in["k_cache"],
        "A_v_cache": _A_in["v_cache"],
        "A_wq": _A_in["wq"],
        "A_wo": _A_in["wo"],
        "B_x": _B_in["x"],
        "B_w_gate": _B_in["w_gate"],
        "B_w_up": _B_in["w_up"],
        "B_w_down": _B_in["w_down"],
    }

def reference(A_x, A_k_cache, A_v_cache, A_wq, A_wo, B_x, B_w_gate, B_w_up, B_w_down):
    def _A_ref(x, k_cache, v_cache, wq, wo):
        B, Sq, D = x.shape
        Hq, Dh = 16, 256
        Hkv = k_cache.shape[1]
        rep = Hq // Hkv
        q = (lambda x, *d: x.permute(*d))((x @ wq).reshape(B, Sq, Hq, Dh), 0, 2, 1, 3)
        k = (lambda x, n, axis: torch.repeat_interleave(x, n, dim=axis))(k_cache, rep, axis=1)
        v = (lambda x, n, axis: torch.repeat_interleave(x, n, dim=axis))(v_cache, rep, axis=1)
        scores = torch.einsum("bhqd,bhkd->bhqk", q, k) * (Dh ** -0.5)
        p = _softmax(scores, axis=-1)
        o = torch.einsum("bhqk,bhkd->bhqd", p, v)
        return (lambda x, *d: x.permute(*d))(o, 0, 2, 1, 3).reshape(B, Sq, Hq * Dh) @ wo

    def _B_ref(x, w_gate, w_up, w_down):
        return (_gelu(x @ w_gate) * (x @ w_up)) @ w_down

    x = A_x
    h = x + _A_ref(_layernorm(x, axis=-1), A_k_cache, A_v_cache, A_wq, A_wo)
    h2 = h + _B_ref(_layernorm(h, axis=-1), B_w_gate, B_w_up, B_w_down)
    return h2
```

```python
import sys

KNAME = "sequential_preLN__gqa_block_cached__geglu_ffn__decode_kernel"

WS_G   = 0x0
WS_QG  = 0x1000
WS_H1  = 0x40000
WS_ML  = 0xC0000
WS_T1O = 0xC4000
WS_FFO = 0xD8000
WS_DBG = 0x100000
WS_SIZE_USED = 0x200000

WPITCH = 928
L_W    = 0
L_GATE = 0
L_UP   = 28672
L_DOWN = 57344
L_Q    = 118784
L_XR   = L_Q + 1024
L_XN   = L_XR + 1024
L_M    = L_XN + 1024
L_L    = L_M + 64
L_P    = L_M + 256
L_ACC  = L_P + 4096
L_PRIV = L_ACC + 16384
LDS_TOTAL = L_PRIV + 8192

SENT = 0xFFFFFFFF
LOG2E = 1.4426950408889634
import struct
def f2u(x): return struct.unpack("<I", struct.pack("<f", x))[0]
def hexf(x): return "0x%08x" % f2u(x)

class Gen:
    def __init__(self, D=16, R=20, dbg_stamps=False, nt_stream=True, nt_w=True, spin_max=20000):
        self.o = []
        self.D, self.R = D, R
        self.stamps = dbg_stamps
        self.nt = " nt" if nt_stream else ""
        self.ntw = " nt" if nt_w else ""
        self.spin_max = spin_max
        self.lab = 0
    def a(self, s): self.o.append("  " + s)
    def L(self, s): self.o.append(s + ":")
    def c(self, s): self.o.append("  ; " + s)
    def newlabel(self, base):
        self.lab += 1
        return f"L_{base}_{self.lab}"
    def nop(self, n):
        while n > 0:
            k = min(n, 16); self.a(f"s_nop {k-1}"); n -= k

    def row_allreduce(self, op, regs):
        for sh in (8, 4, 2, 1):
            if len(regs) < 3: self.nop(2 - (len(regs) - 1) if len(regs) > 0 else 2)
            for r in regs:
                self.a(f"{op}_dpp v{r}, v{r}, v{r} row_ror:{sh} row_mask:0xf bank_mask:0xf")
    def swap_allreduce(self, op, regs, tmps, kind):
        self.nop(1)
        for r, t in zip(regs, tmps): self.a(f"v_mov_b32 v{t}, v{r}")
        self.nop(2)
        for r, t in zip(regs, tmps): self.a(f"v_permlane{kind}_swap_b32 v{r}, v{t}")
        self.nop(1)
        for r, t in zip(regs, tmps): self.a(f"{op} v{r}, v{r}, v{t}")
    def wave_allreduce(self, op, regs, tmps, full=True):
        self.nop(2)
        self.row_allreduce(op, regs)
        self.swap_allreduce(op, regs, tmps, 16)
        if full: self.swap_allreduce(op, regs, tmps, 32)

    def stamp(self, idx, sreg_wg="s2"):
        if not self.stamps: return
        a = self.a
        a("s_memrealtime s[96:97]")
        a("s_waitcnt lgkmcnt(0)")
        a("v_mov_b32 v166, s96")
        a(f"s_lshl_b32 s98, s2, 9")
        a(f"s_lshl_b32 s99, s3, 5")
        a("s_add_u32 s98, s98, s99")
        a(f"s_add_u32 s98, s98, {WS_DBG + idx*4}")
        a("v_mov_b32 v167, s98")
        a("s_mov_b64 s[100:101], exec")
        a("s_mov_b64 exec, 1")
        a("global_store_dword v167, v166, s[20:21]")
        a("s_mov_b64 exec, s[100:101]")

    def build(self):
        a, L, c = self.a, self.L, self.c
        D, R = self.D, self.R
        RING = 40
        DT = RING + 4 * R
        MISC = DT + 32
        assert MISC + 14 <= 166, MISC
        c("---------------- entry ----------------")
        a("s_cmp_ge_u32 s2, 256")
        a("s_cbranch_scc1 L_exit")
        a("s_load_dwordx4 s[4:7], s[0:1], 8")
        a("s_load_dwordx2 s[20:21], s[0:1], 88")
        a("v_lshrrev_b32 v1, 6, v0")
        a("s_lshr_b32 s22, s2, 5")
        a("v_readfirstlane_b32 s3, v1")
        a("s_and_b32 s23, s2, 31")
        a("v_and_b32 v1, 63, v0")
        a("s_cmp_eq_u32 s3, 8")
        a("s_cbranch_scc1 L_helper")
        c("---------------- streamer prologue ----------------")
        a("v_and_b32 v2, 15, v1")
        a("v_lshlrev_b32 v2, 9, v2")
        a("v_lshrrev_b32 v5, 4, v1")
        a("v_lshl_add_u32 v2, v5, 4, v2")
        a("v_and_b32 v3, 31, v1")
        a("v_lshlrev_b32 v3, 4, v3")
        a("v_lshrrev_b32 v6, 5, v1")
        a("v_lshl_add_u32 v3, v6, 10, v3")
        a("v_add_u32 v4, 0x1000, v3")
        a("s_lshl_b32 s24, s23, 3")
        a("s_add_u32 s24, s24, s3")
        a("s_lshl_b32 s40, s24, 13")
        for it in range(1, 8):
            a(f"s_add_u32 s{40+it}, s40, {it*0x200000}")
        a("s_lshl_b32 s25, s22, 24")
        a("s_waitcnt lgkmcnt(0)")
        a("s_add_u32 s8, s4, s25"); a("s_addc_u32 s9, s5, 0"); a("s_mov_b32 s10, 0x1000000"); a("s_mov_b32 s11, 0x20000")
        a("s_add_u32 s12, s6, s25"); a("s_addc_u32 s13, s7, 0"); a("s_mov_b32 s14, 0x1000000"); a("s_mov_b32 s15, 0x20000")
        def slot(i): return RING + 4 * (i % R)
        def issue(i):
            if i >= 128: return
            r = slot(i)
            if i < 64:
                it, st = i >> 3, i & 7
                a(f"buffer_load_dwordx4 v[{r}:{r+3}], v2, s[8:11], s{40+it} offen offset:{st*64}{self.nt}")
            else:
                j = i - 64
                it, jj = j >> 3, j & 7
                iq, b = jj >> 1, jj & 1
                va = "v3" if iq < 2 else "v4"
                a(f"buffer_load_dwordx4 v[{r}:{r+3}], {va}, s[12:15], s{40+it} offen offset:{(iq&1)*2048 + b*512}{self.nt}")
        for i in range(D): issue(i)
        self.stamp(0)
        a("s_mov_b32 s48, 0xffff0000"); a("s_mov_b32 s49, 0")
        a("s_mov_b32 s50, 0"); a("s_mov_b32 s51, 0x0000ffff")
        a("s_mov_b32 s52, 0"); a("s_mov_b32 s53, 0xffff0000")
        a("s_mov_b32 s54, 0x05040100"); a("s_mov_b32 s55, 0x07060302")
        a(f"s_mov_b32 s56, {hexf(LOG2E/16)}")
        a("s_mov_b32 s16, s20"); a("s_mov_b32 s17, s21"); a(f"s_mov_b32 s18, {WS_SIZE_USED}"); a("s_mov_b32 s19, 0x20000")
        a("v_and_b32 v7, 1, v1")
        a("v_lshlrev_b32 v7, 9, v7")
        a("v_lshl_add_u32 v5, v5, 4, v7")
        a(f"v_add_u32 v5, {L_Q}, v5")
        PW, PR = MISC, MISC + 1
        a(f"v_lshrrev_b32 v{PW}, 3, v1"); a(f"v_lshlrev_b32 v{PW}, 5, v{PW}")
        a("v_bfe_u32 v7, v1, 1, 1"); a(f"v_lshl_add_u32 v{PW}, v7, 4, v{PW}")
        a("v_bfe_u32 v7, v1, 2, 1"); a(f"v_lshl_add_u32 v{PW}, v7, 3, v{PW}")
        a("v_and_b32 v7, 1, v1"); a(f"v_lshl_add_u32 v{PW}, v7, 1, v{PW}")
        a("s_lshl_b32 s26, s3, 9"); a(f"s_add_u32 s26, s26, {L_P}")
        a(f"v_add_u32 v{PW}, s26, v{PW}")
        a(f"v_lshlrev_b32 v{PR}, 4, v6"); a(f"v_add_u32 v{PR}, s26, v{PR}")
        a("s_barrier")
        self.stamp(1)
        Q = 8
        for st in range(8):
            a(f"ds_read_b128 v[{Q+4*st}:{Q+4*st+3}], v5 offset:{st*64}")
        a("s_waitcnt lgkmcnt(0)")
        c("---------------- K phase ----------------")
        for i in range(64):
            it, st = i >> 3, i & 7
            r = slot(i); d = DT + 4 * it
            outstanding_after = min(D - 1, 127 - i)
            a(f"s_waitcnt vmcnt({outstanding_after})")
            src_c = "0" if st == 0 else f"v[{d}:{d+3}]"
            a(f"v_mfma_f32_16x16x32_bf16 v[{d}:{d+3}], v[{Q+4*st}:{Q+4*st+3}], v[{r}:{r+3}], {src_c}")
            issue(i + D)
        self.stamp(2)
        c("---------------- softmax ----------------")
        S = MISC + 2
        T = MISC + 6
        self.nop(8)
        for u in range(2):
            for h in range(2):
                s = S + 2 * u + h
                a(f"v_cndmask_b32 v{s}, v{DT+16*u+h}, v{DT+16*u+4+h}, s[48:49]")
                a(f"v_cndmask_b32 v{s}, v{s}, v{DT+16*u+8+h}, s[50:51]")
                a(f"v_cndmask_b32 v{s}, v{s}, v{DT+16*u+12+h}, s[52:53]")
        for u in range(2):
            a(f"v_cvt_pk_bf16_f32 v{T+u}, v{S+2*u}, v{S+2*u+1}")
        for u in range(2):
            a(f"v_lshlrev_b32 v{S+2*u}, 16, v{T+u}")
            a(f"v_and_b32 v{S+2*u+1}, 0xffff0000, v{T+u}")
        MX = T
        a(f"v_max_f32 v{MX}, v{S}, v{S+2}")
        a(f"v_max_f32 v{MX+1}, v{S+1}, v{S+3}")
        self.wave_allreduce("v_max_f32", [MX, MX+1], [T+2, T+3])
        a("s_lshl_b32 s27, s3, 3")
        a(f"s_add_u32 s27, s27, {L_M}")
        a(f"v_mov_b32 v{T+4}, s27")
        a("s_mov_b64 exec, 1")
        a(f"ds_write_b64 v{T+4}, v[{MX}:{MX+1}]")
        a("s_mov_b64 exec, -1")
        a("s_waitcnt lgkmcnt(0)")
        a("s_barrier")
        a(f"v_mov_b32 v{T+5}, {L_M}")
        for k in range(4):
            a(f"ds_read_b128 v[{8+4*k}:{8+4*k+3}], v{T+5} offset:{16*k}")
        a("s_waitcnt lgkmcnt(0)")
        for h in range(2):
            a(f"v_max3_f32 v{24+h}, v{8+h}, v{10+h}, v{12+h}")
            a(f"v_max3_f32 v{24+h}, v{24+h}, v{14+h}, v{16+h}")
            a(f"v_max3_f32 v{24+h}, v{24+h}, v{18+h}, v{20+h}")
            a(f"v_max_f32 v{24+h}, v{24+h}, v{22+h}")
        GM = MISC + 12
        a(f"v_mov_b32 v{GM}, v24"); a(f"v_mov_b32 v{GM+1}, v25")
        a(f"v_mul_f32 v26, s56, v24"); a(f"v_mul_f32 v27, s56, v25")
        for u in range(2):
            for h in range(2):
                a(f"v_fma_f32 v{S+2*u+h}, v{S+2*u+h}, s56, -v{26+h}")
        for u in range(2):
            for h in range(2):
                a(f"v_exp_f32 v{S+2*u+h}, v{S+2*u+h}")
        self.nop(1)
        for u in range(2):
            a(f"v_cvt_pk_bf16_f32 v{T+u}, v{S+2*u}, v{S+2*u+1}")
        for u in range(2):
            a(f"ds_write_b16 v{PW}, v{T+u} offset:{u*256}")
            a(f"ds_write_b16_d16_hi v{PW}, v{T+u} offset:{u*256+4}")
        LS = T + 2
        a(f"v_add_f32 v{LS}, v{S}, v{S+2}")
        a(f"v_add_f32 v{LS+1}, v{S+1}, v{S+3}")
        ACC = 8
        for j in range(16): a(f"v_mov_b32 v{ACC+j}, 0")
        self.wave_allreduce("v_add_f32", [LS, LS+1], [T+4, T+5])
        a(f"v_mov_b32 v{T}, s27")
        a("s_mov_b64 exec, 1")
        a(f"ds_write_b64 v{T}, v[{LS}:{LS+1}] offset:64")
        a("s_mov_b64 exec, -1")
        a("s_waitcnt lgkmcnt(0)")
        c("---------------- V phase ----------------")
        PREG = 24
        PT = 32
        a(f"ds_read_b128 v[{PREG}:{PREG+3}], v{PR} offset:0")
        for i2 in range(16):
            pr = PREG + 4 * (i2 & 1)
            if i2 + 1 < 16:
                pn = PREG + 4 * ((i2 + 1) & 1)
                a(f"ds_read_b128 v[{pn}:{pn+3}], v{PR} offset:{(i2+1)*32}")
                a("s_waitcnt lgkmcnt(1)")
            else:
                a("s_waitcnt lgkmcnt(0)")
            for ii in range(2):
                i = 2 * i2 + ii
                la, lb = 64 + 2 * i, 64 + 2 * i + 1
                ra, rb = slot(la), slot(lb)
                younger = min(D - 2, 127 - lb)
                a(f"s_waitcnt vmcnt({younger})")
                for w in range(4):
                    a(f"v_perm_b32 v{PT+2*w}, v{rb+w}, v{ra+w}, s54")
                    a(f"v_perm_b32 v{PT+2*w+1}, v{rb+w}, v{ra+w}, s55")
                issue(la + D); issue(lb + D)
                for h in range(2):
                    for j in range(8):
                        a(f"v_dot2c_f32_bf16 v{ACC+8*h+j}, v{PT+j}, v{pr+2*ii+h}")
        self.stamp(3)
        c("---------------- merge inside the workgroup ----------------")
        self.nop(3)
        for j in range(8): a(f"v_permlane32_swap_b32 v{ACC+j}, v{ACC+8+j}")
        self.nop(1)
        for j in range(8): a(f"v_add_f32 v{ACC+j}, v{ACC+j}, v{ACC+8+j}")
        a("s_lshl_b32 s27, s3, 11"); a(f"s_add_u32 s27, s27, {L_ACC}")
        a("v_lshlrev_b32 v24, 5, v1"); a("v_add_u32 v24, s27, v24")
        a(f"ds_write_b128 v24, v[{ACC}:{ACC+3}]")
        a(f"ds_write_b128 v24, v[{ACC+4}:{ACC+7}] offset:16")
        a("s_waitcnt lgkmcnt(0)")
        a("s_barrier")
        a("s_cmp_gt_u32 s3, 2"); a("s_cbranch_scc1 L_roles")
        a("s_cmp_eq_u32 s3, 2"); a("s_cbranch_scc1 L_pub_ml")
        a("v_lshlrev_b32 v24, 4, v0"); a(f"v_add_u32 v25, {L_ACC}, v24")
        for w in range(8):
            a(f"ds_read_b128 v[{28+4*w}:{28+4*w+3}], v25 offset:{w*2048}")
        a("s_lshl_b32 s27, s2, 11"); a(f"s_add_u32 s27, s27, {WS_H1}")
        a("v_add_u32 v24, s27, v24")
        for w in range(1, 8):
            a(f"s_waitcnt lgkmcnt({7-w})")
            for e in range(4):
                a(f"v_add_f32 v{28+e}, v{28+e}, v{28+4*w+e}")
        a("global_store_dwordx4 v24, v[28:31], s[20:21] sc1")
        a("s_branch L_roles")
        L("L_pub_ml")
        a(f"v_mov_b32 v25, {L_L}")
        for k in range(4):
            a(f"ds_read_b128 v[{28+4*k}:{28+4*k+3}], v25 offset:{16*k}")
        a("s_waitcnt lgkmcnt(0)")
        for h in range(2):
            a(f"v_add_f32 v{44+h}, v{28+h}, v{30+h}")
            for k in (32, 34, 36, 38, 40, 42):
                a(f"v_add_f32 v{44+h}, v{44+h}, v{k+h}")
        a(f"v_mov_b32 v48, v{GM}"); a("v_mov_b32 v49, v44"); a(f"v_mov_b32 v50, v{GM+1}"); a("v_mov_b32 v51, v45")
        a("s_lshl_b32 s27, s2, 4"); a(f"s_add_u32 s27, s27, {WS_ML}")
        a("v_mov_b32 v24, s27")
        a("s_mov_b64 exec, 1")
        a("global_store_dwordx4 v24, v[48:51], s[20:21] sc1")
        a("s_mov_b64 exec, -1")
        c("---------------- role dispatch ----------------")
        L("L_roles")
        self.stamp(4)
        a("s_bitcmp1_b32 s23, 0"); a("s_cbranch_scc1 L_exit")
        a("s_cmp_lt_u32 s23, 8"); a("s_cbranch_scc1 L_t1")
        a("s_cmp_lt_u32 s23, 22"); a("s_cbranch_scc1 L_ffn")
        a("s_cmp_lg_u32 s23, 22"); a("s_cbranch_scc1 L_exit")
        a("s_cmp_lt_u32 s22, 7"); a("s_cbranch_scc1 L_fin")
        a("s_branch L_exit")
        self.gen_t1(); self.gen_ffn(); self.gen_fin(); self.gen_helper()
        L("L_exit")
        a("s_endpgm")
        return self.o

    def poll_sentinel(self, name, loads, regs, tmp, cnt="s30", mask_exec=None):
        a = self.a
        lab = self.newlabel(name)
        a(f"s_mov_b32 {cnt}, {self.spin_max}")
        self.L(lab)
        loads()
        a("s_waitcnt vmcnt(0)")
        rs = list(regs)
        first = True
        while rs:
            if first:
                if len(rs) >= 3:
                    a(f"v_max3_u32 v{tmp}, v{rs[0]}, v{rs[1]}, v{rs[2]}"); rs = rs[3:]
                elif len(rs) == 2:
                    a(f"v_max_u32 v{tmp}, v{rs[0]}, v{rs[1]}"); rs = []
                else:
                    a(f"v_mov_b32 v{tmp}, v{rs[0]}"); rs = []
                first = False
            elif len(rs) >= 2:
                a(f"v_max3_u32 v{tmp}, v{tmp}, v{rs[0]}, v{rs[1]}"); rs = rs[2:]
            else:
                a(f"v_max_u32 v{tmp}, v{tmp}, v{rs[0]}"); rs = []
        a(f"v_cmp_eq_u32 vcc, -1, v{tmp}")
        done = self.newlabel(name + "_done")
        a(f"s_cbranch_vccz {done}")
        a(f"s_sub_u32 {cnt}, {cnt}, 1")
        a(f"s_cmp_lg_u32 {cnt}, 0")
        a(f"s_cbranch_scc1 {lab}")
        self.L(done)

    def select4(self, dst, d0, d1, d2, d3):
        a = self.a
        a(f"v_cndmask_b32 v{dst}, v{d0}, v{d1}, s[48:49]")
        a(f"v_cndmask_b32 v{dst}, v{dst}, v{d2}, s[50:51]")
        a(f"v_cndmask_b32 v{dst}, v{dst}, v{d3}, s[52:53]")

    def round_bf16_pair(self, dst_pk, x0, x1, o0=None, o1=None):
        a = self.a
        a(f"v_cvt_pk_bf16_f32 v{dst_pk}, v{x0}, v{x1}")
        if o0 is not None: a(f"v_lshlrev_b32 v{o0}, 16, v{dst_pk}")
        if o1 is not None: a(f"v_and_b32 v{o1}, 0xffff0000, v{dst_pk}")

    def gen_t1(self):
        a, L, c = self.a, self.L, self.c
        c("================ T1: softmax combine + wo slice ================")
        L("L_t1")
        a("s_lshr_b32 s24, s23, 1")
        a("v_lshrrev_b32 v2, 2, v1")
        a(f"v_mul_u32_u24 v2, {WPITCH}, v2")
        a("v_and_b32 v3, 3, v1")
        a("v_lshl_add_u32 v2, v3, 3, v2")
        a("s_lshl_b32 s25, s3, 7")
        a("v_add_u32 v2, s25, v2")
        a(f"v_add_u32 v3, {64*WPITCH}, v2")
        BF = 64
        a("s_cmp_eq_u32 s3, 7"); a("s_cbranch_scc1 L_t1_nob")
        for ks in range(4):
            for tt in range(4):
                for h in range(2):
                    r = BF + ((ks * 4 + tt) * 2 + h) * 2
                    base = "v2" if ks < 2 else "v3"
                    off = (32 * (ks & 1) + 16 * h) * WPITCH + tt * 32
                    a(f"ds_read_b64_tr_b16 v[{r}:{r+1}], {base} offset:{off}")
            a("s_waitcnt lgkmcnt(0)")
        L("L_t1_nob")
        a("s_lshl_b32 s26, s22, 5")
        a("v_lshrrev_b32 v6, 5, v1")
        a("v_and_b32 v7, 31, v1")
        a("s_lshl_b32 s27, s3, 2"); a("s_add_u32 s27, s27, s26")
        a("v_add_u32 v8, s27, v6")
        a("v_lshlrev_b32 v9, 11, v8")
        a("v_lshl_add_u32 v9, v7, 4, v9")
        a("s_lshl_b32 s28, s24, 9"); a(f"s_add_u32 s28, s28, {WS_H1 + 2048}")
        a("v_add_u32 v9, s28, v9")
        a("s_lshr_b32 s29, s24, 1"); a("s_lshl_b32 s29, s29, 3"); a(f"s_add_u32 s29, s29, {WS_ML}")
        a("v_lshlrev_b32 v10, 4, v8"); a("v_add_u32 v10, s29, v10")
        a("v_add_u32 v11, s26, v7"); a("v_lshlrev_b32 v11, 4, v11"); a("v_add_u32 v11, s29, v11")
        def loads():
            a("global_load_dwordx4 v[12:15], v9, s[20:21] offset:-2048 sc1")
            a("global_load_dwordx4 v[16:19], v9, s[20:21] offset:2048 sc1")
            a("global_load_dwordx2 v[20:21], v11, s[20:21] sc1")
            a("global_load_dword v22, v10, s[20:21] sc1")
            a("global_load_dword v23, v10, s[20:21] offset:32 sc1")
        self.poll_sentinel("t1", loads, list(range(12, 24)), 24)
        self.stamp(5)
        a("v_mov_b32 v25, v20")
        self.wave_allreduce("v_max_f32", [25], [26], full=False)
        a("v_sub_f32 v27, v20, v25"); a("v_sub_f32 v28, v22, v25"); a("v_sub_f32 v29, v23, v25")
        a("v_mul_f32 v27, s56, v27"); a("v_mul_f32 v28, s56, v28"); a("v_mul_f32 v29, s56, v29")
        a("v_exp_f32 v27, v27"); a("v_exp_f32 v28, v28"); a("v_exp_f32 v29, v29")
        self.nop(1)
        a("v_mul_f32 v27, v27, v21")
        self.wave_allreduce("v_add_f32", [27], [26], full=False)
        a("v_rcp_f32 v30, v27")
        self.nop(1)
        a("v_fma_f32 v31, -v27, v30, 1.0"); a("v_fma_f32 v30, v31, v30, v30")
        a("v_mul_f32 v28, v28, v30"); a("v_mul_f32 v29, v29, v30")
        for e in range(4): a(f"v_mul_f32 v{12+e}, v28, v{12+e}")
        for e in range(4): a(f"v_fma_f32 v{12+e}, v29, v{16+e}, v{12+e}")
        self.nop(2)
        a("v_permlane32_swap_b32 v12, v13"); a("v_permlane32_swap_b32 v14, v15")
        self.nop(1)
        a("v_add_f32 v12, v12, v13"); a("v_add_f32 v14, v14, v15")
        a("v_lshl_add_u32 v16, v7, 2, v6"); a("v_lshlrev_b32 v16, 2, v16")
        a("s_lshl_b32 s27, s3, 9"); a(f"s_add_u32 s27, s27, {L_ACC}")
        a("v_add_u32 v16, s27, v16")
        a("ds_write_b32 v16, v12"); a("ds_write_b32 v16, v14 offset:8")
        a("s_waitcnt lgkmcnt(0)")
        a("s_barrier")
        a("s_cmp_eq_u32 s3, 7"); a("s_cbranch_scc1 L_exit")
        a("v_lshlrev_b32 v17, 3, v1"); a(f"v_add_u32 v17, {L_ACC}, v17")
        for w in range(8):
            a(f"ds_read_b64 v[{32+2*w}:{32+2*w+1}], v17 offset:{w*512}")
        a("v_lshrrev_b32 v18, 4, v1"); a("v_lshlrev_b32 v18, 6, v18")
        a("v_bfe_u32 v19, v1, 1, 2"); a("v_lshl_add_u32 v18, v19, 4, v18")
        a("v_bfe_u32 v19, v1, 3, 1"); a("v_lshl_add_u32 v18, v19, 3, v18")
        a("v_and_b32 v19, 1, v1"); a("v_lshl_add_u32 v18, v19, 2, v18")
        a("s_lshl_b32 s27, s3, 10"); a(f"s_add_u32 s27, s27, {L_PRIV}")
        a("v_add_u32 v18, s27, v18")
        a("v_lshrrev_b32 v19, 4, v1"); a("v_lshlrev_b32 v19, 4, v19"); a("v_add_u32 v19, s27, v19")
        for w in range(1, 8):
            a(f"s_waitcnt lgkmcnt({7-w})")
            a(f"v_add_f32 v32, v32, v{32+2*w}"); a(f"v_add_f32 v33, v33, v{33+2*w}")
        a("v_cvt_pk_bf16_f32 v34, v32, v33")
        a("ds_write_b32 v18, v34")
        a("s_waitcnt lgkmcnt(0)")
        for ks in range(4):
            a(f"ds_read_b128 v[{36+4*ks}:{36+4*ks+3}], v19 offset:{ks*64}")
        a("s_waitcnt lgkmcnt(0)")
        DD = 128
        for ks in range(4):
            for tt in range(4):
                r = BF + (ks * 4 + tt) * 4
                cc = "0" if ks == 0 else f"v[{DD+4*tt}:{DD+4*tt+3}]"
                a(f"v_mfma_f32_16x16x32_bf16 v[{DD+4*tt}:{DD+4*tt+3}], v[{36+4*ks}:{36+4*ks+3}], v[{r}:{r+3}], {cc}")
        a("s_lshl_b32 s27, s22, 2"); a("s_add_u32 s27, s27, s24")
        a("s_lshl_b32 s27, s27, 11"); a(f"s_add_u32 s27, s27, {WS_T1O}")
        a("s_lshl_b32 s28, s3, 8"); a("s_add_u32 s27, s27, s28")
        a("v_lshlrev_b32 v20, 2, v1"); a("v_add_u32 v20, s27, v20")
        self.nop(6)
        self.select4(21, DD, DD+4, DD+8, DD+12)
        a("global_store_dword v20, v21, s[20:21] sc1")
        self.stamp(6)
        a("s_branch L_exit")

    def gen_ffn(self):
        a, L, c = self.a, self.L, self.c
        c("================ FFN slice ================")
        L("L_ffn")
        a("s_sub_u32 s24, s23, 8"); a("s_lshr_b32 s24, s24, 1"); a("s_lshl_b32 s24, s24, 3"); a("s_add_u32 s24, s24, s22")
        a("v_lshrrev_b32 v2, 2, v1")
        a("v_and_b32 v3, 3, v1")
        a("v_bfe_u32 v4, v1, 4, 1")
        a("v_lshlrev_b32 v5, 6, v2"); a("v_lshl_add_u32 v5, v3, 3, v5")
        a("s_lshl_b32 s25, s3, 12"); a("v_add_u32 v5, s25, v5")
        a("v_lshl_add_u32 v6, v4, 5, v5")
        a("v_xor_b32 v4, 1, v4"); a("v_lshl_add_u32 v7, v4, 5, v5")
        a(f"v_mul_u32_u24 v8, {WPITCH}, v2"); a("v_lshl_add_u32 v8, v3, 3, v8")
        a("s_lshl_b32 s25, s3, 7"); a(f"s_add_u32 s25, s25, {L_DOWN}"); a("v_add_u32 v8, s25, v8")
        BG = 64
        BD = 96
        XR = 112
        a("s_cmp_eq_u32 s3, 7"); a("s_cbranch_scc1 L_ffn_nob")
        for ksl in range(2):
            for m in range(2):
                for ct in range(2):
                    for h in range(2):
                        r = BG + ((ksl * 2 + m) * 2 + ct) * 4 + 2 * h
                        a(f"ds_read_b64_tr_b16 v[{r}:{r+1}], v{6+ct} offset:{m*L_UP + ksl*2048 + h*1024}")
            a("s_waitcnt lgkmcnt(0)")
        for tt in range(4):
            for h in range(2):
                r = BD + tt * 4 + 2 * h
                a(f"ds_read_b64_tr_b16 v[{r}:{r+1}], v8 offset:{16*h*WPITCH + tt*32}")
        a(f"v_lshlrev_b32 v9, 4, v1"); a(f"v_add_u32 v9, {L_XR}, v9")
        a(f"ds_read_b128 v[{XR}:{XR+3}], v9")
        a("s_mov_b32 s26, 586")
        a("v_mul_lo_u32 v10, s26, v0"); a("v_lshrrev_b32 v10, 16, v10")
        a("v_mul_u32_u24 v11, 112, v10"); a("v_sub_u32 v11, v0, v11")
        a("v_lshlrev_b32 v12, 14, v10"); a("v_lshl_add_u32 v12, v11, 4, v12")
        a(f"v_add_u32 v12, {WS_T1O}, v12")
        for j in range(8): a(f"s_mov_b32 s{60+j}, {j*2048}")
        a("v_mul_u32_u24 v13, 1792, v10"); a("v_lshl_add_u32 v13, v11, 4, v13"); a(f"v_add_u32 v13, {L_ACC}, v13")
        def loads():
            for j in range(8):
                a(f"buffer_load_dwordx4 v[{16+4*j}:{16+4*j+3}], v12, s[16:19], s{60+j} offen sc1")
        self.poll_sentinel("ffn", loads, list(range(16, 48)), 14)
        self.stamp(5)
        for j in range(1, 8):
            for e in range(4): a(f"v_add_f32 v{16+e}, v{16+e}, v{16+4*j+e}")
        a("ds_write_b128 v13, v[16:19]")
        L("L_ffn_nob")
        a("s_waitcnt lgkmcnt(0)")
        a("s_barrier")
        a("s_cmp_eq_u32 s3, 7"); a("s_cbranch_scc1 L_ffn_w7")
        a("v_lshlrev_b32 v14, 5, v1"); a(f"v_add_u32 v14, {L_ACC}, v14")
        for ps in range(4):
            a(f"ds_read_b128 v[{16+8*ps}:{16+8*ps+3}], v14 offset:{ps*1792}")
            a(f"ds_read_b128 v[{16+8*ps+4}:{16+8*ps+7}], v14 offset:{ps*1792+16}")
        for ps in range(1, 4):
            a(f"s_waitcnt lgkmcnt({2*(3-ps)})")
            for e in range(8): a(f"v_add_f32 v{16+e}, v{16+e}, v{16+8*ps+e}")
        for e in range(4): self.round_bf16_pair(24+e, 16+2*e, 17+2*e, 16+2*e, 17+2*e)
        for e in range(4):
            a(f"v_lshlrev_b32 v{28+2*e}, 16, v{XR+e}"); a(f"v_and_b32 v{29+2*e}, 0xffff0000, v{XR+e}")
        for e in range(8): a(f"v_add_f32 v{16+e}, v{16+e}, v{28+e}")
        for e in range(4): self.round_bf16_pair(24+e, 16+2*e, 17+2*e, 16+2*e, 17+2*e)
        self.layernorm(16, 28, 36, 24)
        a("v_lshrrev_b32 v36, 2, v1"); a("v_lshlrev_b32 v36, 6, v36")
        a("v_and_b32 v37, 1, v1"); a("v_lshl_add_u32 v36, v37, 5, v36")
        a("v_bfe_u32 v37, v1, 1, 1"); a("v_lshl_add_u32 v36, v37, 3, v36")
        a("s_lshl_b32 s27, s3, 10"); a(f"s_add_u32 s27, s27, {L_PRIV}")
        a("v_add_u32 v36, s27, v36")
        a("v_cmp_gt_u32 vcc, 56, v1")
        a("s_and_saveexec_b64 s[32:33], vcc")
        a("ds_write_b64 v36, v[24:25]"); a("ds_write_b64 v36, v[26:27] offset:16")
        a("s_mov_b64 exec, s[32:33]")
        a("v_lshrrev_b32 v37, 4, v1"); a("v_lshlrev_b32 v37, 4, v37")
        a("s_lshl_b32 s28, s3, 7"); a("s_add_u32 s28, s28, s27"); a("v_add_u32 v37, s28, v37")
        a("s_waitcnt lgkmcnt(0)")
        a("ds_read_b128 v[40:43], v37"); a("ds_read_b128 v[44:47], v37 offset:64")
        a("s_waitcnt lgkmcnt(0)")
        DD = 48
        for ksl in range(2):
            for m in range(2):
                for ct in range(2):
                    r = BG + ((ksl * 2 + m) * 2 + ct) * 4
                    d = DD + (m * 2 + ct) * 4
                    cc = "0" if ksl == 0 else f"v[{d}:{d+3}]"
                    a(f"v_mfma_f32_16x16x32_bf16 v[{d}:{d+3}], v[{40+4*ksl}:{40+4*ksl+3}], v[{r}:{r+3}], {cc}")
        GU = L_ACC + 8192
        a("s_lshl_b32 s28, s3, 8"); a(f"s_add_u32 s28, s28, {GU}")
        a("v_lshlrev_b32 v38, 2, v1"); a("v_add_u32 v39, s28, v38")
        self.nop(6)
        self.select4(16, DD, DD+4, DD+8, DD+12)
        a("ds_write_b32 v39, v16")
        L("L_ffn_w7")
        a("s_waitcnt lgkmcnt(0)")
        a("s_barrier")
        a("s_cmp_eq_u32 s3, 7"); a("s_cbranch_scc1 L_exit")
        a(f"v_add_u32 v39, {GU}, v38")
        for w in range(7): a(f"ds_read_b32 v{16+w}, v39 offset:{w*256}")
        a("v_bfe_u32 v40, v1, 2, 2"); a("v_lshlrev_b32 v40, 4, v40")
        a("v_bfe_u32 v41, v1, 4, 1"); a("v_lshl_add_u32 v40, v41, 3, v40")
        a("v_and_b32 v41, 3, v1"); a("v_lshl_add_u32 v40, v41, 1, v40")
        a("v_add_u32 v40, s27, v40")
        a("v_lshrrev_b32 v41, 4, v1"); a("v_lshlrev_b32 v41, 4, v41"); a("v_add_u32 v41, s27, v41")
        for w in range(1, 7):
            a(f"s_waitcnt lgkmcnt({6-w})")
            a(f"v_add_f32 v16, v16, v{16+w}")
        a("v_cvt_pk_bf16_f32 v17, v16, v16")
        a("v_and_b32 v16, 0xffff0000, v17")
        a("v_mov_b32 v17, v16")
        self.nop(2)
        a("v_permlane32_swap_b32 v16, v17")
        self.nop(1)
        k1 = -2.0 * LOG2E * 0.7978845608028654
        a(f"s_mov_b32 s28, {hexf(0.044715)}"); a(f"s_mov_b32 s29, {hexf(k1)}")
        a("v_mul_f32 v18, v16, v16")
        a("v_fma_f32 v18, v18, s28, 1.0")
        a("v_mul_f32 v18, v18, v16")
        a("v_mul_f32 v18, s29, v18")
        a("v_exp_f32 v18, v18")
        self.nop(1)
        a("v_add_f32 v18, 1.0, v18")
        a("v_rcp_f32 v18, v18")
        self.nop(1)
        a("v_mul_f32 v18, v16, v18")
        a("v_cvt_pk_bf16_f32 v18, v18, v18"); a("v_and_b32 v18, 0xffff0000, v18")
        a("v_mul_f32 v18, v18, v17")
        a("v_cvt_pk_bf16_f32 v18, v18, v18")
        a("s_mov_b32 exec_hi, 0")
        a("ds_write_b16 v40, v18")
        a("s_mov_b32 exec_hi, -1")
        a("s_waitcnt lgkmcnt(0)")
        a("ds_read_b128 v[20:23], v41")
        a("s_waitcnt lgkmcnt(0)")
        for tt in range(4):
            a(f"v_mfma_f32_16x16x32_bf16 v[{DD+4*tt}:{DD+4*tt+3}], v[20:23], v[{BD+4*tt}:{BD+4*tt+3}], 0")
        a("s_lshl_b32 s27, s24, 11"); a(f"s_add_u32 s27, s27, {WS_FFO}")
        a("s_lshl_b32 s28, s3, 8"); a("s_add_u32 s27, s27, s28")
        a("v_add_u32 v38, s27, v38")
        self.nop(6)
        self.select4(16, DD, DD+4, DD+8, DD+12)
        a("global_store_dword v38, v16, s[20:21] sc1")
        self.stamp(6)
        a("s_branch L_exit")

    def layernorm(self, X, T, U, OUT):
        a = self.a
        a(f"v_readfirstlane_b32 s34, v{X}")
        a("v_cmp_gt_u32 vcc, 56, v1")
        self.nop(1)
        for e in range(8): a(f"v_subrev_f32 v{T+e}, s34, v{X+e}")
        for e in range(8): a(f"v_cndmask_b32 v{T+e}, 0, v{T+e}, vcc")
        a(f"v_add_f32 v{U}, v{T}, v{T+1}"); a(f"v_mul_f32 v{U+1}, v{T}, v{T}")
        a(f"v_fma_f32 v{U+1}, v{T+1}, v{T+1}, v{U+1}")
        for e in range(2, 8):
            a(f"v_add_f32 v{U}, v{U}, v{T+e}"); a(f"v_fma_f32 v{U+1}, v{T+e}, v{T+e}, v{U+1}")
        self.wave_allreduce("v_add_f32", [U, U+1], [U+2, U+3])
        a(f"s_mov_b32 s35, {hexf(1.0/448)}")
        a(f"v_mul_f32 v{U}, s35, v{U}"); a(f"v_mul_f32 v{U+1}, s35, v{U+1}")
        a(f"v_fma_f32 v{U+1}, -v{U}, v{U}, v{U+1}")
        a(f"v_max_f32 v{U+1}, 0, v{U+1}")
        a(f"v_add_f32 v{U}, s34, v{U}")
        self.round_bf16_pair(U+2, U, U+1, U, U+1)
        a(f"v_add_f32 v{U+1}, {hexf(1e-5)}, v{U+1}")
        a(f"v_cvt_pk_bf16_f32 v{U+1}, v{U+1}, v{U+1}"); a(f"v_and_b32 v{U+1}, 0xffff0000, v{U+1}")
        a(f"v_sqrt_f32 v{U+1}, v{U+1}")
        self.nop(1)
        a(f"v_cvt_pk_bf16_f32 v{U+1}, v{U+1}, v{U+1}"); a(f"v_and_b32 v{U+1}, 0xffff0000, v{U+1}")
        a(f"v_rcp_f32 v{U+2}, v{U+1}")
        for e in range(8): a(f"v_sub_f32 v{T+e}, v{X+e}, v{U}")
        for e in range(4): self.round_bf16_pair(U+3, T+2*e, T+2*e+1, T+2*e, T+2*e+1)
        for e in range(8):
            a(f"v_mul_f32 v{U+4}, v{T+e}, v{U+2}")
            a(f"v_fma_f32 v{T+e}, -v{U+4}, v{U+1}, v{T+e}")
            a(f"v_fma_f32 v{T+e}, v{T+e}, v{U+2}, v{U+4}")
        for e in range(4): a(f"v_cvt_pk_bf16_f32 v{OUT+e}, v{T+2*e}, v{T+2*e+1}")

    def gen_fin(self):
        a, L, c = self.a, self.L, self.c
        c("================ final reduce ================")
        L("L_fin")
        a("s_load_dwordx2 s[36:37], s[0:1], 72")
        a("v_lshrrev_b32 v2, 4, v1")
        a("v_and_b32 v3, 15, v1")
        a("s_lshl_b32 s24, s3, 2"); a("v_add_u32 v4, s24, v2")
        a("v_lshlrev_b32 v4, 11, v4"); a("v_lshl_add_u32 v4, v3, 4, v4")
        a("s_lshl_b32 s25, s22, 8"); a("v_add_u32 v4, s25, v4")
        a(f"v_add_u32 v5, {WS_T1O}, v4"); a(f"v_add_u32 v6, {WS_FFO}, v4"); a(f"v_add_u32 v7, {32*2048}, v6")
        a("v_bfrev_b32 v8, v2"); a("v_lshrrev_b32 v8, 30, v8")
        a("v_lshl_add_u32 v8, v3, 2, v8"); a("v_lshlrev_b32 v8, 2, v8")
        a("s_lshl_b32 s26, s3, 8"); a(f"s_add_u32 s26, s26, {L_ACC}"); a("v_add_u32 v8, s26, v8")
        def red(r):
            self.nop(2)
            a(f"v_permlane32_swap_b32 v{r}, v{r+1}"); a(f"v_permlane32_swap_b32 v{r+2}, v{r+3}")
            self.nop(1)
            a(f"v_add_f32 v{r}, v{r}, v{r+1}"); a(f"v_add_f32 v{r+2}, v{r+2}, v{r+3}")
            self.nop(2)
            a(f"v_permlane16_swap_b32 v{r}, v{r+2}")
            self.nop(1)
            a(f"v_add_f32 v{r}, v{r}, v{r+2}")
        def loads1(): a("global_load_dwordx4 v[12:15], v5, s[20:21] sc1")
        self.poll_sentinel("fin1", loads1, [12, 13, 14, 15], 10)
        red(12)
        a("ds_write_b32 v8, v12")
        a("s_cmp_lt_u32 s3, 6"); a("s_cbranch_scc1 L_fin_two")
        def loads2a(): a("global_load_dwordx4 v[12:15], v6, s[20:21] sc1")
        self.poll_sentinel("fin2a", loads2a, [12, 13, 14, 15], 10)
        a("s_branch L_fin_red")
        L("L_fin_two")
        def loads2b():
            a("global_load_dwordx4 v[12:15], v6, s[20:21] sc1")
            a("global_load_dwordx4 v[16:19], v7, s[20:21] sc1")
        self.poll_sentinel("fin2b", loads2b, list(range(12, 20)), 10)
        for e in range(4): a(f"v_add_f32 v{12+e}, v{12+e}, v{16+e}")
        L("L_fin_red")
        self.stamp(5)
        red(12)
        a("ds_write_b32 v8, v12 offset:2048")
        a("s_waitcnt lgkmcnt(0)")
        a("s_barrier")
        a("s_cmp_lg_u32 s3, 0"); a("s_cbranch_scc1 L_exit")
        a("v_lshlrev_b32 v9, 2, v1"); a(f"v_add_u32 v9, {L_ACC}, v9")
        for w in range(8): a(f"ds_read_b32 v{16+w}, v9 offset:{w*256}")
        a("s_waitcnt lgkmcnt(0)")
        for w in range(8): a(f"ds_read_b32 v{24+w}, v9 offset:{2048+w*256}")
        a("s_lshl_b32 s25, s22, 7"); a(f"s_add_u32 s25, s25, {L_XR}")
        a("v_lshlrev_b32 v10, 1, v1"); a("v_add_u32 v11, s25, v10")
        a("ds_read_u16 v32, v11")
        for w in range(1, 8): a(f"v_add_f32 v16, v16, v{16+w}")
        a("s_waitcnt lgkmcnt(0)")
        for w in range(1, 8): a(f"v_add_f32 v24, v24, v{24+w}")
        a("v_lshlrev_b32 v32, 16, v32")
        self.round_bf16_pair(33, 16, 24, 16, 24)
        a("v_add_f32 v16, v16, v32")
        a("v_cvt_pk_bf16_f32 v33, v16, v16"); a("v_and_b32 v16, 0xffff0000, v33")
        a("v_add_f32 v16, v16, v24")
        a("v_cvt_pk_bf16_f32 v33, v16, v16")
        a("s_lshl_b32 s25, s22, 7"); a("v_add_u32 v10, s25, v10")
        a("global_store_short v10, v33, s[36:37]")
        a("s_cmp_lg_u32 s22, 0"); a("s_cbranch_scc1 L_fin_end")
        a(f"v_mov_b32 v34, {L_XN + 1020}")
        a("ds_read_b32 v35, v34")
        a("s_waitcnt lgkmcnt(0)")
        a("v_mov_b32 v34, 0")
        a("s_mov_b64 exec, 1")
        a("global_store_dword v34, v35, s[20:21] sc1")
        a("s_mov_b64 exec, -1")
        L("L_fin_end")
        self.stamp(6)
        a("s_branch L_exit")

    def gen_helper(self):
        a, L, c = self.a, self.L, self.c
        c("================ helper wave ================")
        L("L_helper")
        a("s_setprio 2")
        a("s_load_dwordx2 s[56:57], s[0:1], 0")
        a("s_load_dwordx4 s[8:11], s[0:1], 24")
        a("s_load_dwordx4 s[12:15], s[0:1], 48")
        a("s_load_dwordx2 s[16:17], s[0:1], 64")
        a("s_and_b32 s24, s23, 7"); a("s_lshr_b32 s25, s23, 3")
        a("s_mul_i32 s26, s25, 112")
        a("s_lshl_b32 s27, s22, 3"); a("s_add_u32 s27, s27, s24"); a("s_lshl_b32 s27, s27, 7")
        a("v_lshrrev_b32 v2, 3, v1"); a("v_add_u32 v3, s26, v2"); a("v_lshlrev_b32 v3, 13, v3")
        a("v_and_b32 v4, 7, v1"); a("v_lshl_add_u32 v3, v4, 4, v3"); a("v_add_u32 v3, s27, v3")
        a("v_lshlrev_b32 v5, 4, v1")
        a("v_mov_b32 v6, 0")
        a("s_waitcnt lgkmcnt(0)")
        a("s_mov_b32 s40, s56"); a("s_mov_b32 s41, s57"); a("s_mov_b32 s42, 896"); a("s_mov_b32 s43, 0x20000")
        a("s_mov_b32 s44, s8"); a("s_mov_b32 s45, s9"); a(f"s_mov_b32 s46, {448*4096*2}"); a("s_mov_b32 s47, 0x20000")
        a("global_load_dword v7, v6, s[20:21] sc1")
        a("buffer_load_dwordx4 v[8:11], v5, s[40:43], 0 offen")
        WQ = 64
        for i in range(14):
            a(f"s_mov_b32 s28, {i*8*8192}")
            a(f"buffer_load_dwordx4 v[{WQ+4*i}:{WQ+4*i+3}], v3, s[44:47], s28 offen{self.ntw}")
        a("v_mov_b32 v12, -1"); a("v_mov_b32 v13, -1"); a("v_mov_b32 v14, -1"); a("v_mov_b32 v15, -1")
        a("s_lshl_b32 s28, s2, 11"); a(f"s_add_u32 s28, s28, {WS_H1}"); a("v_add_u32 v16, s28, v5")
        a("global_store_dwordx4 v16, v[12:15], s[20:21] sc1")
        a("global_store_dwordx4 v16, v[12:15], s[20:21] offset:1024 sc1")
        a("s_lshl_b32 s28, s2, 4"); a(f"s_add_u32 s28, s28, {WS_ML}"); a("v_mov_b32 v17, s28")
        a("s_mov_b64 exec, 1")
        a("global_store_dwordx4 v17, v[12:15], s[20:21] sc1")
        a("s_mov_b64 exec, -1")
        a("s_mov_b32 s29, 0")
        a("s_bitcmp1_b32 s23, 0"); a("s_cbranch_scc1 L_h_role_done")
        a("s_cmp_lt_u32 s23, 8"); a("s_cbranch_scc0 L_h_not_t1")
        a("s_mov_b32 s29, 1")
        a("s_lshr_b32 s30, s23, 1"); a("s_lshl_b32 s31, s22, 2"); a("s_add_u32 s30, s30, s31")
        a("s_lshl_b32 s31, s30, 11"); a(f"s_add_u32 s31, s31, {WS_T1O}")
        a("s_branch L_h_reset_role")
        L("L_h_not_t1")
        a("s_cmp_lt_u32 s23, 22"); a("s_cbranch_scc0 L_h_not_ffn")
        a("s_mov_b32 s29, 2")
        a("s_sub_u32 s30, s23, 8"); a("s_lshr_b32 s30, s30, 1"); a("s_lshl_b32 s30, s30, 3"); a("s_add_u32 s30, s30, s22")
        a("s_lshl_b32 s31, s30, 11"); a(f"s_add_u32 s31, s31, {WS_FFO}")
        L("L_h_reset_role")
        a("v_add_u32 v16, s31, v5")
        a("global_store_dwordx4 v16, v[12:15], s[20:21] sc1")
        a("global_store_dwordx4 v16, v[12:15], s[20:21] offset:1024 sc1")
        a("s_branch L_h_role_done")
        L("L_h_not_ffn")
        a("s_cmp_eq_u32 s23, 22"); a("s_cbranch_scc0 L_h_role_done")
        a("s_cmp_lt_u32 s22, 7"); a("s_cbranch_scc0 L_h_role_done")
        a("s_mov_b32 s29, 3")
        L("L_h_role_done")
        a("s_waitcnt vmcnt(14)")
        self.stamp(0)
        a(f"v_add_u32 v18, {L_XR}, v5")
        a("v_cmp_gt_u32 vcc, 56, v1")
        a("s_and_saveexec_b64 s[32:33], vcc")
        a("ds_write_b128 v18, v[8:11]")
        a("s_mov_b64 exec, s[32:33]")
        for e in range(4):
            a(f"v_lshlrev_b32 v{20+2*e}, 16, v{8+e}"); a(f"v_and_b32 v{21+2*e}, 0xffff0000, v{8+e}")
        a("v_readfirstlane_b32 s36, v7")
        a("s_mul_i32 s36, s36, 0x9E3779B1"); a("s_add_u32 s36, s36, 0x7F4A7C15")
        self.layernorm(20, 28, 36, 44)
        a(f"v_add_u32 v18, {L_XN}, v5")
        a("v_cmp_gt_u32 vcc, 56, v1")
        a("s_and_saveexec_b64 s[32:33], vcc")
        a("ds_write_b128 v18, v[44:47]")
        a("s_mov_b64 exec, s[32:33]")
        a("v_mov_b32 v19, s36"); a(f"v_mov_b32 v18, {L_XN+1020}")
        a("ds_write_b32 v18, v19")
        a("v_add_u32 v18, s26, v2"); a("v_lshlrev_b32 v18, 1, v18"); a(f"v_add_u32 v18, {L_XN}, v18")
        a("s_waitcnt lgkmcnt(0)")
        for i in range(14): a(f"ds_read_u16 v{48+i}, v18 offset:{i*16}")
        for j in range(8): a(f"v_mov_b32 v{28+j}, 0")
        a("s_waitcnt vmcnt(0) lgkmcnt(0)")
        self.stamp(1)
        for i in range(14):
            a(f"v_lshlrev_b32 v62, 16, v{48+i}")
            for w in range(4):
                a(f"v_dot2c_f32_bf16 v{28+2*w}, v{WQ+4*i+w}, v{48+i}")
                a(f"v_dot2c_f32_bf16 v{28+2*w+1}, v{WQ+4*i+w}, v62")
        self.nop(3)
        for j in range(4): a(f"v_permlane32_swap_b32 v{28+j}, v{32+j}")
        self.nop(1)
        for j in range(4): a(f"v_add_f32 v{28+j}, v{28+j}, v{32+j}")
        self.nop(2)
        for j in range(2): a(f"v_permlane16_swap_b32 v{28+j}, v{30+j}")
        self.nop(1)
        for j in range(2): a(f"v_add_f32 v{28+j}, v{28+j}, v{30+j}")
        self.nop(2)
        for j in range(2): a(f"v_add_f32_dpp v{28+j}, v{28+j}, v{28+j} row_ror:8 row_mask:0xf bank_mask:0xf")
        a("v_mov_b32 v30, v29"); a("v_mov_b32 v29, s36"); a("v_mov_b32 v31, s36")
        a("v_lshlrev_b32 v32, 6, v4")
        a("v_bfe_u32 v33, v1, 5, 1"); a("v_lshl_add_u32 v32, v33, 5, v32")
        a("v_bfe_u32 v33, v1, 4, 1"); a("v_lshl_add_u32 v32, v33, 4, v32")
        a("s_lshl_b32 s28, s2, 9"); a(f"s_add_u32 s28, s28, {WS_QG}"); a("v_add_u32 v32, s28, v32")
        a("v_and_b32 v33, 8, v1"); a("v_cmp_eq_u32 vcc, 0, v33")
        a("s_and_saveexec_b64 s[32:33], vcc")
        a("global_store_dwordx4 v32, v[28:31], s[20:21] sc1")
        a("s_mov_b64 exec, s[32:33]")
        self.stamp(2)
        a("s_lshl_b32 s28, s22, 14"); a(f"s_add_u32 s28, s28, {WS_QG}"); a("v_add_u32 v34, s28, v5")
        a("v_mov_b32 v35, s36")
        lab = self.newlabel("qpoll")
        a(f"s_mov_b32 s37, {self.spin_max}")
        L(lab)
        for j in range(16):
            if j % 4 == 0 and j > 0: a("v_add_u32 v34, 0x1000, v34")
            a(f"global_load_dwordx4 v[{WQ+4*j}:{WQ+4*j+3}], v34, s[20:21] offset:{(j%4)*1024} sc1")
        a("v_subrev_u32 v34, 0x3000, v34")
        a("s_waitcnt vmcnt(0)")
        a("v_mov_b32 v36, 0")
        for j in range(16):
            a(f"v_bitop3_b32 v36, v36, v{WQ+4*j+1}, v35 bitop3:0xf6")
            a(f"v_bitop3_b32 v36, v36, v{WQ+4*j+3}, v35 bitop3:0xf6")
        a("v_cmp_ne_u32 vcc, 0, v36")
        done = self.newlabel("qdone")
        a(f"s_cbranch_vccz {done}")
        a("s_sub_u32 s37, s37, 1"); a("s_cmp_lg_u32 s37, 0"); a(f"s_cbranch_scc1 {lab}")
        L(done)
        a(f"v_lshlrev_b32 v37, 2, v1"); a(f"v_add_u32 v37, {L_Q}, v37")
        for qd in range(4):
            for e in range(2):
                r0 = WQ + 4 * qd + 2 * e
                a(f"v_add_f32 v{r0}, v{r0}, v{r0+16}"); a(f"v_add_f32 v{r0}, v{r0}, v{r0+32}"); a(f"v_add_f32 v{r0}, v{r0}, v{r0+48}")
            a(f"v_cvt_pk_bf16_f32 v38, v{WQ+4*qd}, v{WQ+4*qd+2}")
            a(f"ds_write_b32 v37, v38 offset:{qd*256}")
        a("s_waitcnt lgkmcnt(0)")
        a("s_barrier")
        self.stamp(3)
        a("s_setprio 0")
        a("s_cmp_eq_u32 s29, 0"); a("s_cbranch_scc1 L_exit")
        a("s_cmp_eq_u32 s29, 3"); a("s_cbranch_scc1 L_h_tok_fin")
        a("s_cmp_eq_u32 s29, 2"); a("s_cbranch_scc1 L_h_ffn")
        a("s_mov_b32 s44, s10"); a("s_mov_b32 s45, s11"); a(f"s_mov_b32 s46, {4096*448*2}"); a("s_mov_b32 s47, 0x20000")
        a("s_mul_i32 s38, s30, 128*896")
        a("s_mov_b32 s39, 0")
        a("s_mov_b32 s48, 128")
        self.dma_rows("s[44:47]")
        a("s_branch L_h_end")
        L("L_h_ffn")
        a("v_lshrrev_b32 v20, 2, v1"); a("v_bfe_u32 v21, v1, 4, 1"); a("v_lshlrev_b32 v21, 1, v21")
        a("v_and_b32 v22, 3, v1"); a("v_xor_b32 v22, v22, v21")
        a("v_mul_u32_u24 v20, 3584, v20"); a("v_lshl_add_u32 v20, v22, 4, v20")
        for m, (plo, base) in enumerate(((12, L_GATE), (14, L_UP))):
            a(f"s_mov_b32 s44, s{plo}"); a(f"s_mov_b32 s45, s{plo+1}"); a(f"s_mov_b32 s46, {448*1792*2}"); a("s_mov_b32 s47, 0x20000")
            a("s_lshl_b32 s38, s30, 6")
            a(f"s_mov_b32 s39, {base}")
            a("s_mov_b32 s48, 28")
            lab = self.newlabel("gu")
            L(lab)
            a("s_mov_b32 m0, s39")
            a("s_add_u32 s39, s39, 1024")
            a(f"buffer_load_dwordx4 v20, s[44:47], s38 offen{self.ntw} lds")
            a(f"s_add_u32 s38, s38, {16*3584}")
            a("s_waitcnt vmcnt(40)")
            a("s_sub_u32 s48, s48, 1"); a("s_cmp_lg_u32 s48, 0"); a(f"s_cbranch_scc1 {lab}")
        a("s_mov_b32 s44, s16"); a("s_mov_b32 s45, s17"); a(f"s_mov_b32 s46, {1792*448*2}"); a("s_mov_b32 s47, 0x20000")
        a("s_mul_i32 s38, s30, 32*896")
        a(f"s_mov_b32 s39, {L_DOWN}")
        a("s_mov_b32 s48, 32")
        self.dma_rows("s[44:47]")
        L("L_h_tok_fin")
        a("v_and_b32 v20, 31, v1")
        a("v_lshrrev_b32 v21, 2, v20"); a("v_lshlrev_b32 v21, 5, v21"); a("v_and_b32 v22, 3, v20"); a("v_lshl_add_u32 v21, v22, 1, v21")
        a("v_lshlrev_b32 v21, 9, v21"); a(f"v_add_u32 v21, {WS_QG+4}, v21")
        self.poll_tag("tok1", 21)
        a("s_cmp_eq_u32 s29, 3"); a("s_cbranch_scc0 L_h_end")
        a("v_min_u32 v20, 55, v1")
        a("v_and_b32 v21, 7, v20"); a("v_lshlrev_b32 v21, 5, v21"); a("v_lshrrev_b32 v22, 3, v20"); a("v_lshl_add_u32 v21, v22, 1, v21")
        a("v_add_u32 v21, 8, v21"); a("v_lshlrev_b32 v21, 9, v21"); a(f"v_add_u32 v21, {WS_QG+4}, v21")
        self.poll_tag("tok2", 21)
        L("L_h_end")
        a("s_waitcnt vmcnt(0)")
        self.stamp(4)
        a("s_branch L_exit")

    def dma_rows(self, srd):
        a = self.a
        a("v_cmp_gt_u32 vcc, 56, v1")
        a("s_and_saveexec_b64 s[32:33], vcc")
        lab = self.newlabel("rows")
        self.L(lab)
        a("s_mov_b32 m0, s39")
        a(f"s_add_u32 s39, s39, {WPITCH}")
        a(f"buffer_load_dwordx4 v5, {srd}, s38 offen{self.ntw} lds")
        a("s_add_u32 s38, s38, 896")
        a("s_waitcnt vmcnt(40)")
        a("s_sub_u32 s48, s48, 1"); a("s_cmp_lg_u32 s48, 0"); a(f"s_cbranch_scc1 {lab}")
        a("s_mov_b64 exec, s[32:33]")

    def poll_tag(self, name, addr):
        a = self.a
        lab = self.newlabel(name); done = self.newlabel(name + "d")
        a(f"s_mov_b32 s37, {self.spin_max}")
        self.L(lab)
        a(f"global_load_dword v23, v{addr}, s[20:21] sc1")
        a("s_waitcnt vmcnt(0)")
        a("v_cmp_ne_u32 vcc, s36, v23")
        a(f"s_cbranch_vccz {done}")
        a("s_sleep 8")
        a("s_sub_u32 s37, s37, 1"); a("s_cmp_lg_u32 s37, 0"); a(f"s_cbranch_scc1 {lab}")
        self.L(done)

def emit(path, **kw):
    g = Gen(**kw)
    body = g.build()
    hdr = open("cdna_kernels/" + KNAME[:-7] + ".s.ref").read().split("\n")
    top = [l for l in hdr if l.startswith(";") and "@launch" not in l and "Override launch" not in l and "grid=ceil" not in l]
    top = top[:15]
    out = top + [f"; @launch grid=(256,1,1) block=(576,1,1) lds={LDS_TOTAL}",
                 '.amdgcn_target "amdgcn-amd-amdhsa--gfx950"', ".text", f".globl {KNAME}", ".p2align 8",
                 f".type {KNAME},@function", f"{KNAME}:"]
    out += body
    out += ['.section .rodata,"a"', ".p2align 6", f".amdhsa_kernel {KNAME}",
            "  .amdhsa_next_free_vgpr 168", "  .amdhsa_next_free_sgpr 102", "  .amdhsa_accum_offset 168",
            "  .amdhsa_group_segment_fixed_size 0", "  .amdhsa_kernarg_size 96", "  .amdhsa_user_sgpr_count 2",
            "  .amdhsa_user_sgpr_kernarg_segment_ptr 1", "  .amdhsa_system_sgpr_workgroup_id_x 1",
            "  .amdhsa_float_denorm_mode_32 3", "  .amdhsa_float_denorm_mode_16_64 3",
            ".end_amdhsa_kernel", ""]
    open(path, "w").write("\n".join(out))

if __name__ == "__main__":
    import argparse
    ap = argparse.ArgumentParser()
    ap.add_argument("-o", default="main.s")
    ap.add_argument("--stamps", action="store_true")
    ap.add_argument("-D", type=int, default=16)
    ap.add_argument("-R", type=int, default=20)
    args = ap.parse_args()
    emit(args.o, D=args.D, R=args.R, dbg_stamps=args.stamps)
    print("LDS", LDS_TOTAL)
```

```python
import sys

KNAME = "sequential_preLN__gqa_block_cached__geglu_ffn__decode_kernel"

WS_G   = 0x0
WS_QG  = 0x1000
WS_TOK = 0x30000
WS_H1  = 0x40000
WS_ML  = 0xC0000
WS_T1O = 0xC4000
WS_FFO = 0xD8000
WS_DBG = 0x100000
WS_SIZE_USED = 0x200000

WPITCH = 928
L_W    = 0
L_GATE = 0
L_UP   = 28672
L_DOWN = 57344
L_Q    = 118784
L_XR   = L_Q + 1024
L_XN   = L_XR + 1024
L_M    = L_XN + 1024
L_L    = L_M + 64
L_P    = L_M + 256
L_ACC  = L_P + 4096
L_PRIV = L_ACC + 16384
LDS_TOTAL = L_PRIV + 8192

SENT = 0xFFFFFFFF
LOG2E = 1.4426950408889634
import struct
def f2u(x): return struct.unpack("<I", struct.pack("<f", x))[0]
def hexf(x): return "0x%08x" % f2u(x)

class Gen:
    def __init__(self, D=16, R=20, D0=6, dbg_stamps=False, nt_stream=True, nt_w=True, spin_max=20000):
        self.o = []
        self.D, self.R, self.D0 = D, R, D0
        self.stamps = dbg_stamps
        self.nt = " nt" if nt_stream else ""
        self.ntw = " nt" if nt_w else ""
        self.spin_max = spin_max
        self.lab = 0
    def a(self, s): self.o.append("  " + s)
    def L(self, s): self.o.append(s + ":")
    def c(self, s): self.o.append("  ; " + s)
    def newlabel(self, base):
        self.lab += 1
        return f"L_{base}_{self.lab}"
    def nop(self, n):
        while n > 0:
            k = min(n, 16); self.a(f"s_nop {k-1}"); n -= k

    def row_allreduce(self, op, regs):
        for sh in (8, 4, 2, 1):
            if len(regs) < 3: self.nop(2 - (len(regs) - 1) if len(regs) > 0 else 2)
            for r in regs:
                self.a(f"{op}_dpp v{r}, v{r}, v{r} row_ror:{sh} row_mask:0xf bank_mask:0xf")
    def swap_allreduce(self, op, regs, tmps, kind):
        self.nop(1)
        for r, t in zip(regs, tmps): self.a(f"v_mov_b32 v{t}, v{r}")
        self.nop(2)
        for r, t in zip(regs, tmps): self.a(f"v_permlane{kind}_swap_b32 v{r}, v{t}")
        self.nop(1)
        for r, t in zip(regs, tmps): self.a(f"{op} v{r}, v{r}, v{t}")
    def wave_allreduce(self, op, regs, tmps, full=True):
        self.nop(2)
        self.row_allreduce(op, regs)
        self.swap_allreduce(op, regs, tmps, 16)
        if full: self.swap_allreduce(op, regs, tmps, 32)

    def stamp(self, idx):
        if not self.stamps: return
        self.a(f"s_memrealtime s[{70+2*idx}:{71+2*idx}]")
    def stamp_init(self):
        if not self.stamps: return
        for i in range(8): self.a(f"s_mov_b32 s{70+2*i}, 0")
    def stamp_flush(self):
        if not self.stamps: return
        a = self.a
        if self.stamps == 2:
            a("s_memrealtime s[92:93]")
            a("s_load_dwordx2 s[94:95], s[0:1], 80")
            a("s_waitcnt lgkmcnt(0)")
            a("s_lshl_b32 s98, s2, 4"); a("s_add_u32 s98, s98, s3")
            a("s_mov_b32 s99, 0")
            a(f"s_cmp_eq_u32 s98, {22*16}"); a("s_cbranch_scc1 L_dbgw")
            a("s_mov_b32 s99, 32")
            a(f"s_cmp_eq_u32 s98, {1*16+7}"); a("s_cbranch_scc0 L_end")
            self.L("L_dbgw")
            for i in range(7):
                a(f"s_sub_u32 s96, s{70+2*i}, s84"); a(f"v_mov_b32 v{8+i}, s96")
            a("s_sub_u32 s96, s92, s84"); a("v_mov_b32 v15, s96")
            a("v_mov_b32 v16, s99")
            a("s_mov_b64 exec, 1")
            a("global_store_dwordx4 v16, v[8:11], s[94:95]")
            a("global_store_dwordx4 v16, v[12:15], s[94:95] offset:16")
            return
        a("s_waitcnt lgkmcnt(0)")
        for i in range(8): a(f"v_mov_b32 v{8+i}, s{70+2*i}")
        a("s_lshl_b32 s98, s2, 9"); a("s_lshl_b32 s99, s3, 5"); a("s_add_u32 s98, s98, s99"); a(f"s_add_u32 s98, s98, {WS_DBG}")
        a("v_mov_b32 v16, s98")
        a("s_mov_b64 exec, 1")
        a("global_store_dwordx4 v16, v[8:11], s[20:21]")
        a("global_store_dwordx4 v16, v[12:15], s[20:21] offset:16")

    def build(self):
        a, L, c = self.a, self.L, self.c
        D, R = self.D, self.R
        RING = 40
        DT = RING + 4 * R
        MISC = DT + 32
        assert MISC + 14 <= 166, MISC
        c("---------------- entry ----------------")
        a("s_cmp_ge_u32 s2, 256")
        a("s_cbranch_scc1 L_end")
        self.stamp_init(); self.stamp(7)
        a("s_load_dwordx4 s[4:7], s[0:1], 8")
        a("s_load_dwordx2 s[20:21], s[0:1], 88")
        a("v_lshrrev_b32 v1, 6, v0")
        a("s_lshr_b32 s22, s2, 5")
        a("v_readfirstlane_b32 s3, v1")
        a("s_and_b32 s23, s2, 31")
        a("v_and_b32 v1, 63, v0")
        a("s_cmp_eq_u32 s3, 8")
        a("s_cbranch_scc1 L_helper")
        c("---------------- streamer prologue ----------------")
        a("v_and_b32 v2, 15, v1")
        a("v_lshlrev_b32 v2, 9, v2")
        a("v_lshrrev_b32 v5, 4, v1")
        a("v_lshl_add_u32 v2, v5, 4, v2")
        a("v_and_b32 v3, 31, v1")
        a("v_lshlrev_b32 v3, 4, v3")
        a("v_lshrrev_b32 v6, 5, v1")
        a("v_lshl_add_u32 v3, v6, 10, v3")
        a("v_add_u32 v4, 0x1000, v3")
        a("s_lshl_b32 s24, s23, 3")
        a("s_add_u32 s24, s24, s3")
        a("s_lshl_b32 s40, s24, 13")
        for it in range(1, 8):
            a(f"s_add_u32 s{40+it}, s40, {it*0x200000}")
        a("s_lshl_b32 s25, s22, 24")
        a("s_waitcnt lgkmcnt(0)")
        a("s_add_u32 s8, s4, s25"); a("s_addc_u32 s9, s5, 0"); a("s_mov_b32 s10, 0x1000000"); a("s_mov_b32 s11, 0x20000")
        a("s_add_u32 s12, s6, s25"); a("s_addc_u32 s13, s7, 0"); a("s_mov_b32 s14, 0x1000000"); a("s_mov_b32 s15, 0x20000")
        def slot(i): return RING + 4 * (i % R)
        def issue(i):
            if i >= 128: return
            r = slot(i)
            if i < 64:
                it, st = i >> 3, i & 7
                a(f"buffer_load_dwordx4 v[{r}:{r+3}], v2, s[8:11], s{40+it} offen offset:{st*64}{self.nt}")
            else:
                j = i - 64
                it, jj = j >> 3, j & 7
                iq, b = jj >> 1, jj & 1
                va = "v3" if iq < 2 else "v4"
                a(f"buffer_load_dwordx4 v[{r}:{r+3}], {va}, s[12:15], s{40+it} offen offset:{(iq&1)*2048 + b*512}{self.nt}")
        a("s_barrier")
        for i in range(self.D0): issue(i)
        self.stamp(0)
        a("s_mov_b32 s48, 0xffff0000"); a("s_mov_b32 s49, 0")
        a("s_mov_b32 s50, 0"); a("s_mov_b32 s51, 0x0000ffff")
        a("s_mov_b32 s52, 0"); a("s_mov_b32 s53, 0xffff0000")
        a("s_mov_b32 s54, 0x05040100"); a("s_mov_b32 s55, 0x07060302")
        a(f"s_mov_b32 s56, {hexf(LOG2E/16)}")
        a("s_mov_b32 s16, s20"); a("s_mov_b32 s17, s21"); a(f"s_mov_b32 s18, {WS_SIZE_USED}"); a("s_mov_b32 s19, 0x20000")
        a("v_and_b32 v7, 1, v1")
        a("v_lshlrev_b32 v7, 9, v7")
        a("v_lshl_add_u32 v5, v5, 4, v7")
        a(f"v_add_u32 v5, {L_Q}, v5")
        PW, PR = MISC, MISC + 1
        a(f"v_lshrrev_b32 v{PW}, 3, v1"); a(f"v_lshlrev_b32 v{PW}, 5, v{PW}")
        a("v_bfe_u32 v7, v1, 1, 1"); a(f"v_lshl_add_u32 v{PW}, v7, 4, v{PW}")
        a("v_bfe_u32 v7, v1, 2, 1"); a(f"v_lshl_add_u32 v{PW}, v7, 3, v{PW}")
        a("v_and_b32 v7, 1, v1"); a(f"v_lshl_add_u32 v{PW}, v7, 1, v{PW}")
        a("s_lshl_b32 s26, s3, 9"); a(f"s_add_u32 s26, s26, {L_P}")
        a(f"v_add_u32 v{PW}, s26, v{PW}")
        a(f"v_lshlrev_b32 v{PR}, 4, v6"); a(f"v_add_u32 v{PR}, s26, v{PR}")
        a("s_barrier")
        for i in range(self.D0, D): issue(i)
        self.stamp(1)
        Q = 8
        for st in range(8):
            a(f"ds_read_b128 v[{Q+4*st}:{Q+4*st+3}], v5 offset:{st*64}")
        a("s_waitcnt lgkmcnt(0)")
        c("---------------- K phase ----------------")
        for i in range(64):
            it, st = i >> 3, i & 7
            r = slot(i); d = DT + 4 * it
            outstanding_after = min(D - 1, 127 - i)
            a(f"s_waitcnt vmcnt({outstanding_after})")
            src_c = "0" if st == 0 else f"v[{d}:{d+3}]"
            a(f"v_mfma_f32_16x16x32_bf16 v[{d}:{d+3}], v[{Q+4*st}:{Q+4*st+3}], v[{r}:{r+3}], {src_c}")
            issue(i + D)
        self.stamp(2)
        c("---------------- softmax ----------------")
        S = MISC + 2
        T = MISC + 6
        self.nop(8)
        for u in range(2):
            for h in range(2):
                s = S + 2 * u + h
                a(f"v_cndmask_b32 v{s}, v{DT+16*u+h}, v{DT+16*u+4+h}, s[48:49]")
                a(f"v_cndmask_b32 v{s}, v{s}, v{DT+16*u+8+h}, s[50:51]")
                a(f"v_cndmask_b32 v{s}, v{s}, v{DT+16*u+12+h}, s[52:53]")
        for u in range(2):
            a(f"v_cvt_pk_bf16_f32 v{T+u}, v{S+2*u}, v{S+2*u+1}")
        for u in range(2):
            a(f"v_lshlrev_b32 v{S+2*u}, 16, v{T+u}")
            a(f"v_and_b32 v{S+2*u+1}, 0xffff0000, v{T+u}")
        MX = T
        a(f"v_max_f32 v{MX}, v{S}, v{S+2}")
        a(f"v_max_f32 v{MX+1}, v{S+1}, v{S+3}")
        self.wave_allreduce("v_max_f32", [MX, MX+1], [T+2, T+3])
        a("s_lshl_b32 s27, s3, 2")
        a(f"s_add_u32 s27, s27, {L_M}")
        a(f"v_mov_b32 v{T+4}, s27")
        a("s_mov_b64 exec, 1")
        a(f"ds_write2_b32 v{T+4}, v{MX}, v{MX+1} offset0:0 offset1:8")
        a("s_mov_b64 exec, -1")
        a(f"v_mul_f32 v26, s56, v{MX}"); a(f"v_mul_f32 v27, s56, v{MX+1}")
        for u in range(2):
            for h in range(2):
                a(f"v_fma_f32 v{S+2*u+h}, v{S+2*u+h}, s56, -v{26+h}")
        for u in range(2):
            for h in range(2):
                a(f"v_exp_f32 v{S+2*u+h}, v{S+2*u+h}")
        self.nop(1)
        for u in range(2):
            a(f"v_cvt_pk_bf16_f32 v{T+u}, v{S+2*u}, v{S+2*u+1}")
        for u in range(2):
            a(f"ds_write_b16 v{PW}, v{T+u} offset:{u*256}")
            a(f"ds_write_b16_d16_hi v{PW}, v{T+u} offset:{u*256+4}")
        LS = T + 2
        a(f"v_add_f32 v{LS}, v{S}, v{S+2}")
        a(f"v_add_f32 v{LS+1}, v{S+1}, v{S+3}")
        ACC = 8
        for j in range(16): a(f"v_mov_b32 v{ACC+j}, 0")
        self.wave_allreduce("v_add_f32", [LS, LS+1], [T+4, T+5])
        a(f"v_mov_b32 v{T}, s27")
        a("s_mov_b64 exec, 1")
        a(f"ds_write2_b32 v{T}, v{LS}, v{LS+1} offset0:16 offset1:24")
        a("s_mov_b64 exec, -1")
        a("s_waitcnt lgkmcnt(0)")
        c("---------------- V phase ----------------")
        PREG = 24
        PT = 32
        a(f"ds_read_b128 v[{PREG}:{PREG+3}], v{PR} offset:0")
        for i2 in range(16):
            pr = PREG + 4 * (i2 & 1)
            if i2 + 1 < 16:
                pn = PREG + 4 * ((i2 + 1) & 1)
                a(f"ds_read_b128 v[{pn}:{pn+3}], v{PR} offset:{(i2+1)*32}")
                a("s_waitcnt lgkmcnt(1)")
            else:
                a("s_waitcnt lgkmcnt(0)")
            for ii in range(2):
                i = 2 * i2 + ii
                la, lb = 64 + 2 * i, 64 + 2 * i + 1
                ra, rb = slot(la), slot(lb)
                younger = min(D - 2, 127 - lb)
                a(f"s_waitcnt vmcnt({younger})")
                for w in range(4):
                    a(f"v_perm_b32 v{PT+2*w}, v{rb+w}, v{ra+w}, s54")
                    a(f"v_perm_b32 v{PT+2*w+1}, v{rb+w}, v{ra+w}, s55")
                issue(la + D); issue(lb + D)
                for h in range(2):
                    for j in range(8):
                        a(f"v_dot2c_f32_bf16 v{ACC+8*h+j}, v{PT+j}, v{pr+2*ii+h}")
        self.stamp(3)
        c("---------------- merge inside the workgroup ----------------")
        self.nop(3)
        for j in range(8): a(f"v_permlane32_swap_b32 v{ACC+j}, v{ACC+8+j}")
        self.nop(1)
        for j in range(8): a(f"v_add_f32 v{ACC+j}, v{ACC+j}, v{ACC+8+j}")
        a("s_lshl_b32 s27, s3, 11"); a(f"s_add_u32 s27, s27, {L_ACC}")
        a("v_lshlrev_b32 v24, 5, v1"); a("v_add_u32 v24, s27, v24")
        a(f"ds_write_b128 v24, v[{ACC}:{ACC+3}]")
        a(f"ds_write_b128 v24, v[{ACC+4}:{ACC+7}] offset:16")
        a("s_waitcnt lgkmcnt(0)")
        a("s_barrier")
        a("s_cmp_gt_u32 s3, 1"); a("s_cbranch_scc1 L_roles")
        a("s_lshl_b32 s27, s3, 5"); a(f"s_add_u32 s27, s27, {L_M}")
        a("v_mov_b32 v25, s27")
        a("ds_read_b128 v[8:11], v25"); a("ds_read_b128 v[12:15], v25 offset:16")
        a("ds_read_b128 v[16:19], v25 offset:64"); a("ds_read_b128 v[20:23], v25 offset:80")
        a("v_lshlrev_b32 v24, 4, v0"); a(f"v_add_u32 v25, {L_ACC}, v24")
        for w in range(8):
            a(f"ds_read_b128 v[{28+4*w}:{28+4*w+3}], v25 offset:{w*2048}")
        a("s_lshl_b32 s27, s2, 11"); a(f"s_add_u32 s27, s27, {WS_H1}")
        a("v_add_u32 v24, s27, v24")
        a("s_waitcnt lgkmcnt(10)")
        a("v_max3_f32 v60, v8, v9, v10"); a("v_max3_f32 v60, v60, v11, v12"); a("v_max3_f32 v60, v60, v13, v14"); a("v_max_f32 v60, v60, v15")
        a("v_mul_f32 v61, s56, v60")
        for w in range(8): a(f"v_fma_f32 v{8+w}, v{8+w}, s56, -v61")
        for w in range(8): a(f"v_exp_f32 v{8+w}, v{8+w}")
        a("s_waitcnt lgkmcnt(7)")
        for e in range(4): a(f"v_mul_f32 v{28+e}, v8, v{28+e}")
        for w in range(1, 8):
            a(f"s_waitcnt lgkmcnt({7-w})")
            for e in range(4):
                a(f"v_fma_f32 v{28+e}, v{8+w}, v{28+4*w+e}, v{28+e}")
        a("global_store_dwordx4 v24, v[28:31], s[20:21] sc1")
        a("v_mul_f32 v61, v8, v16")
        for w in range(1, 8): a(f"v_fma_f32 v61, v{8+w}, v{16+w}, v61")
        a("s_lshl_b32 s27, s2, 4"); a("s_lshl_b32 s28, s3, 3"); a("s_add_u32 s27, s27, s28"); a(f"s_add_u32 s27, s27, {WS_ML}")
        a("v_mov_b32 v24, s27")
        a("s_mov_b64 exec, 1")
        a("global_store_dwordx2 v24, v[60:61], s[20:21] sc1")
        a("s_mov_b64 exec, -1")
        c("---------------- role dispatch ----------------")
        L("L_roles")
        self.stamp(4)
        a("s_bitcmp1_b32 s23, 0"); a("s_cbranch_scc1 L_exit")
        a("s_cmp_lt_u32 s23, 8"); a("s_cbranch_scc1 L_t1")
        a("s_cmp_lt_u32 s23, 22"); a("s_cbranch_scc1 L_ffn")
        a("s_cmp_lg_u32 s23, 22"); a("s_cbranch_scc1 L_exit")
        a("s_cmp_lt_u32 s22, 7"); a("s_cbranch_scc1 L_fin")
        a("s_branch L_exit")
        self.gen_t1(); self.gen_ffn(); self.gen_fin(); self.gen_helper()
        L("L_exit")
        self.stamp_flush()
        L("L_end")
        a("s_endpgm")
        return self.o

    def poll_sentinel(self, name, loads, regs, tmp, cnt="s30", mask_exec=None):
        a = self.a
        lab = self.newlabel(name)
        a(f"s_mov_b32 {cnt}, {self.spin_max}")
        self.L(lab)
        loads()
        a("s_waitcnt vmcnt(0)")
        rs = list(regs)
        first = True
        while rs:
            if first:
                if len(rs) >= 3:
                    a(f"v_max3_u32 v{tmp}, v{rs[0]}, v{rs[1]}, v{rs[2]}"); rs = rs[3:]
                elif len(rs) == 2:
                    a(f"v_max_u32 v{tmp}, v{rs[0]}, v{rs[1]}"); rs = []
                else:
                    a(f"v_mov_b32 v{tmp}, v{rs[0]}"); rs = []
                first = False
            elif len(rs) >= 2:
                a(f"v_max3_u32 v{tmp}, v{tmp}, v{rs[0]}, v{rs[1]}"); rs = rs[2:]
            else:
                a(f"v_max_u32 v{tmp}, v{tmp}, v{rs[0]}"); rs = []
        a(f"v_cmp_eq_u32 vcc, -1, v{tmp}")
        done = self.newlabel(name + "_done")
        a(f"s_cbranch_vccz {done}")
        a(f"s_sub_u32 {cnt}, {cnt}, 1")
        a(f"s_cmp_lg_u32 {cnt}, 0")
        a(f"s_cbranch_scc1 {lab}")
        self.L(done)

    def select4(self, dst, d0, d1, d2, d3):
        a = self.a
        a(f"v_cndmask_b32 v{dst}, v{d0}, v{d1}, s[48:49]")
        a(f"v_cndmask_b32 v{dst}, v{dst}, v{d2}, s[50:51]")
        a(f"v_cndmask_b32 v{dst}, v{dst}, v{d3}, s[52:53]")

    def round_bf16_pair(self, dst_pk, x0, x1, o0=None, o1=None):
        a = self.a
        a(f"v_cvt_pk_bf16_f32 v{dst_pk}, v{x0}, v{x1}")
        if o0 is not None: a(f"v_lshlrev_b32 v{o0}, 16, v{dst_pk}")
        if o1 is not None: a(f"v_and_b32 v{o1}, 0xffff0000, v{dst_pk}")

    def gen_t1(self):
        a, L, c = self.a, self.L, self.c
        c("================ T1: softmax combine + wo slice ================")
        L("L_t1")
        a("s_lshr_b32 s24, s23, 1")
        a("v_lshrrev_b32 v2, 2, v1")
        a(f"v_mul_u32_u24 v2, {WPITCH}, v2")
        a("v_and_b32 v3, 3, v1")
        a("v_lshl_add_u32 v2, v3, 3, v2")
        a("s_lshl_b32 s25, s3, 7")
        a("v_add_u32 v2, s25, v2")
        a(f"v_add_u32 v3, {64*WPITCH}, v2")
        BF = 64
        a("s_cmp_eq_u32 s3, 7"); a("s_cbranch_scc1 L_t1_nob")
        for ks in range(4):
            for tt in range(4):
                for h in range(2):
                    r = BF + ((ks * 4 + tt) * 2 + h) * 2
                    base = "v2" if ks < 2 else "v3"
                    off = (32 * (ks & 1) + 16 * h) * WPITCH + tt * 32
                    a(f"ds_read_b64_tr_b16 v[{r}:{r+1}], {base} offset:{off}")
            a("s_waitcnt lgkmcnt(0)")
        L("L_t1_nob")
        a("s_lshl_b32 s26, s22, 5")
        a("v_lshrrev_b32 v6, 5, v1")
        a("v_and_b32 v7, 31, v1")
        a("s_lshl_b32 s27, s3, 2"); a("s_add_u32 s27, s27, s26")
        a("v_add_u32 v8, s27, v6")
        a("v_lshlrev_b32 v9, 11, v8")
        a("v_lshl_add_u32 v9, v7, 4, v9")
        a("s_lshl_b32 s28, s24, 9"); a(f"s_add_u32 s28, s28, {WS_H1 + 2048}")
        a("v_add_u32 v9, s28, v9")
        a("s_lshr_b32 s29, s24, 1"); a("s_lshl_b32 s29, s29, 3"); a(f"s_add_u32 s29, s29, {WS_ML}")
        a("v_lshlrev_b32 v10, 4, v8"); a("v_add_u32 v10, s29, v10")
        a("v_add_u32 v11, s26, v7"); a("v_lshlrev_b32 v11, 4, v11"); a("v_add_u32 v11, s29, v11")
        def loads():
            a("global_load_dwordx4 v[12:15], v9, s[20:21] offset:-2048 sc1")
            a("global_load_dwordx4 v[16:19], v9, s[20:21] offset:2048 sc1")
            a("global_load_dwordx2 v[20:21], v11, s[20:21] sc1")
            a("global_load_dword v22, v10, s[20:21] sc1")
            a("global_load_dword v23, v10, s[20:21] offset:32 sc1")
        self.poll_sentinel("t1", loads, list(range(12, 24)), 24)
        self.stamp(5)
        a("v_mov_b32 v25, v20")
        self.wave_allreduce("v_max_f32", [25], [26], full=False)
        a("v_sub_f32 v27, v20, v25"); a("v_sub_f32 v28, v22, v25"); a("v_sub_f32 v29, v23, v25")
        a("v_mul_f32 v27, s56, v27"); a("v_mul_f32 v28, s56, v28"); a("v_mul_f32 v29, s56, v29")
        a("v_exp_f32 v27, v27"); a("v_exp_f32 v28, v28"); a("v_exp_f32 v29, v29")
        self.nop(1)
        a("v_mul_f32 v27, v27, v21")
        self.wave_allreduce("v_add_f32", [27], [26], full=False)
        a("v_rcp_f32 v30, v27")
        self.nop(1)
        a("v_fma_f32 v31, -v27, v30, 1.0"); a("v_fma_f32 v30, v31, v30, v30")
        a("v_mul_f32 v28, v28, v30"); a("v_mul_f32 v29, v29, v30")
        for e in range(4): a(f"v_mul_f32 v{12+e}, v28, v{12+e}")
        for e in range(4): a(f"v_fma_f32 v{12+e}, v29, v{16+e}, v{12+e}")
        self.nop(2)
        a("v_permlane32_swap_b32 v12, v13"); a("v_permlane32_swap_b32 v14, v15")
        self.nop(1)
        a("v_add_f32 v12, v12, v13"); a("v_add_f32 v14, v14, v15")
        a("v_lshl_add_u32 v16, v7, 2, v6"); a("v_lshlrev_b32 v16, 2, v16")
        a("s_lshl_b32 s27, s3, 9"); a(f"s_add_u32 s27, s27, {L_ACC}")
        a("v_add_u32 v16, s27, v16")
        a("ds_write_b32 v16, v12"); a("ds_write_b32 v16, v14 offset:8")
        a("s_waitcnt lgkmcnt(0)")
        a("s_barrier")
        a("s_cmp_eq_u32 s3, 7"); a("s_cbranch_scc1 L_exit")
        a("v_lshlrev_b32 v17, 3, v1"); a(f"v_add_u32 v17, {L_ACC}, v17")
        for w in range(8):
            a(f"ds_read_b64 v[{32+2*w}:{32+2*w+1}], v17 offset:{w*512}")
        a("v_lshrrev_b32 v18, 4, v1"); a("v_lshlrev_b32 v18, 6, v18")
        a("v_bfe_u32 v19, v1, 1, 2"); a("v_lshl_add_u32 v18, v19, 4, v18")
        a("v_bfe_u32 v19, v1, 3, 1"); a("v_lshl_add_u32 v18, v19, 3, v18")
        a("v_and_b32 v19, 1, v1"); a("v_lshl_add_u32 v18, v19, 2, v18")
        a("s_lshl_b32 s27, s3, 10"); a(f"s_add_u32 s27, s27, {L_PRIV}")
        a("v_add_u32 v18, s27, v18")
        a("v_lshrrev_b32 v19, 4, v1"); a("v_lshlrev_b32 v19, 4, v19"); a("v_add_u32 v19, s27, v19")
        for w in range(1, 8):
            a(f"s_waitcnt lgkmcnt({7-w})")
            a(f"v_add_f32 v32, v32, v{32+2*w}"); a(f"v_add_f32 v33, v33, v{33+2*w}")
        a("v_cvt_pk_bf16_f32 v34, v32, v33")
        a("ds_write_b32 v18, v34")
        a("s_waitcnt lgkmcnt(0)")
        for ks in range(4):
            a(f"ds_read_b128 v[{36+4*ks}:{36+4*ks+3}], v19 offset:{ks*64}")
        a("s_waitcnt lgkmcnt(0)")
        DD = 128
        for ks in range(4):
            for tt in range(4):
                r = BF + (ks * 4 + tt) * 4
                cc = "0" if ks == 0 else f"v[{DD+4*tt}:{DD+4*tt+3}]"
                a(f"v_mfma_f32_16x16x32_bf16 v[{DD+4*tt}:{DD+4*tt+3}], v[{36+4*ks}:{36+4*ks+3}], v[{r}:{r+3}], {cc}")
        a("s_lshl_b32 s27, s22, 2"); a("s_add_u32 s27, s27, s24")
        a("s_lshl_b32 s27, s27, 11"); a(f"s_add_u32 s27, s27, {WS_T1O}")
        a("s_lshl_b32 s28, s3, 8"); a("s_add_u32 s27, s27, s28")
        a("v_lshlrev_b32 v20, 2, v1"); a("v_add_u32 v20, s27, v20")
        self.nop(6)
        self.select4(21, DD, DD+4, DD+8, DD+12)
        a("global_store_dword v20, v21, s[20:21] sc1")
        self.stamp(6)
        a("s_branch L_exit")

    def gen_ffn(self):
        a, L, c = self.a, self.L, self.c
        c("================ FFN slice ================")
        L("L_ffn")
        a("s_sub_u32 s24, s23, 8"); a("s_lshr_b32 s24, s24, 1"); a("s_lshl_b32 s24, s24, 3"); a("s_add_u32 s24, s24, s22")
        a("v_lshrrev_b32 v2, 2, v1")
        a("v_and_b32 v3, 3, v1")
        a("v_bfe_u32 v4, v1, 4, 1")
        a("v_lshlrev_b32 v5, 6, v2"); a("v_lshl_add_u32 v5, v3, 3, v5")
        a("s_lshl_b32 s25, s3, 12"); a("v_add_u32 v5, s25, v5")
        a("v_lshl_add_u32 v6, v4, 5, v5")
        a("v_xor_b32 v4, 1, v4"); a("v_lshl_add_u32 v7, v4, 5, v5")
        a(f"v_mul_u32_u24 v8, {WPITCH}, v2"); a("v_lshl_add_u32 v8, v3, 3, v8")
        a("s_lshl_b32 s25, s3, 7"); a(f"s_add_u32 s25, s25, {L_DOWN}"); a("v_add_u32 v8, s25, v8")
        BG = 64
        BD = 96
        XR = 112
        a("s_cmp_eq_u32 s3, 7"); a("s_cbranch_scc1 L_ffn_nob")
        for ksl in range(2):
            for m in range(2):
                for ct in range(2):
                    for h in range(2):
                        r = BG + ((ksl * 2 + m) * 2 + ct) * 4 + 2 * h
                        a(f"ds_read_b64_tr_b16 v[{r}:{r+1}], v{6+ct} offset:{m*L_UP + ksl*2048 + h*1024}")
            a("s_waitcnt lgkmcnt(0)")
        for tt in range(4):
            for h in range(2):
                r = BD + tt * 4 + 2 * h
                a(f"ds_read_b64_tr_b16 v[{r}:{r+1}], v8 offset:{16*h*WPITCH + tt*32}")
        a(f"v_lshlrev_b32 v9, 4, v1"); a(f"v_add_u32 v9, {L_XR}, v9")
        a(f"ds_read_b128 v[{XR}:{XR+3}], v9")
        a("s_mov_b32 s26, 586")
        a("v_mul_lo_u32 v10, s26, v0"); a("v_lshrrev_b32 v10, 16, v10")
        a("v_mul_u32_u24 v11, 112, v10"); a("v_sub_u32 v11, v0, v11")
        a("v_lshlrev_b32 v12, 14, v10"); a("v_lshl_add_u32 v12, v11, 4, v12")
        a(f"v_add_u32 v12, {WS_T1O}, v12")
        for j in range(8): a(f"s_mov_b32 s{60+j}, {j*2048}")
        a("v_mul_u32_u24 v13, 1792, v10"); a("v_lshl_add_u32 v13, v11, 4, v13"); a(f"v_add_u32 v13, {L_ACC}, v13")
        def loads():
            for j in range(8):
                a(f"buffer_load_dwordx4 v[{16+4*j}:{16+4*j+3}], v12, s[16:19], s{60+j} offen sc1")
        self.poll_sentinel("ffn", loads, list(range(16, 48)), 14)
        self.stamp(5)
        for j in range(1, 8):
            for e in range(4): a(f"v_add_f32 v{16+e}, v{16+e}, v{16+4*j+e}")
        a("ds_write_b128 v13, v[16:19]")
        L("L_ffn_nob")
        a("s_waitcnt lgkmcnt(0)")
        a("s_barrier")
        a("s_cmp_eq_u32 s3, 7"); a("s_cbranch_scc1 L_ffn_w7")
        a("v_lshlrev_b32 v14, 5, v1"); a(f"v_add_u32 v14, {L_ACC}, v14")
        for ps in range(4):
            a(f"ds_read_b128 v[{16+8*ps}:{16+8*ps+3}], v14 offset:{ps*1792}")
            a(f"ds_read_b128 v[{16+8*ps+4}:{16+8*ps+7}], v14 offset:{ps*1792+16}")
        for ps in range(1, 4):
            a(f"s_waitcnt lgkmcnt({2*(3-ps)})")
            for e in range(8): a(f"v_add_f32 v{16+e}, v{16+e}, v{16+8*ps+e}")
        for e in range(4): self.round_bf16_pair(24+e, 16+2*e, 17+2*e, 16+2*e, 17+2*e)
        for e in range(4):
            a(f"v_lshlrev_b32 v{28+2*e}, 16, v{XR+e}"); a(f"v_and_b32 v{29+2*e}, 0xffff0000, v{XR+e}")
        for e in range(8): a(f"v_add_f32 v{16+e}, v{16+e}, v{28+e}")
        for e in range(4): self.round_bf16_pair(24+e, 16+2*e, 17+2*e, 16+2*e, 17+2*e)
        self.layernorm(16, 28, 36, 24)
        a("v_lshrrev_b32 v36, 2, v1"); a("v_lshlrev_b32 v36, 6, v36")
        a("v_and_b32 v37, 1, v1"); a("v_lshl_add_u32 v36, v37, 5, v36")
        a("v_bfe_u32 v37, v1, 1, 1"); a("v_lshl_add_u32 v36, v37, 3, v36")
        a("s_lshl_b32 s27, s3, 10"); a(f"s_add_u32 s27, s27, {L_PRIV}")
        a("v_add_u32 v36, s27, v36")
        a("v_cmp_gt_u32 vcc, 56, v1")
        a("s_and_saveexec_b64 s[32:33], vcc")
        a("ds_write_b64 v36, v[24:25]"); a("ds_write_b64 v36, v[26:27] offset:16")
        a("s_mov_b64 exec, s[32:33]")
        a("v_lshrrev_b32 v37, 4, v1"); a("v_lshlrev_b32 v37, 4, v37")
        a("s_lshl_b32 s28, s3, 7"); a("s_add_u32 s28, s28, s27"); a("v_add_u32 v37, s28, v37")
        a("s_waitcnt lgkmcnt(0)")
        a("ds_read_b128 v[40:43], v37"); a("ds_read_b128 v[44:47], v37 offset:64")
        a("s_waitcnt lgkmcnt(0)")
        DD = 48
        for ksl in range(2):
            for m in range(2):
                for ct in range(2):
                    r = BG + ((ksl * 2 + m) * 2 + ct) * 4
                    d = DD + (m * 2 + ct) * 4
                    cc = "0" if ksl == 0 else f"v[{d}:{d+3}]"
                    a(f"v_mfma_f32_16x16x32_bf16 v[{d}:{d+3}], v[{40+4*ksl}:{40+4*ksl+3}], v[{r}:{r+3}], {cc}")
        GU = L_ACC + 8192
        a("s_lshl_b32 s28, s3, 8"); a(f"s_add_u32 s28, s28, {GU}")
        a("v_lshlrev_b32 v38, 2, v1"); a("v_add_u32 v39, s28, v38")
        self.nop(6)
        self.select4(16, DD, DD+4, DD+8, DD+12)
        a("ds_write_b32 v39, v16")
        L("L_ffn_w7")
        a("s_waitcnt lgkmcnt(0)")
        a("s_barrier")
        a("s_cmp_eq_u32 s3, 7"); a("s_cbranch_scc1 L_exit")
        a(f"v_add_u32 v39, {GU}, v38")
        for w in range(7): a(f"ds_read_b32 v{16+w}, v39 offset:{w*256}")
        a("v_bfe_u32 v40, v1, 2, 2"); a("v_lshlrev_b32 v40, 4, v40")
        a("v_bfe_u32 v41, v1, 4, 1"); a("v_lshl_add_u32 v40, v41, 3, v40")
        a("v_and_b32 v41, 3, v1"); a("v_lshl_add_u32 v40, v41, 1, v40")
        a("v_add_u32 v40, s27, v40")
        a("v_lshrrev_b32 v41, 4, v1"); a("v_lshlrev_b32 v41, 4, v41"); a("v_add_u32 v41, s27, v41")
        for w in range(1, 7):
            a(f"s_waitcnt lgkmcnt({6-w})")
            a(f"v_add_f32 v16, v16, v{16+w}")
        a("v_cvt_pk_bf16_f32 v17, v16, v16")
        a("v_and_b32 v16, 0xffff0000, v17")
        a("v_mov_b32 v17, v16")
        self.nop(2)
        a("v_permlane32_swap_b32 v16, v17")
        self.nop(1)
        k1 = -2.0 * LOG2E * 0.7978845608028654
        a(f"s_mov_b32 s28, {hexf(0.044715)}"); a(f"s_mov_b32 s29, {hexf(k1)}")
        a("v_mul_f32 v18, v16, v16")
        a("v_fma_f32 v18, v18, s28, 1.0")
        a("v_mul_f32 v18, v18, v16")
        a("v_mul_f32 v18, s29, v18")
        a("v_exp_f32 v18, v18")
        self.nop(1)
        a("v_add_f32 v18, 1.0, v18")
        a("v_rcp_f32 v18, v18")
        self.nop(1)
        a("v_mul_f32 v18, v16, v18")
        a("v_cvt_pk_bf16_f32 v18, v18, v18"); a("v_and_b32 v18, 0xffff0000, v18")
        a("v_mul_f32 v18, v18, v17")
        a("v_cvt_pk_bf16_f32 v18, v18, v18")
        a("s_mov_b32 exec_hi, 0")
        a("ds_write_b16 v40, v18")
        a("s_mov_b32 exec_hi, -1")
        a("s_waitcnt lgkmcnt(0)")
        a("ds_read_b128 v[20:23], v41")
        a("s_waitcnt lgkmcnt(0)")
        for tt in range(4):
            a(f"v_mfma_f32_16x16x32_bf16 v[{DD+4*tt}:{DD+4*tt+3}], v[20:23], v[{BD+4*tt}:{BD+4*tt+3}], 0")
        a("s_lshl_b32 s27, s24, 11"); a(f"s_add_u32 s27, s27, {WS_FFO}")
        a("s_lshl_b32 s28, s3, 8"); a("s_add_u32 s27, s27, s28")
        a("v_add_u32 v38, s27, v38")
        self.nop(6)
        self.select4(16, DD, DD+4, DD+8, DD+12)
        a("global_store_dword v38, v16, s[20:21] sc1")
        self.stamp(6)
        a("s_branch L_exit")

    def layernorm(self, X, T, U, OUT):
        a = self.a
        a(f"v_readfirstlane_b32 s34, v{X}")
        a("v_cmp_gt_u32 vcc, 56, v1")
        self.nop(1)
        for e in range(8): a(f"v_subrev_f32 v{T+e}, s34, v{X+e}")
        for e in range(8): a(f"v_cndmask_b32 v{T+e}, 0, v{T+e}, vcc")
        a(f"v_add_f32 v{U}, v{T}, v{T+1}"); a(f"v_mul_f32 v{U+1}, v{T}, v{T}")
        a(f"v_fma_f32 v{U+1}, v{T+1}, v{T+1}, v{U+1}")
        for e in range(2, 8):
            a(f"v_add_f32 v{U}, v{U}, v{T+e}"); a(f"v_fma_f32 v{U+1}, v{T+e}, v{T+e}, v{U+1}")
        self.wave_allreduce("v_add_f32", [U, U+1], [U+2, U+3])
        a(f"s_mov_b32 s35, {hexf(1.0/448)}")
        a(f"v_mul_f32 v{U}, s35, v{U}"); a(f"v_mul_f32 v{U+1}, s35, v{U+1}")
        a(f"v_fma_f32 v{U+1}, -v{U}, v{U}, v{U+1}")
        a(f"v_max_f32 v{U+1}, 0, v{U+1}")
        a(f"v_add_f32 v{U}, s34, v{U}")
        self.round_bf16_pair(U+2, U, U+1, U, U+1)
        a(f"v_add_f32 v{U+1}, {hexf(1e-5)}, v{U+1}")
        a(f"v_cvt_pk_bf16_f32 v{U+1}, v{U+1}, v{U+1}"); a(f"v_and_b32 v{U+1}, 0xffff0000, v{U+1}")
        a(f"v_sqrt_f32 v{U+1}, v{U+1}")
        self.nop(1)
        a(f"v_cvt_pk_bf16_f32 v{U+1}, v{U+1}, v{U+1}"); a(f"v_and_b32 v{U+1}, 0xffff0000, v{U+1}")
        a(f"v_rcp_f32 v{U+2}, v{U+1}")
        for e in range(8): a(f"v_sub_f32 v{T+e}, v{X+e}, v{U}")
        for e in range(4): self.round_bf16_pair(U+3, T+2*e, T+2*e+1, T+2*e, T+2*e+1)
        for e in range(8):
            a(f"v_mul_f32 v{U+4}, v{T+e}, v{U+2}")
            a(f"v_fma_f32 v{T+e}, -v{U+4}, v{U+1}, v{T+e}")
            a(f"v_fma_f32 v{T+e}, v{T+e}, v{U+2}, v{U+4}")
        for e in range(4): a(f"v_cvt_pk_bf16_f32 v{OUT+e}, v{T+2*e}, v{T+2*e+1}")

    def gen_fin(self):
        a, L, c = self.a, self.L, self.c
        c("================ final reduce ================")
        L("L_fin")
        a("s_load_dwordx2 s[36:37], s[0:1], 72")
        a("v_lshrrev_b32 v2, 4, v1")
        a("v_and_b32 v3, 15, v1")
        a("s_lshl_b32 s24, s3, 2"); a("v_add_u32 v4, s24, v2")
        a("v_lshlrev_b32 v4, 11, v4"); a("v_lshl_add_u32 v4, v3, 4, v4")
        a("s_lshl_b32 s25, s22, 8"); a("v_add_u32 v4, s25, v4")
        a(f"v_add_u32 v5, {WS_T1O}, v4"); a(f"v_add_u32 v6, {WS_FFO}, v4"); a(f"v_add_u32 v7, {32*2048}, v6")
        a("v_bfrev_b32 v8, v2"); a("v_lshrrev_b32 v8, 30, v8")
        a("v_lshl_add_u32 v8, v3, 2, v8"); a("v_lshlrev_b32 v8, 2, v8")
        a("s_lshl_b32 s26, s3, 8"); a(f"s_add_u32 s26, s26, {L_ACC}"); a("v_add_u32 v8, s26, v8")
        def red(r):
            self.nop(2)
            a(f"v_permlane32_swap_b32 v{r}, v{r+1}"); a(f"v_permlane32_swap_b32 v{r+2}, v{r+3}")
            self.nop(1)
            a(f"v_add_f32 v{r}, v{r}, v{r+1}"); a(f"v_add_f32 v{r+2}, v{r+2}, v{r+3}")
            self.nop(2)
            a(f"v_permlane16_swap_b32 v{r}, v{r+2}")
            self.nop(1)
            a(f"v_add_f32 v{r}, v{r}, v{r+2}")
        def loads1(): a("global_load_dwordx4 v[12:15], v5, s[20:21] sc1")
        self.poll_sentinel("fin1", loads1, [12, 13, 14, 15], 10)
        red(12)
        a("ds_write_b32 v8, v12")
        a("s_cmp_lt_u32 s3, 6"); a("s_cbranch_scc1 L_fin_two")
        def loads2a(): a("global_load_dwordx4 v[12:15], v6, s[20:21] sc1")
        self.poll_sentinel("fin2a", loads2a, [12, 13, 14, 15], 10)
        a("s_branch L_fin_red")
        L("L_fin_two")
        def loads2b():
            a("global_load_dwordx4 v[12:15], v6, s[20:21] sc1")
            a("global_load_dwordx4 v[16:19], v7, s[20:21] sc1")
        self.poll_sentinel("fin2b", loads2b, list(range(12, 20)), 10)
        for e in range(4): a(f"v_add_f32 v{12+e}, v{12+e}, v{16+e}")
        L("L_fin_red")
        self.stamp(5)
        red(12)
        a("ds_write_b32 v8, v12 offset:2048")
        a("s_waitcnt lgkmcnt(0)")
        a("s_barrier")
        a("s_cmp_lg_u32 s3, 0"); a("s_cbranch_scc1 L_exit")
        a("v_lshlrev_b32 v9, 2, v1"); a(f"v_add_u32 v9, {L_ACC}, v9")
        for w in range(8): a(f"ds_read_b32 v{16+w}, v9 offset:{w*256}")
        a("s_waitcnt lgkmcnt(0)")
        for w in range(8): a(f"ds_read_b32 v{24+w}, v9 offset:{2048+w*256}")
        a("s_lshl_b32 s25, s22, 7"); a(f"s_add_u32 s25, s25, {L_XR}")
        a("v_lshlrev_b32 v10, 1, v1"); a("v_add_u32 v11, s25, v10")
        a("ds_read_u16 v32, v11")
        for w in range(1, 8): a(f"v_add_f32 v16, v16, v{16+w}")
        a("s_waitcnt lgkmcnt(0)")
        for w in range(1, 8): a(f"v_add_f32 v24, v24, v{24+w}")
        a("v_lshlrev_b32 v32, 16, v32")
        self.round_bf16_pair(33, 16, 24, 16, 24)
        a("v_add_f32 v16, v16, v32")
        a("v_cvt_pk_bf16_f32 v33, v16, v16"); a("v_and_b32 v16, 0xffff0000, v33")
        a("v_add_f32 v16, v16, v24")
        a("v_cvt_pk_bf16_f32 v33, v16, v16")
        a("s_lshl_b32 s25, s22, 7"); a("v_add_u32 v10, s25, v10")
        a("global_store_short v10, v33, s[36:37]")
        a("s_cmp_lg_u32 s22, 0"); a("s_cbranch_scc1 L_fin_end")
        a(f"v_mov_b32 v34, {L_XN + 1020}")
        a("ds_read_b32 v35, v34")
        a("s_waitcnt lgkmcnt(0)")
        a("v_mov_b32 v34, 0")
        a("s_mov_b64 exec, 1")
        a("global_store_dword v34, v35, s[20:21] sc1")
        a("s_mov_b64 exec, -1")
        L("L_fin_end")
        self.stamp(6)
        a("s_branch L_exit")

    def gen_helper(self):
        a, L, c = self.a, self.L, self.c
        c("================ helper wave ================")
        L("L_helper")
        a("s_setprio 3")
        a("s_load_dwordx2 s[56:57], s[0:1], 0")
        a("s_load_dwordx4 s[8:11], s[0:1], 24")
        a("s_load_dwordx4 s[12:15], s[0:1], 48")
        a("s_load_dwordx2 s[16:17], s[0:1], 64")
        a("s_and_b32 s24, s23, 7"); a("s_lshr_b32 s25, s23, 3")
        a("s_mul_i32 s26, s25, 112")
        a("s_lshl_b32 s27, s22, 3"); a("s_add_u32 s27, s27, s24"); a("s_lshl_b32 s27, s27, 7")
        a("v_lshrrev_b32 v2, 3, v1"); a("v_add_u32 v3, s26, v2"); a("v_lshlrev_b32 v3, 13, v3")
        a("v_and_b32 v4, 7, v1"); a("v_lshl_add_u32 v3, v4, 4, v3"); a("v_add_u32 v3, s27, v3")
        a("v_lshlrev_b32 v5, 4, v1")
        a("v_mov_b32 v6, 0")
        a("s_waitcnt lgkmcnt(0)")
        a("s_mov_b32 s40, s56"); a("s_mov_b32 s41, s57"); a("s_mov_b32 s42, 896"); a("s_mov_b32 s43, 0x20000")
        a("s_mov_b32 s44, s8"); a("s_mov_b32 s45, s9"); a(f"s_mov_b32 s46, {448*4096*2}"); a("s_mov_b32 s47, 0x20000")
        a("global_load_dword v7, v6, s[20:21] sc1")
        a("buffer_load_dwordx4 v[8:11], v5, s[40:43], 0 offen")
        WQ = 64
        for i in range(14):
            a(f"s_mov_b32 s28, {i*8*8192}")
            a(f"buffer_load_dwordx4 v[{WQ+4*i}:{WQ+4*i+3}], v3, s[44:47], s28 offen{self.ntw}")
        a("s_barrier")
        a("s_waitcnt vmcnt(14)")
        self.stamp(0)
        a(f"v_add_u32 v18, {L_XR}, v5")
        a("v_cmp_gt_u32 vcc, 56, v1")
        a("s_and_saveexec_b64 s[32:33], vcc")
        a("ds_write_b128 v18, v[8:11]")
        a("s_mov_b64 exec, s[32:33]")
        for e in range(4):
            a(f"v_lshlrev_b32 v{20+2*e}, 16, v{8+e}"); a(f"v_and_b32 v{21+2*e}, 0xffff0000, v{8+e}")
        a("v_readfirstlane_b32 s36, v7")
        a("s_mul_i32 s36, s36, 0x9E3779B1"); a("s_add_u32 s36, s36, 0x7F4A7C15")
        self.layernorm(20, 28, 36, 44)
        a(f"v_add_u32 v18, {L_XN}, v5")
        a("v_cmp_gt_u32 vcc, 56, v1")
        a("s_and_saveexec_b64 s[32:33], vcc")
        a("ds_write_b128 v18, v[44:47]")
        a("s_mov_b64 exec, s[32:33]")
        a("v_mov_b32 v19, s36"); a(f"v_mov_b32 v18, {L_XN+1020}")
        a("ds_write_b32 v18, v19")
        a("v_add_u32 v18, s26, v2"); a("v_lshlrev_b32 v18, 1, v18"); a(f"v_add_u32 v18, {L_XN}, v18")
        a("s_waitcnt lgkmcnt(0)")
        for i in range(14): a(f"ds_read_u16 v{48+i}, v18 offset:{i*16}")
        for j in range(8): a(f"v_mov_b32 v{28+j}, 0")
        a("s_waitcnt vmcnt(0) lgkmcnt(0)")
        self.stamp(1)
        for i in range(14):
            a(f"v_lshlrev_b32 v62, 16, v{48+i}")
            for w in range(4):
                a(f"v_dot2c_f32_bf16 v{28+2*w}, v{WQ+4*i+w}, v{48+i}")
                a(f"v_dot2c_f32_bf16 v{28+2*w+1}, v{WQ+4*i+w}, v62")
        self.nop(3)
        for j in range(4): a(f"v_permlane32_swap_b32 v{28+j}, v{32+j}")
        self.nop(1)
        for j in range(4): a(f"v_add_f32 v{28+j}, v{28+j}, v{32+j}")
        self.nop(2)
        for j in range(2): a(f"v_permlane16_swap_b32 v{28+j}, v{30+j}")
        self.nop(1)
        for j in range(2): a(f"v_add_f32 v{28+j}, v{28+j}, v{30+j}")
        self.nop(2)
        for j in range(2): a(f"v_add_f32_dpp v{28+j}, v{28+j}, v{28+j} row_ror:8 row_mask:0xf bank_mask:0xf")
        a("v_mov_b32 v30, v29"); a("v_mov_b32 v29, s36"); a("v_mov_b32 v31, s36")
        a("v_lshlrev_b32 v32, 6, v4")
        a("v_bfe_u32 v33, v1, 5, 1"); a("v_lshl_add_u32 v32, v33, 5, v32")
        a("v_bfe_u32 v33, v1, 4, 1"); a("v_lshl_add_u32 v32, v33, 4, v32")
        a("s_lshl_b32 s28, s2, 9"); a(f"s_add_u32 s28, s28, {WS_QG}"); a("v_add_u32 v32, s28, v32")
        a("v_and_b32 v33, 8, v1"); a("v_cmp_eq_u32 vcc, 0, v33")
        a("s_and_saveexec_b64 s[32:33], vcc")
        a("global_store_dwordx4 v32, v[28:31], s[20:21] sc1")
        a("s_mov_b64 exec, s[32:33]")
        self.stamp(2)
        a("s_lshl_b32 s28, s22, 14"); a(f"s_add_u32 s28, s28, {WS_QG}"); a("v_add_u32 v34, s28, v5")
        a("v_mov_b32 v35, s36")
        lab = self.newlabel("qpoll")
        a(f"s_mov_b32 s37, {self.spin_max}")
        L(lab)
        for j in range(16):
            if j % 4 == 0 and j > 0: a("v_add_u32 v34, 0x1000, v34")
            a(f"global_load_dwordx4 v[{WQ+4*j}:{WQ+4*j+3}], v34, s[20:21] offset:{(j%4)*1024} sc1")
        a("v_subrev_u32 v34, 0x3000, v34")
        a("s_waitcnt vmcnt(0)")
        a("v_mov_b32 v36, 0")
        for j in range(16):
            a(f"v_bitop3_b32 v36, v36, v{WQ+4*j+1}, v35 bitop3:0xf6")
            a(f"v_bitop3_b32 v36, v36, v{WQ+4*j+3}, v35 bitop3:0xf6")
        a("v_cmp_ne_u32 vcc, 0, v36")
        done = self.newlabel("qdone")
        a(f"s_cbranch_vccz {done}")
        a("s_sub_u32 s37, s37, 1"); a("s_cmp_lg_u32 s37, 0"); a(f"s_cbranch_scc1 {lab}")
        L(done)
        a(f"v_lshlrev_b32 v37, 2, v1"); a(f"v_add_u32 v37, {L_Q}, v37")
        for qd in range(4):
            for e in range(2):
                r0 = WQ + 4 * qd + 2 * e
                a(f"v_add_f32 v{r0}, v{r0}, v{r0+16}"); a(f"v_add_f32 v{r0}, v{r0}, v{r0+32}"); a(f"v_add_f32 v{r0}, v{r0}, v{r0+48}")
            a(f"v_cvt_pk_bf16_f32 v38, v{WQ+4*qd}, v{WQ+4*qd+2}")
            a(f"ds_write_b32 v37, v38 offset:{qd*256}")
        a("s_waitcnt lgkmcnt(0)")
        a("s_barrier")
        self.stamp(3)
        a("v_mov_b32 v12, -1"); a("v_mov_b32 v13, -1"); a("v_mov_b32 v14, -1"); a("v_mov_b32 v15, -1")
        a("s_lshl_b32 s28, s2, 11"); a(f"s_add_u32 s28, s28, {WS_H1}"); a("v_add_u32 v16, s28, v5")
        a("global_store_dwordx4 v16, v[12:15], s[20:21] sc1")
        a("global_store_dwordx4 v16, v[12:15], s[20:21] offset:1024 sc1")
        a("s_lshl_b32 s28, s2, 4"); a(f"s_add_u32 s28, s28, {WS_ML}"); a("v_mov_b32 v17, s28")
        a("s_mov_b64 exec, 1")
        a("global_store_dwordx4 v17, v[12:15], s[20:21] sc1")
        a("s_mov_b64 exec, -1")
        a("s_mov_b32 s29, 0")
        a("s_bitcmp1_b32 s23, 0"); a("s_cbranch_scc1 L_h_role_done")
        a("s_cmp_lt_u32 s23, 8"); a("s_cbranch_scc0 L_h_not_t1")
        a("s_mov_b32 s29, 1")
        a("s_lshr_b32 s30, s23, 1"); a("s_lshl_b32 s31, s22, 2"); a("s_add_u32 s30, s30, s31")
        a("s_lshl_b32 s31, s30, 11"); a(f"s_add_u32 s31, s31, {WS_T1O}")
        a("s_branch L_h_reset_role")
        L("L_h_not_t1")
        a("s_cmp_lt_u32 s23, 22"); a("s_cbranch_scc0 L_h_not_ffn")
        a("s_mov_b32 s29, 2")
        a("s_sub_u32 s30, s23, 8"); a("s_lshr_b32 s30, s30, 1"); a("s_lshl_b32 s30, s30, 3"); a("s_add_u32 s30, s30, s22")
        a("s_lshl_b32 s31, s30, 11"); a(f"s_add_u32 s31, s31, {WS_FFO}")
        L("L_h_reset_role")
        a("v_add_u32 v16, s31, v5")
        a("global_store_dwordx4 v16, v[12:15], s[20:21] sc1")
        a("global_store_dwordx4 v16, v[12:15], s[20:21] offset:1024 sc1")
        a("s_branch L_h_role_done")
        L("L_h_not_ffn")
        a("s_cmp_eq_u32 s23, 22"); a("s_cbranch_scc0 L_h_role_done")
        a("s_cmp_lt_u32 s22, 7"); a("s_cbranch_scc0 L_h_role_done")
        a("s_mov_b32 s29, 3")
        L("L_h_role_done")
        a("s_waitcnt vmcnt(0)")
        a("s_lshl_b32 s28, s2, 2"); a(f"s_add_u32 s28, s28, {WS_TOK}"); a("v_mov_b32 v17, s28"); a("v_mov_b32 v18, s36")
        a("s_mov_b64 exec, 1")
        a("global_store_dword v17, v18, s[20:21] sc1")
        a("s_mov_b64 exec, -1")
        a("s_cmp_eq_u32 s29, 0"); a("s_cbranch_scc1 L_exit")
        a("s_cmp_eq_u32 s29, 3"); a("s_cbranch_scc1 L_h_tok_fin")
        a("s_cmp_eq_u32 s29, 2"); a("s_cbranch_scc1 L_h_ffn")
        a("s_mov_b32 s44, s10"); a("s_mov_b32 s45, s11"); a(f"s_mov_b32 s46, {4096*448*2}"); a("s_mov_b32 s47, 0x20000")
        a("s_mul_i32 s38, s30, 128*896")
        a("s_mov_b32 s39, 0")
        a("s_mov_b32 s48, 128")
        self.dma_rows("s[44:47]")
        a("v_and_b32 v20, 31, v1"); a("s_lshl_b32 s28, s22, 5"); a("v_add_u32 v20, s28, v20")
        a(f"v_lshlrev_b32 v21, 2, v20"); a(f"v_add_u32 v21, {WS_TOK}, v21")
        self.poll_tag("tok0", 21)
        a("s_branch L_h_end")
        L("L_h_ffn")
        a("v_lshrrev_b32 v20, 2, v1"); a("v_bfe_u32 v21, v1, 4, 1"); a("v_lshlrev_b32 v21, 1, v21")
        a("v_and_b32 v22, 3, v1"); a("v_xor_b32 v22, v22, v21")
        a("v_mul_u32_u24 v20, 3584, v20"); a("v_lshl_add_u32 v20, v22, 4, v20")
        for m, (plo, base) in enumerate(((12, L_GATE), (14, L_UP))):
            a(f"s_mov_b32 s44, s{plo}"); a(f"s_mov_b32 s45, s{plo+1}"); a(f"s_mov_b32 s46, {448*1792*2}"); a("s_mov_b32 s47, 0x20000")
            a("s_lshl_b32 s38, s30, 6")
            a(f"s_mov_b32 s39, {base}")
            a("s_mov_b32 s48, 28")
            lab = self.newlabel("gu")
            L(lab)
            a("s_mov_b32 m0, s39")
            a("s_add_u32 s39, s39, 1024")
            a(f"buffer_load_dwordx4 v20, s[44:47], s38 offen{self.ntw} lds")
            a(f"s_add_u32 s38, s38, {16*3584}")
            a("s_waitcnt vmcnt(40)")
            a("s_sub_u32 s48, s48, 1"); a("s_cmp_lg_u32 s48, 0"); a(f"s_cbranch_scc1 {lab}")
        a("s_mov_b32 s44, s16"); a("s_mov_b32 s45, s17"); a(f"s_mov_b32 s46, {1792*448*2}"); a("s_mov_b32 s47, 0x20000")
        a("s_mul_i32 s38, s30, 32*896")
        a(f"s_mov_b32 s39, {L_DOWN}")
        a("s_mov_b32 s48, 32")
        self.dma_rows("s[44:47]")
        L("L_h_tok_fin")
        a("v_and_b32 v20, 31, v1")
        a("v_lshrrev_b32 v21, 2, v20"); a("v_lshlrev_b32 v21, 5, v21"); a("v_and_b32 v22, 3, v20"); a("v_lshl_add_u32 v21, v22, 1, v21")
        a("v_lshlrev_b32 v21, 2, v21"); a(f"v_add_u32 v21, {WS_TOK}, v21")
        self.poll_tag("tok1", 21)
        a("s_cmp_eq_u32 s29, 3"); a("s_cbranch_scc0 L_h_end")
        a("v_min_u32 v20, 55, v1")
        a("v_and_b32 v21, 7, v20"); a("v_lshlrev_b32 v21, 5, v21"); a("v_lshrrev_b32 v22, 3, v20"); a("v_lshl_add_u32 v21, v22, 1, v21")
        a("v_add_u32 v21, 8, v21"); a("v_lshlrev_b32 v21, 2, v21"); a(f"v_add_u32 v21, {WS_TOK}, v21")
        self.poll_tag("tok2", 21)
        L("L_h_end")
        a("s_waitcnt vmcnt(0)")
        self.stamp(4)
        a("s_branch L_exit")

    def dma_rows(self, srd):
        a = self.a
        a("v_cmp_gt_u32 vcc, 56, v1")
        a("s_and_saveexec_b64 s[32:33], vcc")
        lab = self.newlabel("rows")
        self.L(lab)
        a("s_mov_b32 m0, s39")
        a(f"s_add_u32 s39, s39, {WPITCH}")
        a(f"buffer_load_dwordx4 v5, {srd}, s38 offen{self.ntw} lds")
        a("s_add_u32 s38, s38, 896")
        a("s_waitcnt vmcnt(40)")
        a("s_sub_u32 s48, s48, 1"); a("s_cmp_lg_u32 s48, 0"); a(f"s_cbranch_scc1 {lab}")
        a("s_mov_b64 exec, s[32:33]")

    def poll_tag(self, name, addr):
        a = self.a
        lab = self.newlabel(name); done = self.newlabel(name + "d")
        a(f"s_mov_b32 s37, {self.spin_max}")
        self.L(lab)
        a(f"global_load_dword v23, v{addr}, s[20:21] sc1")
        a("s_waitcnt vmcnt(0)")
        a("v_cmp_ne_u32 vcc, s36, v23")
        a(f"s_cbranch_vccz {done}")
        a("s_sleep 8")
        a("s_sub_u32 s37, s37, 1"); a("s_cmp_lg_u32 s37, 0"); a(f"s_cbranch_scc1 {lab}")
        self.L(done)

def emit(path, **kw):
    g = Gen(**kw)
    body = g.build()
    hdr = open("cdna_kernels/" + KNAME[:-7] + ".s.ref").read().split("\n")
    top = [l for l in hdr if l.startswith(";") and "@launch" not in l and "Override launch" not in l and "grid=ceil" not in l]
    top = top[:15]
    out = top + [f"; @launch grid=(256,1,1) block=(576,1,1) lds={LDS_TOTAL}",
                 '.amdgcn_target "amdgcn-amd-amdhsa--gfx950"', ".text", f".globl {KNAME}", ".p2align 8",
                 f".type {KNAME},@function", f"{KNAME}:"]
    out += body
    out += ['.section .rodata,"a"', ".p2align 6", f".amdhsa_kernel {KNAME}",
            "  .amdhsa_next_free_vgpr 168", "  .amdhsa_next_free_sgpr 102", "  .amdhsa_accum_offset 168",
            "  .amdhsa_group_segment_fixed_size 0", "  .amdhsa_kernarg_size 96", "  .amdhsa_user_sgpr_count 2",
            "  .amdhsa_user_sgpr_kernarg_segment_ptr 1", "  .amdhsa_system_sgpr_workgroup_id_x 1",
            "  .amdhsa_float_denorm_mode_32 3", "  .amdhsa_float_denorm_mode_16_64 3",
            ".end_amdhsa_kernel", ""]
    open(path, "w").write("\n".join(out))

if __name__ == "__main__":
    import argparse
    ap = argparse.ArgumentParser()
    ap.add_argument("-o", default="main.s")
    ap.add_argument("--stamps", type=int, default=0)
    ap.add_argument("-D", type=int, default=16)
    ap.add_argument("-R", type=int, default=20)
    ap.add_argument("--D0", type=int, default=6)
    args = ap.parse_args()
    emit(args.o, D=args.D, R=args.R, D0=args.D0, dbg_stamps=args.stamps)
    print("LDS", LDS_TOTAL)
```

```python
import sys

KNAME = "sequential_preLN__gqa_block_cached__geglu_ffn__decode_kernel"

WS_G   = 0x0
WS_QG  = 0x1000
WS_TOK = 0x30000
WS_CNT = 0x38000
WS_H1  = 0x40000
WS_ML  = 0xC0000
WS_T1O = 0xC4000
WS_FFO = 0xD8000
WS_DBG = 0x100000
WS_SIZE_USED = 0x200000

WPITCH = 928
L_W    = 0
L_GATE = 0
L_UP   = 28672
L_DOWN = 57344
L_Q    = 118784
L_XR   = L_Q + 1024
L_XN   = L_XR + 1024
L_M    = L_XN + 1024
L_L    = L_M + 64
L_SCR  = L_M + 256
L_ACC  = L_SCR
L_PRIV = L_SCR + 16384
LDS_TOTAL = L_SCR + 32768

BLOCK = 768
SENT = 0xFFFFFFFF
LOG2E = 1.4426950408889634
import struct
def f2u(x): return struct.unpack("<I", struct.pack("<f", x))[0]
def hexf(x): return "0x%08x" % f2u(x)

class Gen:
    def __init__(self, S=5, NS=4, TH=3, taper=0, code_kb=16, exp="", dbg_stamps=False, nt_stream=True, nt_w=True, spin_max=20000):
        self.o = []
        self.S = S
        self.NS = NS
        self.taper = taper
        self.TH = TH
        self.exp = exp
        self.code_kb = code_kb
        self.stamps = dbg_stamps
        self.nt = " nt" if nt_stream else ""
        self.ntw = " nt" if nt_w else ""
        self.spin_max = spin_max
        self.lab = 0
    def a(self, s): self.o.append("  " + s)
    def L(self, s): self.o.append(s + ":")
    def c(self, s): self.o.append("  ; " + s)
    def newlabel(self, base):
        self.lab += 1
        return f"L_{base}_{self.lab}"
    def nop(self, n):
        while n > 0:
            k = min(n, 16); self.a(f"s_nop {k-1}"); n -= k

    def row_allreduce(self, op, regs):
        for sh in (8, 4, 2, 1):
            if len(regs) < 3: self.nop(2 - (len(regs) - 1) if len(regs) > 0 else 2)
            for r in regs:
                self.a(f"{op}_dpp v{r}, v{r}, v{r} row_ror:{sh} row_mask:0xf bank_mask:0xf")
    def swap_allreduce(self, op, regs, tmps, kind):
        self.nop(1)
        for r, t in zip(regs, tmps): self.a(f"v_mov_b32 v{t}, v{r}")
        self.nop(2)
        for r, t in zip(regs, tmps): self.a(f"v_permlane{kind}_swap_b32 v{r}, v{t}")
        self.nop(1)
        for r, t in zip(regs, tmps): self.a(f"{op} v{r}, v{r}, v{t}")
    def wave_allreduce(self, op, regs, tmps, full=True):
        self.nop(2)
        self.row_allreduce(op, regs)
        self.swap_allreduce(op, regs, tmps, 16)
        if full: self.swap_allreduce(op, regs, tmps, 32)

    def stamp(self, idx):
        if not self.stamps: return
        self.a(f"s_memrealtime s[{70+2*idx}:{71+2*idx}]")
    def stamp_init(self):
        if not self.stamps: return
        for i in range(8): self.a(f"s_mov_b32 s{70+2*i}, 0")
    def stamp_flush(self):
        if not self.stamps: return
        a = self.a
        if self.stamps == 2:
            a("s_memrealtime s[92:93]")
            a("s_load_dwordx2 s[94:95], s[0:1], 80")
            a("s_waitcnt lgkmcnt(0)")
            a("s_lshl_b32 s98, s2, 4"); a("s_add_u32 s98, s98, s3")
            a("s_mov_b32 s99, 0")
            a(f"s_cmp_eq_u32 s98, {22*16}"); a("s_cbranch_scc1 L_dbgw")
            a("s_mov_b32 s99, 32")
            a(f"s_cmp_eq_u32 s98, {1*16+7}"); a("s_cbranch_scc0 L_end")
            self.L("L_dbgw")
            for i in range(7):
                a(f"s_sub_u32 s96, s{70+2*i}, s84"); a(f"v_mov_b32 v{8+i}, s96")
            a("s_sub_u32 s96, s92, s84"); a("v_mov_b32 v15, s96")
            a("v_mov_b32 v16, s99")
            a("s_mov_b64 exec, 1")
            a("global_store_dwordx4 v16, v[8:11], s[94:95]")
            a("global_store_dwordx4 v16, v[12:15], s[94:95] offset:16")
            return
        a("s_waitcnt lgkmcnt(0)")
        for i in range(8): a(f"v_mov_b32 v{8+i}, s{70+2*i}")
        a("s_lshl_b32 s98, s2, 9"); a("s_lshl_b32 s99, s3, 5"); a("s_add_u32 s98, s98, s99"); a(f"s_add_u32 s98, s98, {WS_DBG}")
        a("v_mov_b32 v16, s98")
        a("s_mov_b64 exec, 1")
        a("global_store_dwordx4 v16, v[8:11], s[20:21]")
        a("global_store_dwordx4 v16, v[12:15], s[20:21] offset:16")

    def build(self):
        a, L, c = self.a, self.L, self.c
        Q, KR, VR, ACC, FR, DD, ST, T = 8, 40, 72, 104, 120, 136, 140, 144
        R0, R1, PW, PR = 156, 157, 158, 159
        PT, PREG = FR, FR + 8
        c("---------------- entry ----------------")
        a("s_cmp_ge_u32 s2, 256")
        a("s_cbranch_scc1 L_end")
        self.stamp_init(); self.stamp(7)
        a("s_load_dwordx4 s[4:7], s[0:1], 8")
        a("s_load_dwordx2 s[20:21], s[0:1], 88")
        a("v_lshrrev_b32 v1, 6, v0")
        a("s_lshr_b32 s22, s2, 5")
        a("v_readfirstlane_b32 s3, v1")
        a("s_and_b32 s23, s2, 31")
        a("v_and_b32 v1, 63, v0")
        a("s_cmp_eq_u32 s3, 8")
        a("s_cbranch_scc1 L_helper")
        a("s_cmp_gt_u32 s3, 8")
        a("s_cbranch_scc1 L_support")
        c("---------------- streamer prologue ----------------")
        a("v_lshrrev_b32 v2, 3, v1")
        a("v_lshlrev_b32 v2, 9, v2")
        a("v_and_b32 v7, 7, v1")
        a("v_lshl_add_u32 v2, v7, 4, v2")
        a("v_add_u32 v5, 0x1000, v2")
        a("v_and_b32 v3, 31, v1")
        a("v_lshlrev_b32 v3, 4, v3")
        a("v_lshrrev_b32 v6, 5, v1")
        a("v_lshl_add_u32 v3, v6, 10, v3")
        a("v_add_u32 v4, 0x1000, v3")
        a("s_lshl_b32 s24, s23, 3")
        a("s_add_u32 s24, s24, s3")
        a("s_lshl_b32 s40, s24, 13")
        a("s_lshl_b32 s25, s22, 24")
        a("s_waitcnt lgkmcnt(0)")
        a("s_add_u32 s8, s4, s25"); a("s_addc_u32 s9, s5, 0"); a("s_mov_b32 s10, 0x1000000"); a("s_mov_b32 s11, 0x20000")
        a("s_add_u32 s12, s6, s25"); a("s_addc_u32 s13, s7, 0"); a("s_mov_b32 s14, 0x1000000"); a("s_mov_b32 s15, 0x20000")
        def issue_k(throttle=0):
            for i in range(8):
                cb, hf = i >> 1, i & 1
                va = "v2" if hf == 0 else "v5"
                if throttle and i >= throttle: a(f"s_waitcnt vmcnt({throttle-1})")
                a(f"buffer_load_dwordx4 v[{KR+4*i}:{KR+4*i+3}], {va}, s[8:11], s40 offen offset:{cb*128}{self.nt}")
        def issue_v(throttle=0):
            for i in range(8):
                iq, b = i >> 1, i & 1
                va = "v3" if iq < 2 else "v4"
                if throttle: a(f"s_waitcnt vmcnt({throttle-1})")
                a(f"buffer_load_dwordx4 v[{VR+4*i}:{VR+4*i+3}], {va}, s[12:15], s40 offen offset:{(iq&1)*2048 + b*512}{self.nt}")
        a("s_barrier")
        NS = self.NS
        RND = 256
        FIRST_TILE = True
        a("s_lshl_b32 s46, s22, 8"); a(f"s_add_u32 s46, s46, {WS_CNT}")
        a("s_add_u32 s46, s20, s46"); a("s_addc_u32 s47, s21, 0")
        a("s_mov_b32 s43, 1")
        a("s_mov_b32 s59, 0")
        a("s_lshr_b32 s48, s40, 13")
        a("s_mov_b32 s50, 0xffff0000"); a("s_mov_b32 s51, 0")
        a("s_mov_b32 s52, 0"); a("s_mov_b32 s53, 0x0000ffff")
        a("s_mov_b32 s54, 0"); a("s_mov_b32 s55, 0xffff0000")
        a("s_mov_b32 s57, 0x05040100"); a("s_mov_b32 s58, 0x07060302")
        a(f"s_mov_b32 s56, {hexf(LOG2E/16)}")
        a("s_mov_b32 s16, s20"); a("s_mov_b32 s17, s21"); a(f"s_mov_b32 s18, {WS_SIZE_USED}"); a("s_mov_b32 s19, 0x20000")
        a("s_lshl_b32 s26, s3, 12"); a(f"s_add_u32 s26, s26, {L_SCR}")
        a(f"v_bfe_u32 v{PW}, v1, 3, 1"); a(f"v_lshlrev_b32 v{PW}, 5, v{PW}")
        a(f"v_bfe_u32 v{T}, v1, 1, 1"); a(f"v_lshl_add_u32 v{PW}, v{T}, 4, v{PW}")
        a(f"v_bfe_u32 v{T}, v1, 2, 1"); a(f"v_lshl_add_u32 v{PW}, v{T}, 3, v{PW}")
        a(f"v_and_b32 v{T}, 1, v1"); a(f"v_lshl_add_u32 v{PW}, v{T}, 1, v{PW}")
        a(f"v_add_u32 v{PW}, s26, v{PW}")
        a(f"v_lshlrev_b32 v{PR}, 4, v6"); a(f"v_add_u32 v{PR}, s26, v{PR}")
        a(f"v_lshrrev_b32 v{T}, 4, v1"); a("v_and_b32 v6, 7, v1"); a(f"v_xor_b32 v6, v6, v{T}")
        a("v_lshlrev_b32 v6, 4, v6")
        a(f"v_lshrrev_b32 v{T+1}, 3, v1"); a(f"v_lshl_add_u32 v6, v{T+1}, 7, v6"); a("v_add_u32 v6, s26, v6")
        a("v_xor_b32 v7, 64, v6"); a("v_add_u32 v7, 0x400, v7")
        a(f"v_bfe_u32 v{R0}, v1, 1, 3"); a(f"v_xor_b32 v{R0}, v{R0}, v{T}")
        a(f"v_lshlrev_b32 v{R0}, 4, v{R0}")
        a(f"v_and_b32 v{T+1}, 15, v1"); a(f"v_lshl_add_u32 v{R0}, v{T+1}, 7, v{R0}"); a(f"v_add_u32 v{R0}, s26, v{R0}")
        a(f"v_xor_b32 v{R1}, 64, v{R0}")
        a(f"v_and_b32 v{T+1}, 1, v1"); a(f"v_lshlrev_b32 v{T+1}, 9, v{T+1}")
        a(f"v_lshl_add_u32 v{T+1}, v{T}, 4, v{T+1}"); a(f"v_add_u32 v{T+1}, {L_Q}, v{T+1}")
        a(f"v_mov_b32 v{ST}, 0xff800000"); a(f"v_mov_b32 v{ST+1}, 0xff800000"); a(f"v_mov_b32 v{ST+2}, 0"); a(f"v_mov_b32 v{ST+3}, 0")
        for j in range(16): a(f"v_mov_b32 v{ACC+j}, 0")
        issue_k(self.TH); issue_v(self.TH)
        self.stamp(0)
        a("s_barrier")
        self.stamp(1)
        for st in range(8):
            a(f"ds_read_b128 v[{Q+4*st}:{Q+4*st+3}], v{T+1} offset:{st*64}")
        a("s_waitcnt lgkmcnt(0)")
        c("---------------- tile loop ----------------")
        L("L_proc")
        a(f"s_cmp_lt_u32 s43, {self.S}"); a("s_cbranch_scc1 L_static")
        a("s_mov_b32 s41, 0x10000")
        a(f"s_cmp_ge_u32 s3, {NS}"); a("s_cbranch_scc1 L_claimed")
        if self.taper:
            a("s_cmp_lt_u32 s3, 2"); a("s_cbranch_scc1 L_doclaim")
            a(f"s_cmp_ge_u32 s59, {2048 - self.taper}"); a("s_cbranch_scc1 L_claimed")
            L("L_doclaim")
        a("s_mov_b32 s41, 1")
        a("s_atomic_add s41, s[46:47], 0x0 glc")
        a("s_branch L_claimed")
        L("L_static")
        a(f"s_add_u32 s48, s48, {RND}")
        a(f"s_sub_u32 s41, s48, {self.S * RND}")
        L("L_claimed")
        a("s_add_u32 s43, s43, 1")
        def kmfma(b):
            for e in range(2):
                st = 2 * b + e
                f = FR + 8 * (b & 1) + 4 * e
                src_c = "0" if st == 0 else f"v[{DD}:{DD+3}]"
                a(f"v_mfma_f32_16x16x32_bf16 v[{DD}:{DD+3}], v[{Q+4*st}:{Q+4*st+3}], v[{f}:{f+3}], {src_c}")
        for b in range(4):
            a(f"s_waitcnt vmcnt({14 - 2*b})")
            buf = (b & 1) * 2048
            if "nok" in self.exp: continue
            a(f"ds_write_b128 v6, v[{KR+8*b}:{KR+8*b+3}] offset:{buf}")
            a(f"ds_write_b128 v7, v[{KR+8*b+4}:{KR+8*b+7}] offset:{buf}")
            f = FR + 8 * (b & 1)
            a(f"ds_read_b128 v[{f}:{f+3}], v{R0} offset:{buf}")
            a(f"ds_read_b128 v[{f+4}:{f+7}], v{R1} offset:{buf}")
            if b > 0:
                a("s_waitcnt lgkmcnt(4)")
                kmfma(b - 1)
        a("s_waitcnt lgkmcnt(0)")
        kmfma(3)
        a(f"s_add_u32 s41, s41, {self.S * RND}")
        a("s_cmp_lt_u32 s41, 2048")
        a("s_cselect_b32 s10, 0x1000000, 0"); a("s_cselect_b32 s14, 0x1000000, 0"); a("s_cselect_b32 s40, s41, 0")
        a("s_mov_b32 s59, s41")
        a("s_lshl_b32 s40, s40, 13")
        issue_k()
        a(f"v_cvt_pk_bf16_f32 v{T}, v{DD}, v{DD+1}")
        a(f"v_lshlrev_b32 v{T+1}, 16, v{T}"); a(f"v_and_b32 v{T+2}, 0xffff0000, v{T}")
        a(f"v_mov_b32 v{T+3}, v{T+1}"); a(f"v_mov_b32 v{T+4}, v{T+2}")
        self.nop(1)
        self.row_allreduce("v_max_f32", [T+3, T+4])
        a(f"v_max_f32 v{T+3}, v{T+3}, v{ST}"); a(f"v_max_f32 v{T+4}, v{T+4}, v{ST+1}")
        a(f"v_cmp_gt_f32 vcc, v{T+3}, v{ST}")
        a(f"v_cmp_gt_f32 s[44:45], v{T+4}, v{ST+1}")
        a("s_or_b64 vcc, vcc, s[44:45]")
        a("s_cbranch_vccz L_norescale")
        a(f"v_sub_f32 v{T+5}, v{ST}, v{T+3}"); a(f"v_sub_f32 v{T+6}, v{ST+1}, v{T+4}")
        a(f"v_mul_f32 v{T+5}, s56, v{T+5}"); a(f"v_mul_f32 v{T+6}, s56, v{T+6}")
        a(f"v_exp_f32 v{T+5}, v{T+5}"); a(f"v_exp_f32 v{T+6}, v{T+6}")
        a(f"v_mov_b32 v{ST}, v{T+3}"); a(f"v_mov_b32 v{ST+1}, v{T+4}")
        for j in range(8):
            a(f"v_mul_f32 v{ACC+j}, v{T+5}, v{ACC+j}"); a(f"v_mul_f32 v{ACC+8+j}, v{T+6}, v{ACC+8+j}")
        a(f"v_mul_f32 v{ST+2}, v{T+5}, v{ST+2}"); a(f"v_mul_f32 v{ST+3}, v{T+6}, v{ST+3}")
        L("L_norescale")
        a(f"v_mul_f32 v{T+5}, s56, v{ST}"); a(f"v_mul_f32 v{T+6}, s56, v{ST+1}")
        a(f"v_fma_f32 v{T+1}, v{T+1}, s56, -v{T+5}"); a(f"v_fma_f32 v{T+2}, v{T+2}, s56, -v{T+6}")
        a(f"v_exp_f32 v{T+1}, v{T+1}"); a(f"v_exp_f32 v{T+2}, v{T+2}")
        self.nop(1)
        a(f"v_cvt_pk_bf16_f32 v{T}, v{T+1}, v{T+2}")
        a(f"v_add_f32 v{ST+2}, v{ST+2}, v{T+1}"); a(f"v_add_f32 v{ST+3}, v{ST+3}, v{T+2}")
        a("s_mov_b64 exec, 0xffff")
        a(f"ds_write_b16 v{PW}, v{T}"); a(f"ds_write_b16_d16_hi v{PW}, v{T} offset:4")
        a("s_mov_b64 exec, -1")
        a(f"ds_read_b128 v[{PREG}:{PREG+3}], v{PR}"); a(f"ds_read_b128 v[{PREG+4}:{PREG+7}], v{PR} offset:32")
        for iq in range(4):
            la, lb = VR + 8 * iq, VR + 8 * iq + 4
            a(f"s_waitcnt vmcnt({14 - 2*iq})")
            if "nopv" in self.exp: continue
            for w in range(4):
                a(f"v_perm_b32 v{PT+2*w}, v{lb+w}, v{la+w}, s57")
                a(f"v_perm_b32 v{PT+2*w+1}, v{lb+w}, v{la+w}, s58")
            if iq in (0, 2): a(f"s_waitcnt lgkmcnt({1 if iq == 0 else 0})")
            pr = PREG + 4 * (iq >> 1) + 2 * (iq & 1)
            for h in range(2):
                for j in range(8):
                    a(f"v_dot2c_f32_bf16 v{ACC+8*h+j}, v{PT+j}, v{pr+h}")
        issue_v()
        a("s_cmp_lg_u32 s10, 0"); a("s_cbranch_scc1 L_proc")
        L("L_stream_done")
        a("s_waitcnt vmcnt(0)")
        self.stamp(3)
        self.nop(2)
        self.row_allreduce("v_add_f32", [ST+2, ST+3])
        a("s_lshl_b32 s27, s3, 2"); a(f"s_add_u32 s27, s27, {L_M}")
        a(f"v_mov_b32 v{T}, s27")
        a("s_mov_b64 exec, 1")
        a(f"ds_write2_b32 v{T}, v{ST}, v{ST+1} offset0:0 offset1:8")
        a(f"ds_write2_b32 v{T}, v{ST+2}, v{ST+3} offset0:16 offset1:24")
        a("s_mov_b64 exec, -1")
        for j in range(16): a(f"v_mov_b32 v{8+j}, v{ACC+j}")
        ACC = 8
        c("---------------- merge inside the workgroup ----------------")
        self.nop(3)
        for j in range(8): a(f"v_permlane32_swap_b32 v{ACC+j}, v{ACC+8+j}")
        self.nop(1)
        for j in range(8): a(f"v_add_f32 v{ACC+j}, v{ACC+j}, v{ACC+8+j}")
        a("s_lshl_b32 s27, s3, 12"); a(f"s_add_u32 s27, s27, {L_SCR + 1024}")
        a("v_lshlrev_b32 v24, 5, v1"); a("v_add_u32 v24, s27, v24")
        a(f"ds_write_b128 v24, v[{ACC}:{ACC+3}]")
        a(f"ds_write_b128 v24, v[{ACC+4}:{ACC+7}] offset:16")
        a("s_waitcnt lgkmcnt(0)")
        a("s_barrier")
        a("s_cmp_gt_u32 s3, 1"); a("s_cbranch_scc1 L_roles")
        a("s_lshl_b32 s27, s3, 5"); a(f"s_add_u32 s27, s27, {L_M}")
        a("v_mov_b32 v25, s27")
        a("ds_read_b128 v[8:11], v25"); a("ds_read_b128 v[12:15], v25 offset:16")
        a("ds_read_b128 v[16:19], v25 offset:64"); a("ds_read_b128 v[20:23], v25 offset:80")
        a("v_lshlrev_b32 v24, 4, v0"); a(f"v_add_u32 v25, {L_SCR + 1024}, v24")
        for w in range(8):
            a(f"ds_read_b128 v[{28+4*w}:{28+4*w+3}], v25 offset:{w*4096}")
        a("s_lshl_b32 s27, s2, 11"); a(f"s_add_u32 s27, s27, {WS_H1}")
        a("v_add_u32 v24, s27, v24")
        a("s_waitcnt lgkmcnt(10)")
        a("v_max3_f32 v60, v8, v9, v10"); a("v_max3_f32 v60, v60, v11, v12"); a("v_max3_f32 v60, v60, v13, v14"); a("v_max_f32 v60, v60, v15")
        a("v_mul_f32 v61, s56, v60")
        for w in range(8): a(f"v_fma_f32 v{8+w}, v{8+w}, s56, -v61")
        for w in range(8): a(f"v_exp_f32 v{8+w}, v{8+w}")
        a("s_waitcnt lgkmcnt(7)")
        for e in range(4): a(f"v_mul_f32 v{28+e}, v8, v{28+e}")
        for w in range(1, 8):
            a(f"s_waitcnt lgkmcnt({7-w})")
            for e in range(4):
                a(f"v_fma_f32 v{28+e}, v{8+w}, v{28+4*w+e}, v{28+e}")
        a("global_store_dwordx4 v24, v[28:31], s[20:21] sc1")
        a("v_mul_f32 v61, v8, v16")
        for w in range(1, 8): a(f"v_fma_f32 v61, v{8+w}, v{16+w}, v61")
        a("s_lshl_b32 s27, s2, 4"); a("s_lshl_b32 s28, s3, 3"); a("s_add_u32 s27, s27, s28"); a(f"s_add_u32 s27, s27, {WS_ML}")
        a("v_mov_b32 v24, s27")
        a("s_mov_b64 exec, 1")
        a("global_store_dwordx2 v24, v[60:61], s[20:21] sc1")
        a("s_mov_b64 exec, -1")
        c("---------------- role dispatch ----------------")
        L("L_roles")
        self.stamp(4)
        a("s_bitcmp1_b32 s23, 0"); a("s_cbranch_scc1 L_exit")
        a("s_cmp_lt_u32 s23, 8"); a("s_cbranch_scc1 L_t1")
        a("s_cmp_lt_u32 s23, 22"); a("s_cbranch_scc1 L_ffn")
        a("s_cmp_lg_u32 s23, 22"); a("s_cbranch_scc1 L_exit")
        a("s_cmp_lt_u32 s22, 7"); a("s_cbranch_scc1 L_fin")
        a("s_branch L_exit")
        self.gen_t1(); self.gen_ffn(); self.gen_fin(); self.gen_helper(); self.gen_support()
        L("L_exit")
        self.stamp_flush()
        L("L_end")
        a("s_endpgm")
        return self.o

    def poll_sentinel(self, name, loads, regs, tmp, cnt="s30", mask_exec=None):
        a = self.a
        lab = self.newlabel(name)
        a(f"s_mov_b32 {cnt}, {self.spin_max}")
        self.L(lab)
        loads()
        a("s_waitcnt vmcnt(0)")
        rs = list(regs)
        first = True
        while rs:
            if first:
                if len(rs) >= 3:
                    a(f"v_max3_u32 v{tmp}, v{rs[0]}, v{rs[1]}, v{rs[2]}"); rs = rs[3:]
                elif len(rs) == 2:
                    a(f"v_max_u32 v{tmp}, v{rs[0]}, v{rs[1]}"); rs = []
                else:
                    a(f"v_mov_b32 v{tmp}, v{rs[0]}"); rs = []
                first = False
            elif len(rs) >= 2:
                a(f"v_max3_u32 v{tmp}, v{tmp}, v{rs[0]}, v{rs[1]}"); rs = rs[2:]
            else:
                a(f"v_max_u32 v{tmp}, v{tmp}, v{rs[0]}"); rs = []
        a(f"v_cmp_eq_u32 vcc, -1, v{tmp}")
        done = self.newlabel(name + "_done")
        a(f"s_cbranch_vccz {done}")
        a(f"s_sub_u32 {cnt}, {cnt}, 1")
        a(f"s_cmp_lg_u32 {cnt}, 0")
        a(f"s_cbranch_scc1 {lab}")
        self.L(done)

    def select4(self, dst, d0, d1, d2, d3):
        a = self.a
        a(f"v_cndmask_b32 v{dst}, v{d0}, v{d1}, s[50:51]")
        a(f"v_cndmask_b32 v{dst}, v{dst}, v{d2}, s[52:53]")
        a(f"v_cndmask_b32 v{dst}, v{dst}, v{d3}, s[54:55]")

    def round_bf16_pair(self, dst_pk, x0, x1, o0=None, o1=None):
        a = self.a
        a(f"v_cvt_pk_bf16_f32 v{dst_pk}, v{x0}, v{x1}")
        if o0 is not None: a(f"v_lshlrev_b32 v{o0}, 16, v{dst_pk}")
        if o1 is not None: a(f"v_and_b32 v{o1}, 0xffff0000, v{dst_pk}")

    def gen_t1(self):
        a, L, c = self.a, self.L, self.c
        c("================ T1: softmax combine + wo slice ================")
        L("L_t1")
        a("s_lshr_b32 s24, s23, 1")
        a("v_lshrrev_b32 v2, 2, v1")
        a(f"v_mul_u32_u24 v2, {WPITCH}, v2")
        a("v_and_b32 v3, 3, v1")
        a("v_lshl_add_u32 v2, v3, 3, v2")
        a("s_lshl_b32 s25, s3, 7")
        a("v_add_u32 v2, s25, v2")
        a(f"v_add_u32 v3, {64*WPITCH}, v2")
        BF = 64
        a("s_cmp_eq_u32 s3, 7"); a("s_cbranch_scc1 L_t1_nob")
        for ks in range(4):
            for tt in range(4):
                for h in range(2):
                    r = BF + ((ks * 4 + tt) * 2 + h) * 2
                    base = "v2" if ks < 2 else "v3"
                    off = (32 * (ks & 1) + 16 * h) * WPITCH + tt * 32
                    a(f"ds_read_b64_tr_b16 v[{r}:{r+1}], {base} offset:{off}")
            a("s_waitcnt lgkmcnt(0)")
        L("L_t1_nob")
        a("s_lshl_b32 s26, s22, 5")
        a("v_lshrrev_b32 v6, 5, v1")
        a("v_and_b32 v7, 31, v1")
        a("s_lshl_b32 s27, s3, 2"); a("s_add_u32 s27, s27, s26")
        a("v_add_u32 v8, s27, v6")
        a("v_lshlrev_b32 v9, 11, v8")
        a("v_lshl_add_u32 v9, v7, 4, v9")
        a("s_lshl_b32 s28, s24, 9"); a(f"s_add_u32 s28, s28, {WS_H1 + 2048}")
        a("v_add_u32 v9, s28, v9")
        a("s_lshr_b32 s29, s24, 1"); a("s_lshl_b32 s29, s29, 3"); a(f"s_add_u32 s29, s29, {WS_ML}")
        a("v_lshlrev_b32 v10, 4, v8"); a("v_add_u32 v10, s29, v10")
        a("v_add_u32 v11, s26, v7"); a("v_lshlrev_b32 v11, 4, v11"); a("v_add_u32 v11, s29, v11")
        def loads():
            a("global_load_dwordx4 v[12:15], v9, s[20:21] offset:-2048 sc1")
            a("global_load_dwordx4 v[16:19], v9, s[20:21] offset:2048 sc1")
            a("global_load_dwordx2 v[20:21], v11, s[20:21] sc1")
            a("global_load_dword v22, v10, s[20:21] sc1")
            a("global_load_dword v23, v10, s[20:21] offset:32 sc1")
        self.poll_sentinel("t1", loads, list(range(12, 24)), 24)
        self.stamp(5)
        a("v_mov_b32 v25, v20")
        self.wave_allreduce("v_max_f32", [25], [26], full=False)
        a("v_sub_f32 v27, v20, v25"); a("v_sub_f32 v28, v22, v25"); a("v_sub_f32 v29, v23, v25")
        a("v_mul_f32 v27, s56, v27"); a("v_mul_f32 v28, s56, v28"); a("v_mul_f32 v29, s56, v29")
        a("v_exp_f32 v27, v27"); a("v_exp_f32 v28, v28"); a("v_exp_f32 v29, v29")
        self.nop(1)
        a("v_mul_f32 v27, v27, v21")
        self.wave_allreduce("v_add_f32", [27], [26], full=False)
        a("v_rcp_f32 v30, v27")
        self.nop(1)
        a("v_fma_f32 v31, -v27, v30, 1.0"); a("v_fma_f32 v30, v31, v30, v30")
        a("v_mul_f32 v28, v28, v30"); a("v_mul_f32 v29, v29, v30")
        for e in range(4): a(f"v_mul_f32 v{12+e}, v28, v{12+e}")
        for e in range(4): a(f"v_fma_f32 v{12+e}, v29, v{16+e}, v{12+e}")
        self.nop(2)
        a("v_permlane32_swap_b32 v12, v13"); a("v_permlane32_swap_b32 v14, v15")
        self.nop(1)
        a("v_add_f32 v12, v12, v13"); a("v_add_f32 v14, v14, v15")
        a("v_lshl_add_u32 v16, v7, 2, v6"); a("v_lshlrev_b32 v16, 2, v16")
        a("s_lshl_b32 s27, s3, 9"); a(f"s_add_u32 s27, s27, {L_ACC}")
        a("v_add_u32 v16, s27, v16")
        a("ds_write_b32 v16, v12"); a("ds_write_b32 v16, v14 offset:8")
        a("s_waitcnt lgkmcnt(0)")
        a("s_barrier")
        a("s_cmp_eq_u32 s3, 7"); a("s_cbranch_scc1 L_exit")
        a("v_lshlrev_b32 v17, 3, v1"); a(f"v_add_u32 v17, {L_ACC}, v17")
        for w in range(8):
            a(f"ds_read_b64 v[{32+2*w}:{32+2*w+1}], v17 offset:{w*512}")
        a("v_lshrrev_b32 v18, 4, v1"); a("v_lshlrev_b32 v18, 6, v18")
        a("v_bfe_u32 v19, v1, 1, 2"); a("v_lshl_add_u32 v18, v19, 4, v18")
        a("v_bfe_u32 v19, v1, 3, 1"); a("v_lshl_add_u32 v18, v19, 3, v18")
        a("v_and_b32 v19, 1, v1"); a("v_lshl_add_u32 v18, v19, 2, v18")
        a("s_lshl_b32 s27, s3, 10"); a(f"s_add_u32 s27, s27, {L_PRIV}")
        a("v_add_u32 v18, s27, v18")
        a("v_lshrrev_b32 v19, 4, v1"); a("v_lshlrev_b32 v19, 4, v19"); a("v_add_u32 v19, s27, v19")
        for w in range(1, 8):
            a(f"s_waitcnt lgkmcnt({7-w})")
            a(f"v_add_f32 v32, v32, v{32+2*w}"); a(f"v_add_f32 v33, v33, v{33+2*w}")
        a("v_cvt_pk_bf16_f32 v34, v32, v33")
        a("ds_write_b32 v18, v34")
        a("s_waitcnt lgkmcnt(0)")
        for ks in range(4):
            a(f"ds_read_b128 v[{36+4*ks}:{36+4*ks+3}], v19 offset:{ks*64}")
        a("s_waitcnt lgkmcnt(0)")
        DD = 128
        for ks in range(4):
            for tt in range(4):
                r = BF + (ks * 4 + tt) * 4
                cc = "0" if ks == 0 else f"v[{DD+4*tt}:{DD+4*tt+3}]"
                a(f"v_mfma_f32_16x16x32_bf16 v[{DD+4*tt}:{DD+4*tt+3}], v[{36+4*ks}:{36+4*ks+3}], v[{r}:{r+3}], {cc}")
        a("s_lshl_b32 s27, s22, 2"); a("s_add_u32 s27, s27, s24")
        a("s_lshl_b32 s27, s27, 11"); a(f"s_add_u32 s27, s27, {WS_T1O}")
        a("s_lshl_b32 s28, s3, 8"); a("s_add_u32 s27, s27, s28")
        a("v_lshlrev_b32 v20, 2, v1"); a("v_add_u32 v20, s27, v20")
        self.nop(6)
        self.select4(21, DD, DD+4, DD+8, DD+12)
        a("global_store_dword v20, v21, s[20:21] sc1")
        self.stamp(6)
        a("s_branch L_exit")

    def gen_ffn(self):
        a, L, c = self.a, self.L, self.c
        c("================ FFN slice ================")
        L("L_ffn")
        a("s_sub_u32 s24, s23, 8"); a("s_lshr_b32 s24, s24, 1"); a("s_lshl_b32 s24, s24, 3"); a("s_add_u32 s24, s24, s22")
        a("v_lshrrev_b32 v2, 2, v1")
        a("v_and_b32 v3, 3, v1")
        a("v_bfe_u32 v4, v1, 4, 1")
        a("v_lshlrev_b32 v5, 6, v2"); a("v_lshl_add_u32 v5, v3, 3, v5")
        a("s_lshl_b32 s25, s3, 12"); a("v_add_u32 v5, s25, v5")
        a("v_lshl_add_u32 v6, v4, 5, v5")
        a("v_xor_b32 v4, 1, v4"); a("v_lshl_add_u32 v7, v4, 5, v5")
        a(f"v_mul_u32_u24 v8, {WPITCH}, v2"); a("v_lshl_add_u32 v8, v3, 3, v8")
        a("s_lshl_b32 s25, s3, 7"); a(f"s_add_u32 s25, s25, {L_DOWN}"); a("v_add_u32 v8, s25, v8")
        BG = 64
        BD = 96
        XR = 112
        a("s_cmp_eq_u32 s3, 7"); a("s_cbranch_scc1 L_ffn_nob")
        for ksl in range(2):
            for m in range(2):
                for ct in range(2):
                    for h in range(2):
                        r = BG + ((ksl * 2 + m) * 2 + ct) * 4 + 2 * h
                        a(f"ds_read_b64_tr_b16 v[{r}:{r+1}], v{6+ct} offset:{m*L_UP + ksl*2048 + h*1024}")
            a("s_waitcnt lgkmcnt(0)")
        for tt in range(4):
            for h in range(2):
                r = BD + tt * 4 + 2 * h
                a(f"ds_read_b64_tr_b16 v[{r}:{r+1}], v8 offset:{16*h*WPITCH + tt*32}")
        a(f"v_lshlrev_b32 v9, 4, v1"); a(f"v_add_u32 v9, {L_XR}, v9")
        a(f"ds_read_b128 v[{XR}:{XR+3}], v9")
        a("s_mov_b32 s26, 586")
        a("v_mul_lo_u32 v10, s26, v0"); a("v_lshrrev_b32 v10, 16, v10")
        a("v_mul_u32_u24 v11, 112, v10"); a("v_sub_u32 v11, v0, v11")
        a("v_lshlrev_b32 v12, 14, v10"); a("v_lshl_add_u32 v12, v11, 4, v12")
        a(f"v_add_u32 v12, {WS_T1O}, v12")
        for j in range(8): a(f"s_mov_b32 s{60+j}, {j*2048}")
        a("v_mul_u32_u24 v13, 1792, v10"); a("v_lshl_add_u32 v13, v11, 4, v13"); a(f"v_add_u32 v13, {L_ACC}, v13")
        def loads():
            for j in range(8):
                a(f"buffer_load_dwordx4 v[{16+4*j}:{16+4*j+3}], v12, s[16:19], s{60+j} offen sc1")
        self.poll_sentinel("ffn", loads, list(range(16, 48)), 14)
        self.stamp(5)
        for j in range(1, 8):
            for e in range(4): a(f"v_add_f32 v{16+e}, v{16+e}, v{16+4*j+e}")
        a("ds_write_b128 v13, v[16:19]")
        L("L_ffn_nob")
        a("s_waitcnt lgkmcnt(0)")
        a("s_barrier")
        a("s_cmp_eq_u32 s3, 7"); a("s_cbranch_scc1 L_ffn_w7")
        a("v_lshlrev_b32 v14, 5, v1"); a(f"v_add_u32 v14, {L_ACC}, v14")
        for ps in range(4):
            a(f"ds_read_b128 v[{16+8*ps}:{16+8*ps+3}], v14 offset:{ps*1792}")
            a(f"ds_read_b128 v[{16+8*ps+4}:{16+8*ps+7}], v14 offset:{ps*1792+16}")
        for ps in range(1, 4):
            a(f"s_waitcnt lgkmcnt({2*(3-ps)})")
            for e in range(8): a(f"v_add_f32 v{16+e}, v{16+e}, v{16+8*ps+e}")
        for e in range(4): self.round_bf16_pair(24+e, 16+2*e, 17+2*e, 16+2*e, 17+2*e)
        for e in range(4):
            a(f"v_lshlrev_b32 v{28+2*e}, 16, v{XR+e}"); a(f"v_and_b32 v{29+2*e}, 0xffff0000, v{XR+e}")
        for e in range(8): a(f"v_add_f32 v{16+e}, v{16+e}, v{28+e}")
        for e in range(4): self.round_bf16_pair(24+e, 16+2*e, 17+2*e, 16+2*e, 17+2*e)
        self.layernorm(16, 28, 36, 24)
        a("v_lshrrev_b32 v36, 2, v1"); a("v_lshlrev_b32 v36, 6, v36")
        a("v_and_b32 v37, 1, v1"); a("v_lshl_add_u32 v36, v37, 5, v36")
        a("v_bfe_u32 v37, v1, 1, 1"); a("v_lshl_add_u32 v36, v37, 3, v36")
        a("s_lshl_b32 s27, s3, 10"); a(f"s_add_u32 s27, s27, {L_PRIV}")
        a("v_add_u32 v36, s27, v36")
        a("v_cmp_gt_u32 vcc, 56, v1")
        a("s_and_saveexec_b64 s[32:33], vcc")
        a("ds_write_b64 v36, v[24:25]"); a("ds_write_b64 v36, v[26:27] offset:16")
        a("s_mov_b64 exec, s[32:33]")
        a("v_lshrrev_b32 v37, 4, v1"); a("v_lshlrev_b32 v37, 4, v37")
        a("s_lshl_b32 s28, s3, 7"); a("s_add_u32 s28, s28, s27"); a("v_add_u32 v37, s28, v37")
        a("s_waitcnt lgkmcnt(0)")
        a("ds_read_b128 v[40:43], v37"); a("ds_read_b128 v[44:47], v37 offset:64")
        a("s_waitcnt lgkmcnt(0)")
        DD = 48
        for ksl in range(2):
            for m in range(2):
                for ct in range(2):
                    r = BG + ((ksl * 2 + m) * 2 + ct) * 4
                    d = DD + (m * 2 + ct) * 4
                    cc = "0" if ksl == 0 else f"v[{d}:{d+3}]"
                    a(f"v_mfma_f32_16x16x32_bf16 v[{d}:{d+3}], v[{40+4*ksl}:{40+4*ksl+3}], v[{r}:{r+3}], {cc}")
        GU = L_ACC + 8192
        a("s_lshl_b32 s28, s3, 8"); a(f"s_add_u32 s28, s28, {GU}")
        a("v_lshlrev_b32 v38, 2, v1"); a("v_add_u32 v39, s28, v38")
        self.nop(6)
        self.select4(16, DD, DD+4, DD+8, DD+12)
        a("ds_write_b32 v39, v16")
        L("L_ffn_w7")
        a("s_waitcnt lgkmcnt(0)")
        a("s_barrier")
        a("s_cmp_eq_u32 s3, 7"); a("s_cbranch_scc1 L_exit")
        a(f"v_add_u32 v39, {GU}, v38")
        for w in range(7): a(f"ds_read_b32 v{16+w}, v39 offset:{w*256}")
        a("v_bfe_u32 v40, v1, 2, 2"); a("v_lshlrev_b32 v40, 4, v40")
        a("v_bfe_u32 v41, v1, 4, 1"); a("v_lshl_add_u32 v40, v41, 3, v40")
        a("v_and_b32 v41, 3, v1"); a("v_lshl_add_u32 v40, v41, 1, v40")
        a("v_add_u32 v40, s27, v40")
        a("v_lshrrev_b32 v41, 4, v1"); a("v_lshlrev_b32 v41, 4, v41"); a("v_add_u32 v41, s27, v41")
        for w in range(1, 7):
            a(f"s_waitcnt lgkmcnt({6-w})")
            a(f"v_add_f32 v16, v16, v{16+w}")
        a("v_cvt_pk_bf16_f32 v17, v16, v16")
        a("v_and_b32 v16, 0xffff0000, v17")
        a("v_mov_b32 v17, v16")
        self.nop(2)
        a("v_permlane32_swap_b32 v16, v17")
        self.nop(1)
        k1 = -2.0 * LOG2E * 0.7978845608028654
        a(f"s_mov_b32 s28, {hexf(0.044715)}"); a(f"s_mov_b32 s29, {hexf(k1)}")
        a("v_mul_f32 v18, v16, v16")
        a("v_fma_f32 v18, v18, s28, 1.0")
        a("v_mul_f32 v18, v18, v16")
        a("v_mul_f32 v18, s29, v18")
        a("v_exp_f32 v18, v18")
        self.nop(1)
        a("v_add_f32 v18, 1.0, v18")
        a("v_rcp_f32 v18, v18")
        self.nop(1)
        a("v_mul_f32 v18, v16, v18")
        a("v_cvt_pk_bf16_f32 v18, v18, v18"); a("v_and_b32 v18, 0xffff0000, v18")
        a("v_mul_f32 v18, v18, v17")
        a("v_cvt_pk_bf16_f32 v18, v18, v18")
        a("s_mov_b32 exec_hi, 0")
        a("ds_write_b16 v40, v18")
        a("s_mov_b32 exec_hi, -1")
        a("s_waitcnt lgkmcnt(0)")
        a("ds_read_b128 v[20:23], v41")
        a("s_waitcnt lgkmcnt(0)")
        for tt in range(4):
            a(f"v_mfma_f32_16x16x32_bf16 v[{DD+4*tt}:{DD+4*tt+3}], v[20:23], v[{BD+4*tt}:{BD+4*tt+3}], 0")
        a("s_lshl_b32 s27, s24, 11"); a(f"s_add_u32 s27, s27, {WS_FFO}")
        a("s_lshl_b32 s28, s3, 8"); a("s_add_u32 s27, s27, s28")
        a("v_add_u32 v38, s27, v38")
        self.nop(6)
        self.select4(16, DD, DD+4, DD+8, DD+12)
        a("global_store_dword v38, v16, s[20:21] sc1")
        self.stamp(6)
        a("s_branch L_exit")

    def layernorm(self, X, T, U, OUT):
        a = self.a
        a(f"v_readfirstlane_b32 s34, v{X}")
        a("v_cmp_gt_u32 vcc, 56, v1")
        self.nop(1)
        for e in range(8): a(f"v_subrev_f32 v{T+e}, s34, v{X+e}")
        for e in range(8): a(f"v_cndmask_b32 v{T+e}, 0, v{T+e}, vcc")
        a(f"v_add_f32 v{U}, v{T}, v{T+1}"); a(f"v_mul_f32 v{U+1}, v{T}, v{T}")
        a(f"v_fma_f32 v{U+1}, v{T+1}, v{T+1}, v{U+1}")
        for e in range(2, 8):
            a(f"v_add_f32 v{U}, v{U}, v{T+e}"); a(f"v_fma_f32 v{U+1}, v{T+e}, v{T+e}, v{U+1}")
        self.wave_allreduce("v_add_f32", [U, U+1], [U+2, U+3])
        a(f"s_mov_b32 s35, {hexf(1.0/448)}")
        a(f"v_mul_f32 v{U}, s35, v{U}"); a(f"v_mul_f32 v{U+1}, s35, v{U+1}")
        a(f"v_fma_f32 v{U+1}, -v{U}, v{U}, v{U+1}")
        a(f"v_max_f32 v{U+1}, 0, v{U+1}")
        a(f"v_add_f32 v{U}, s34, v{U}")
        self.round_bf16_pair(U+2, U, U+1, U, U+1)
        a(f"v_add_f32 v{U+1}, {hexf(1e-5)}, v{U+1}")
        a(f"v_cvt_pk_bf16_f32 v{U+1}, v{U+1}, v{U+1}"); a(f"v_and_b32 v{U+1}, 0xffff0000, v{U+1}")
        a(f"v_sqrt_f32 v{U+1}, v{U+1}")
        self.nop(1)
        a(f"v_cvt_pk_bf16_f32 v{U+1}, v{U+1}, v{U+1}"); a(f"v_and_b32 v{U+1}, 0xffff0000, v{U+1}")
        a(f"v_rcp_f32 v{U+2}, v{U+1}")
        for e in range(8): a(f"v_sub_f32 v{T+e}, v{X+e}, v{U}")
        for e in range(4): self.round_bf16_pair(U+3, T+2*e, T+2*e+1, T+2*e, T+2*e+1)
        for e in range(8):
            a(f"v_mul_f32 v{U+4}, v{T+e}, v{U+2}")
            a(f"v_fma_f32 v{T+e}, -v{U+4}, v{U+1}, v{T+e}")
            a(f"v_fma_f32 v{T+e}, v{T+e}, v{U+2}, v{U+4}")
        for e in range(4): a(f"v_cvt_pk_bf16_f32 v{OUT+e}, v{T+2*e}, v{T+2*e+1}")

    def gen_fin(self):
        a, L, c = self.a, self.L, self.c
        c("================ final reduce ================")
        L("L_fin")
        a("s_load_dwordx2 s[36:37], s[0:1], 72")
        a("v_lshrrev_b32 v2, 4, v1")
        a("v_and_b32 v3, 15, v1")
        a("s_lshl_b32 s24, s3, 2"); a("v_add_u32 v4, s24, v2")
        a("v_lshlrev_b32 v4, 11, v4"); a("v_lshl_add_u32 v4, v3, 4, v4")
        a("s_lshl_b32 s25, s22, 8"); a("v_add_u32 v4, s25, v4")
        a(f"v_add_u32 v5, {WS_T1O}, v4"); a(f"v_add_u32 v6, {WS_FFO}, v4"); a(f"v_add_u32 v7, {32*2048}, v6")
        a("v_bfrev_b32 v8, v2"); a("v_lshrrev_b32 v8, 30, v8")
        a("v_lshl_add_u32 v8, v3, 2, v8"); a("v_lshlrev_b32 v8, 2, v8")
        a("s_lshl_b32 s26, s3, 8"); a(f"s_add_u32 s26, s26, {L_ACC}"); a("v_add_u32 v8, s26, v8")
        def red(r):
            self.nop(2)
            a(f"v_permlane32_swap_b32 v{r}, v{r+1}"); a(f"v_permlane32_swap_b32 v{r+2}, v{r+3}")
            self.nop(1)
            a(f"v_add_f32 v{r}, v{r}, v{r+1}"); a(f"v_add_f32 v{r+2}, v{r+2}, v{r+3}")
            self.nop(2)
            a(f"v_permlane16_swap_b32 v{r}, v{r+2}")
            self.nop(1)
            a(f"v_add_f32 v{r}, v{r}, v{r+2}")
        def loads1(): a("global_load_dwordx4 v[12:15], v5, s[20:21] sc1")
        self.poll_sentinel("fin1", loads1, [12, 13, 14, 15], 10)
        red(12)
        a("ds_write_b32 v8, v12")
        a("s_cmp_lt_u32 s3, 6"); a("s_cbranch_scc1 L_fin_two")
        def loads2a(): a("global_load_dwordx4 v[12:15], v6, s[20:21] sc1")
        self.poll_sentinel("fin2a", loads2a, [12, 13, 14, 15], 10)
        a("s_branch L_fin_red")
        L("L_fin_two")
        def loads2b():
            a("global_load_dwordx4 v[12:15], v6, s[20:21] sc1")
            a("global_load_dwordx4 v[16:19], v7, s[20:21] sc1")
        self.poll_sentinel("fin2b", loads2b, list(range(12, 20)), 10)
        for e in range(4): a(f"v_add_f32 v{12+e}, v{12+e}, v{16+e}")
        L("L_fin_red")
        self.stamp(5)
        red(12)
        a("ds_write_b32 v8, v12 offset:2048")
        a("s_waitcnt lgkmcnt(0)")
        a("s_barrier")
        a("s_cmp_lg_u32 s3, 0"); a("s_cbranch_scc1 L_exit")
        a("v_lshlrev_b32 v9, 2, v1"); a(f"v_add_u32 v9, {L_ACC}, v9")
        for w in range(8): a(f"ds_read_b32 v{16+w}, v9 offset:{w*256}")
        a("s_waitcnt lgkmcnt(0)")
        for w in range(8): a(f"ds_read_b32 v{24+w}, v9 offset:{2048+w*256}")
        a("s_lshl_b32 s25, s22, 7"); a(f"s_add_u32 s25, s25, {L_XR}")
        a("v_lshlrev_b32 v10, 1, v1"); a("v_add_u32 v11, s25, v10")
        a("ds_read_u16 v32, v11")
        for w in range(1, 8): a(f"v_add_f32 v16, v16, v{16+w}")
        a("s_waitcnt lgkmcnt(0)")
        for w in range(1, 8): a(f"v_add_f32 v24, v24, v{24+w}")
        a("v_lshlrev_b32 v32, 16, v32")
        self.round_bf16_pair(33, 16, 24, 16, 24)
        a("v_add_f32 v16, v16, v32")
        a("v_cvt_pk_bf16_f32 v33, v16, v16"); a("v_and_b32 v16, 0xffff0000, v33")
        a("v_add_f32 v16, v16, v24")
        a("v_cvt_pk_bf16_f32 v33, v16, v16")
        a("s_lshl_b32 s25, s22, 7"); a("v_add_u32 v10, s25, v10")
        a("global_store_short v10, v33, s[36:37]")
        a("s_cmp_lg_u32 s22, 0"); a("s_cbranch_scc1 L_fin_end")
        a(f"v_mov_b32 v34, {L_XN + 1020}")
        a("ds_read_b32 v35, v34")
        a("s_waitcnt lgkmcnt(0)")
        a("v_mov_b32 v34, 0")
        a("s_mov_b64 exec, 1")
        a("global_store_dword v34, v35, s[20:21] sc1")
        a("s_mov_b64 exec, -1")
        L("L_fin_end")
        self.stamp(6)
        a("s_branch L_exit")

    def gen_helper(self):
        a, L, c = self.a, self.L, self.c
        c("================ helper wave ================")
        L("L_helper")
        a("s_setprio 3")
        a("s_load_dwordx2 s[56:57], s[0:1], 0")
        a("s_load_dwordx2 s[8:9], s[0:1], 24")
        a("s_and_b32 s24, s23, 7"); a("s_lshr_b32 s25, s23, 3")
        a("s_mul_i32 s26, s25, 112")
        a("s_lshl_b32 s27, s22, 3"); a("s_add_u32 s27, s27, s24"); a("s_lshl_b32 s27, s27, 7")
        a("v_lshrrev_b32 v2, 3, v1"); a("v_add_u32 v3, s26, v2"); a("v_lshlrev_b32 v3, 13, v3")
        a("v_and_b32 v4, 7, v1"); a("v_lshl_add_u32 v3, v4, 4, v3"); a("v_add_u32 v3, s27, v3")
        a("v_lshlrev_b32 v5, 4, v1")
        a("v_mov_b32 v6, 0")
        a("s_waitcnt lgkmcnt(0)")
        a("s_mov_b32 s40, s56"); a("s_mov_b32 s41, s57"); a("s_mov_b32 s42, 896"); a("s_mov_b32 s43, 0x20000")
        a("s_mov_b32 s44, s8"); a("s_mov_b32 s45, s9"); a(f"s_mov_b32 s46, {448*4096*2}"); a("s_mov_b32 s47, 0x20000")
        a("global_load_dword v7, v6, s[20:21] sc1")
        a("buffer_load_dwordx4 v[8:11], v5, s[40:43], 0 offen")
        WQ = 64
        for i in range(14):
            a(f"s_mov_b32 s28, {i*8*8192}")
            a(f"buffer_load_dwordx4 v[{WQ+4*i}:{WQ+4*i+3}], v3, s[44:47], s28 offen{self.ntw}")
        a("s_cmp_lg_u32 s23, 0"); a("s_cbranch_scc1 L_h_nocnt")
        a("s_lshl_b32 s28, s22, 8"); a(f"s_add_u32 s28, s28, {WS_CNT}"); a("v_mov_b32 v17, s28")
        a("s_mov_b64 exec, 1")
        a("global_store_dword v17, v6, s[20:21] sc1")
        a("s_mov_b64 exec, -1")
        L("L_h_nocnt")
        a("s_barrier")
        a("s_waitcnt vmcnt(14)" )
        self.stamp(0)
        a(f"v_add_u32 v18, {L_XR}, v5")
        a("v_cmp_gt_u32 vcc, 56, v1")
        a("s_and_saveexec_b64 s[32:33], vcc")
        a("ds_write_b128 v18, v[8:11]")
        a("s_mov_b64 exec, s[32:33]")
        for e in range(4):
            a(f"v_lshlrev_b32 v{20+2*e}, 16, v{8+e}"); a(f"v_and_b32 v{21+2*e}, 0xffff0000, v{8+e}")
        a("v_readfirstlane_b32 s36, v7")
        a("s_mul_i32 s36, s36, 0x9E3779B1"); a("s_add_u32 s36, s36, 0x7F4A7C15")
        a("v_mov_b32 v19, s36"); a(f"v_mov_b32 v18, {L_XN+1020}")
        a("ds_write_b32 v18, v19")
        self.layernorm(20, 28, 36, 44)
        a(f"v_add_u32 v18, {L_XN}, v5")
        a("v_cmp_gt_u32 vcc, 56, v1")
        a("s_and_saveexec_b64 s[32:33], vcc")
        a("ds_write_b128 v18, v[44:47]")
        a("s_mov_b64 exec, s[32:33]")
        a("v_add_u32 v18, s26, v2"); a("v_lshlrev_b32 v18, 1, v18"); a(f"v_add_u32 v18, {L_XN}, v18")
        a("s_waitcnt lgkmcnt(0)")
        for i in range(14): a(f"ds_read_u16 v{48+i}, v18 offset:{i*16}")
        for j in range(8): a(f"v_mov_b32 v{28+j}, 0")
        a("s_waitcnt vmcnt(0) lgkmcnt(0)")
        self.stamp(1)
        for i in range(14):
            a(f"v_lshlrev_b32 v62, 16, v{48+i}")
            for w in range(4):
                a(f"v_dot2c_f32_bf16 v{28+2*w}, v{WQ+4*i+w}, v{48+i}")
                a(f"v_dot2c_f32_bf16 v{28+2*w+1}, v{WQ+4*i+w}, v62")
        self.nop(3)
        for j in range(4): a(f"v_permlane32_swap_b32 v{28+j}, v{32+j}")
        self.nop(1)
        for j in range(4): a(f"v_add_f32 v{28+j}, v{28+j}, v{32+j}")
        self.nop(2)
        for j in range(2): a(f"v_permlane16_swap_b32 v{28+j}, v{30+j}")
        self.nop(1)
        for j in range(2): a(f"v_add_f32 v{28+j}, v{28+j}, v{30+j}")
        self.nop(2)
        for j in range(2): a(f"v_add_f32_dpp v{28+j}, v{28+j}, v{28+j} row_ror:8 row_mask:0xf bank_mask:0xf")
        a("v_mov_b32 v30, v29"); a("v_mov_b32 v29, s36"); a("v_mov_b32 v31, s36")
        a("v_lshlrev_b32 v32, 6, v4")
        a("v_bfe_u32 v33, v1, 5, 1"); a("v_lshl_add_u32 v32, v33, 5, v32")
        a("v_bfe_u32 v33, v1, 4, 1"); a("v_lshl_add_u32 v32, v33, 4, v32")
        a("s_lshl_b32 s28, s2, 9"); a(f"s_add_u32 s28, s28, {WS_QG}"); a("v_add_u32 v32, s28, v32")
        a("v_and_b32 v33, 8, v1"); a("v_cmp_eq_u32 vcc, 0, v33")
        a("s_and_saveexec_b64 s[32:33], vcc")
        a("global_store_dwordx4 v32, v[28:31], s[20:21] sc1")
        a("s_mov_b64 exec, s[32:33]")
        self.stamp(2)
        a("s_getpc_b64 s[44:45]")
        L("L_pc")
        a(f"s_sub_u32 s44, s44, L_pc - {KNAME}"); a("s_subb_u32 s45, s45, 0")
        a("v_lshlrev_b32 v60, 7, v1")
        for i in range(self.code_kb // 8):
            a(f"v_cmp_gt_u32 vcc, L_end - {KNAME}, v60")
            a("s_and_saveexec_b64 s[46:47], vcc")
            a(f"global_load_dword v{61+i}, v60, s[44:45]")
            a("s_mov_b64 exec, s[46:47]")
            a("v_add_u32 v60, 0x2000, v60")
        a("v_mov_b32 v153, s36")
        a("s_branch L_sup_gather")
        L("L_h_resets")
        a("v_lshlrev_b32 v5, 4, v1")
        a("v_mov_b32 v12, -1"); a("v_mov_b32 v13, -1"); a("v_mov_b32 v14, -1"); a("v_mov_b32 v15, -1")
        a("s_lshl_b32 s28, s2, 11"); a(f"s_add_u32 s28, s28, {WS_H1}"); a("v_add_u32 v16, s28, v5")
        a("global_store_dwordx4 v16, v[12:15], s[20:21] sc1")
        a("global_store_dwordx4 v16, v[12:15], s[20:21] offset:1024 sc1")
        a("s_lshl_b32 s28, s2, 4"); a(f"s_add_u32 s28, s28, {WS_ML}"); a("v_mov_b32 v17, s28")
        a("s_mov_b64 exec, 1")
        a("global_store_dwordx4 v17, v[12:15], s[20:21] sc1")
        a("s_mov_b64 exec, -1")
        a("s_mov_b32 s29, 0")
        a("s_bitcmp1_b32 s23, 0"); a("s_cbranch_scc1 L_h_role_done")
        a("s_cmp_lt_u32 s23, 8"); a("s_cbranch_scc0 L_h_not_t1")
        a("s_mov_b32 s29, 1")
        a("s_lshr_b32 s30, s23, 1"); a("s_lshl_b32 s31, s22, 2"); a("s_add_u32 s30, s30, s31")
        a("s_lshl_b32 s31, s30, 11"); a(f"s_add_u32 s31, s31, {WS_T1O}")
        a("s_branch L_h_reset_role")
        L("L_h_not_t1")
        a("s_cmp_lt_u32 s23, 22"); a("s_cbranch_scc0 L_h_not_ffn")
        a("s_mov_b32 s29, 2")
        a("s_sub_u32 s30, s23, 8"); a("s_lshr_b32 s30, s30, 1"); a("s_lshl_b32 s30, s30, 3"); a("s_add_u32 s30, s30, s22")
        a("s_lshl_b32 s31, s30, 11"); a(f"s_add_u32 s31, s31, {WS_FFO}")
        L("L_h_reset_role")
        a("v_add_u32 v16, s31, v5")
        a("global_store_dwordx4 v16, v[12:15], s[20:21] sc1")
        a("global_store_dwordx4 v16, v[12:15], s[20:21] offset:1024 sc1")
        a("s_branch L_h_role_done")
        L("L_h_not_ffn")
        a("s_cmp_eq_u32 s23, 22"); a("s_cbranch_scc0 L_h_role_done")
        a("s_cmp_lt_u32 s22, 7"); a("s_cbranch_scc0 L_h_role_done")
        a("s_mov_b32 s29, 3")
        L("L_h_role_done")
        a("s_waitcnt vmcnt(0)")
        a("s_lshl_b32 s28, s2, 2"); a(f"s_add_u32 s28, s28, {WS_TOK}"); a("v_mov_b32 v17, s28"); a("v_mov_b32 v18, s36")
        a("s_mov_b64 exec, 1")
        a("global_store_dword v17, v18, s[20:21] sc1")
        a("s_mov_b64 exec, -1")
        a("s_branch L_sup_dma")
        L("L_h_tokens")
        a("s_cmp_eq_u32 s29, 0"); a("s_cbranch_scc1 L_exit")
        a("s_cmp_eq_u32 s29, 1"); a("s_cbranch_scc0 L_h_tok_fin")
        a("v_and_b32 v20, 31, v1"); a("s_lshl_b32 s28, s22, 5"); a("v_add_u32 v20, s28, v20")
        a(f"v_lshlrev_b32 v21, 2, v20"); a(f"v_add_u32 v21, {WS_TOK}, v21")
        self.poll_tag("tok0", 21)
        a("s_branch L_h_end")
        L("L_h_tok_fin")
        a("v_and_b32 v20, 31, v1")
        a("v_lshrrev_b32 v21, 2, v20"); a("v_lshlrev_b32 v21, 5, v21"); a("v_and_b32 v22, 3, v20"); a("v_lshl_add_u32 v21, v22, 1, v21")
        a("v_lshlrev_b32 v21, 2, v21"); a(f"v_add_u32 v21, {WS_TOK}, v21")
        self.poll_tag("tok1", 21)
        a("s_cmp_eq_u32 s29, 3"); a("s_cbranch_scc0 L_h_end")
        a("v_min_u32 v20, 55, v1")
        a("v_and_b32 v21, 7, v20"); a("v_lshlrev_b32 v21, 5, v21"); a("v_lshrrev_b32 v22, 3, v20"); a("v_lshl_add_u32 v21, v22, 1, v21")
        a("v_add_u32 v21, 8, v21"); a("v_lshlrev_b32 v21, 2, v21"); a(f"v_add_u32 v21, {WS_TOK}, v21")
        self.poll_tag("tok2", 21)
        L("L_h_end")
        self.stamp(4)
        a("s_branch L_exit")


    def gen_support(self):
        a, L, c = self.a, self.L, self.c
        c("================ support waves 9..11 (and the helper after its q slice) ================")
        L("L_support")
        a("s_setprio 3")
        a("v_mov_b32 v155, 0")
        a("s_waitcnt lgkmcnt(0)")
        a("global_load_dword v153, v155, s[20:21] sc1")
        a("s_barrier")
        a("s_mov_b32 s37, 0x9E3779B1")
        a("s_waitcnt vmcnt(0)")
        a("v_mul_lo_u32 v153, v153, s37"); a("v_add_u32 v153, 0x7F4A7C15, v153")
        L("L_sup_gather")
        a("s_load_dwordx2 s[60:61], s[0:1], 32")
        a("s_load_dwordx4 s[64:67], s[0:1], 48")
        a("s_load_dwordx2 s[62:63], s[0:1], 64")
        NSUP = 4
        NCB = 2
        a("s_sub_u32 s28, s3, 8")
        a("s_lshl_b32 s27, s22, 5"); a("s_add_u32 s27, s27, s28"); a("s_lshl_b32 s27, s27, 9"); a(f"s_add_u32 s27, s27, {WS_QG}")
        a("v_lshrrev_b32 v150, 5, v1"); a("v_lshlrev_b32 v150, 12, v150")
        a("v_and_b32 v152, 31, v1"); a("v_lshl_add_u32 v150, v152, 4, v150"); a("v_add_u32 v150, s27, v150")
        a("v_add_u32 v151, 0x2000, v150")
        a("s_lshl_b32 s27, s28, 7"); a(f"s_add_u32 s27, s27, {L_Q}")
        a("v_lshlrev_b32 v152, 2, v152"); a("v_add_u32 v152, s27, v152")
        a(f"s_mov_b32 s37, {self.spin_max}")
        L("L_qpoll")
        for k in range(NCB):
            a(f"global_load_dwordx4 v[{40+8*k}:{43+8*k}], v150, s[20:21] offset:{k*NSUP*512} sc1")
            a(f"global_load_dwordx4 v[{44+8*k}:{47+8*k}], v151, s[20:21] offset:{k*NSUP*512} sc1")
        a("s_waitcnt vmcnt(0)")
        a("v_xor_b32 v154, v41, v153")
        for r in range(43, 40 + 8 * NCB, 2):
            a(f"v_bitop3_b32 v154, v154, v{r}, v153 bitop3:0xf6")
        a("v_cmp_ne_u32 vcc, 0, v154")
        a("s_cbranch_vccz L_qdone")
        a("s_sub_u32 s37, s37, 1"); a("s_cmp_lg_u32 s37, 0"); a("s_cbranch_scc1 L_qpoll")
        L("L_qdone")
        for k in range(NCB):
            b = 40 + 8 * k
            a(f"v_add_f32 v{b}, v{b}, v{b+4}"); a(f"v_add_f32 v{b+2}, v{b+2}, v{b+6}")
            a(f"v_mov_b32 v{b+4}, v{b}"); a(f"v_mov_b32 v{b+6}, v{b+2}")
        self.nop(2)
        for k in range(NCB):
            b = 40 + 8 * k
            a(f"v_permlane32_swap_b32 v{b}, v{b+4}"); a(f"v_permlane32_swap_b32 v{b+2}, v{b+6}")
        self.nop(1)
        for k in range(NCB):
            b = 40 + 8 * k
            a(f"v_add_f32 v{b}, v{b}, v{b+4}"); a(f"v_add_f32 v{b+2}, v{b+2}, v{b+6}")
            a(f"v_cvt_pk_bf16_f32 v{b}, v{b}, v{b+2}")
            a(f"ds_write_b32 v152, v{b} offset:{k*NSUP*128}")
        a("s_waitcnt lgkmcnt(0)")
        a("s_barrier")
        self.stamp(3)
        a("s_cmp_eq_u32 s3, 8"); a("s_cbranch_scc1 L_h_resets")
        L("L_sup_dma")
        self.gen_weight_dma()
        a("s_waitcnt vmcnt(0)")
        a("s_cmp_eq_u32 s3, 8"); a("s_cbranch_scc1 L_h_tokens")
        self.stamp(4)
        a("s_branch L_exit")

    def gen_weight_dma(self):
        a, L = self.a, self.L
        NSUP = 4
        a("s_bitcmp1_b32 s23, 0"); a("s_cbranch_scc1 L_wd_done")
        a("s_cmp_lt_u32 s23, 22"); a("s_cbranch_scc0 L_wd_done")
        a("s_sub_u32 s34, s3, 8")
        a("v_lshlrev_b32 v144, 4, v1")
        a("s_cmp_lt_u32 s23, 8"); a("s_cbranch_scc0 L_wd_ffn")
        rows = 128 // NSUP
        a("s_mov_b32 s88, s60"); a("s_mov_b32 s89, s61"); a(f"s_mov_b32 s90, {4096*448*2}"); a("s_mov_b32 s91, 0x20000")
        a("s_lshr_b32 s30, s23, 1"); a("s_lshl_b32 s31, s22, 2"); a("s_add_u32 s30, s30, s31")
        a("s_lshl_b32 s30, s30, 7"); a(f"s_mul_i32 s31, s34, {rows}"); a("s_add_u32 s30, s30, s31")
        a("s_mul_i32 s38, s30, 896")
        a(f"s_mul_i32 s39, s31, {WPITCH}")
        a(f"s_mov_b32 s49, {rows}")
        self.dma_rows("s[88:91]", "v144", "s49")
        a("s_branch L_wd_done")
        L("L_wd_ffn")
        a("s_sub_u32 s30, s23, 8"); a("s_lshr_b32 s30, s30, 1"); a("s_lshl_b32 s30, s30, 3"); a("s_add_u32 s30, s30, s22")
        a("v_lshrrev_b32 v145, 2, v1"); a("v_bfe_u32 v146, v1, 4, 1"); a("v_lshlrev_b32 v146, 1, v146")
        a("v_and_b32 v147, 3, v1"); a("v_xor_b32 v147, v147, v146")
        a("v_mul_u32_u24 v145, 3584, v145"); a("v_lshl_add_u32 v145, v147, 4, v145")
        for m, (plo, base) in enumerate(((64, L_GATE), (66, L_UP))):
            a(f"s_mov_b32 s88, s{plo}"); a(f"s_mov_b32 s89, s{plo+1}"); a(f"s_mov_b32 s90, {448*1792*2}"); a("s_mov_b32 s91, 0x20000")
            a(f"s_mul_i32 s38, s34, {16*3584}"); a("s_lshl_b32 s31, s30, 6"); a("s_add_u32 s38, s38, s31")
            a("s_lshl_b32 s39, s34, 10"); a(f"s_add_u32 s39, s39, {base}")
            a("s_mov_b32 s49, s34")
            lab = self.newlabel("gu")
            L(lab)
            a("s_mov_b32 m0, s39")
            a(f"s_add_u32 s39, s39, {NSUP*1024}")
            a(f"buffer_load_dwordx4 v145, s[88:91], s38 offen{self.ntw} lds")
            a(f"s_add_u32 s38, s38, {NSUP*16*3584}")
            a(f"s_add_u32 s49, s49, {NSUP}"); a("s_cmp_lt_u32 s49, 28"); a(f"s_cbranch_scc1 {lab}")
        drows = 32 // NSUP
        a("s_mov_b32 s88, s62"); a("s_mov_b32 s89, s63"); a(f"s_mov_b32 s90, {1792*448*2}"); a("s_mov_b32 s91, 0x20000")
        a("s_lshl_b32 s31, s30, 5"); a(f"s_mul_i32 s49, s34, {drows}"); a("s_add_u32 s31, s31, s49")
        a("s_mul_i32 s38, s31, 896")
        a(f"s_mul_i32 s39, s49, {WPITCH}"); a(f"s_add_u32 s39, s39, {L_DOWN}")
        a(f"s_mov_b32 s49, {drows}")
        self.dma_rows("s[88:91]", "v144", "s49")
        L("L_wd_done")

    def dma_rows(self, srd, vaddr, cnt):
        a = self.a
        a("s_mov_b32 exec_hi, 0x00ffffff")
        lab = self.newlabel("rows")
        self.L(lab)
        a("s_mov_b32 m0, s39")
        a(f"s_add_u32 s39, s39, {WPITCH}")
        a(f"buffer_load_dwordx4 {vaddr}, {srd}, s38 offen{self.ntw} lds")
        a("s_add_u32 s38, s38, 896")
        a("s_waitcnt vmcnt(48)")
        a(f"s_sub_u32 {cnt}, {cnt}, 1"); a(f"s_cmp_lg_u32 {cnt}, 0"); a(f"s_cbranch_scc1 {lab}")
        a("s_mov_b64 exec, -1")

    def poll_tag(self, name, addr):
        a = self.a
        lab = self.newlabel(name); done = self.newlabel(name + "d")
        a(f"s_mov_b32 s37, {self.spin_max}")
        self.L(lab)
        a(f"global_load_dword v23, v{addr}, s[20:21] sc1")
        a("s_waitcnt vmcnt(0)")
        a("v_cmp_ne_u32 vcc, s36, v23")
        a(f"s_cbranch_vccz {done}")
        a("s_sleep 8")
        a("s_sub_u32 s37, s37, 1"); a("s_cmp_lg_u32 s37, 0"); a(f"s_cbranch_scc1 {lab}")
        self.L(done)

def emit(path, **kw):
    g = Gen(**kw)
    body = g.build()
    hdr = open("cdna_kernels/" + KNAME[:-7] + ".s.ref").read().split("\n")
    top = [l for l in hdr if l.startswith(";") and "@launch" not in l and "Override launch" not in l and "grid=ceil" not in l]
    top = top[:15]
    out = top + [f"; @launch grid=(256,1,1) block=(768,1,1) lds={LDS_TOTAL}",
                 '.amdgcn_target "amdgcn-amd-amdhsa--gfx950"', ".text", f".globl {KNAME}", ".p2align 8",
                 f".type {KNAME},@function", f"{KNAME}:"]
    out += body
    out += ['.section .rodata,"a"', ".p2align 6", f".amdhsa_kernel {KNAME}",
            "  .amdhsa_next_free_vgpr 168", "  .amdhsa_next_free_sgpr 102", "  .amdhsa_accum_offset 168",
            "  .amdhsa_group_segment_fixed_size 0", "  .amdhsa_kernarg_size 96", "  .amdhsa_user_sgpr_count 2",
            "  .amdhsa_user_sgpr_kernarg_segment_ptr 1", "  .amdhsa_system_sgpr_workgroup_id_x 1",
            "  .amdhsa_float_denorm_mode_32 3", "  .amdhsa_float_denorm_mode_16_64 3",
            ".end_amdhsa_kernel", ""]
    open(path, "w").write("\n".join(out))

if __name__ == "__main__":
    import argparse
    ap = argparse.ArgumentParser()
    ap.add_argument("-o", default="main.s")
    ap.add_argument("--stamps", type=int, default=0)
    ap.add_argument("-S", type=int, default=5)
    ap.add_argument("--exp", default="")
    ap.add_argument("--NS", type=int, default=4)
    ap.add_argument("--TH", type=int, default=4)
    ap.add_argument("--taper", type=int, default=0)
    args = ap.parse_args()
    emit(args.o, S=args.S, NS=args.NS, TH=args.TH, taper=args.taper, dbg_stamps=args.stamps, exp=args.exp)
    print("LDS", LDS_TOTAL)
```

```python
import sys

KNAME = "sequential_preLN__gqa_block_cached__geglu_ffn__decode_kernel"

WS_G   = 0x0
WS_QG  = 0x1000
WS_TOK = 0x30000
WS_CNT = 0x38000
WS_H1  = 0x40000
WS_ML  = 0xC0000
WS_T1O = 0xC4000
WS_FFO = 0xD8000
WS_DBG = 0x100000
WS_SIZE_USED = 0x200000

WPITCH = 928
L_W    = 0
L_GATE = 0
L_UP   = 28672
L_DOWN = 57344
L_Q    = 118784
L_XR   = L_Q + 1024
L_XN   = L_XR + 1024
L_M    = L_XN + 1024
L_L    = L_M + 64
L_QF   = L_M + 192
L_SCR  = L_M + 256
L_ACC  = L_SCR
L_PRIV = L_SCR + 16384
LDS_TOTAL = L_SCR + 32768

BLOCK = 768
SENT = 0xFFFFFFFF
LOG2E = 1.4426950408889634
import struct
def f2u(x): return struct.unpack("<I", struct.pack("<f", x))[0]
def hexf(x): return "0x%08x" % f2u(x)

class Gen:
    def __init__(self, S=5, NS=4, TH=3, taper=0, tailpf=1, pipe=1, rot=11, code_kb=16, exp="", dbg_stamps=False, nt_stream=True, nt_w=True, spin_max=20000):
        self.o = []
        self.S = S
        self.NS = NS
        self.rot = rot
        self.pipe = pipe
        self.tailpf = tailpf
        self.taper = taper
        self.TH = TH
        self.exp = exp
        self.code_kb = code_kb
        self.stamps = dbg_stamps
        self.nt = " nt" if nt_stream else ""
        self.ntw = " nt" if nt_w else ""
        self.spin_max = spin_max
        self.lab = 0
    def a(self, s): self.o.append("  " + s)
    def L(self, s): self.o.append(s + ":")
    def c(self, s): self.o.append("  ; " + s)
    def newlabel(self, base):
        self.lab += 1
        return f"L_{base}_{self.lab}"
    def rs(self, ins):
        if "noreset" not in self.exp: self.a(ins)
    def nop(self, n):
        while n > 0:
            k = min(n, 16); self.a(f"s_nop {k-1}"); n -= k

    def row_allreduce(self, op, regs):
        for sh in (8, 4, 2, 1):
            if len(regs) < 3: self.nop(2 - (len(regs) - 1) if len(regs) > 0 else 2)
            for r in regs:
                self.a(f"{op}_dpp v{r}, v{r}, v{r} row_ror:{sh} row_mask:0xf bank_mask:0xf")
    def swap_allreduce(self, op, regs, tmps, kind):
        self.nop(1)
        for r, t in zip(regs, tmps): self.a(f"v_mov_b32 v{t}, v{r}")
        self.nop(2)
        for r, t in zip(regs, tmps): self.a(f"v_permlane{kind}_swap_b32 v{r}, v{t}")
        self.nop(1)
        for r, t in zip(regs, tmps): self.a(f"{op} v{r}, v{r}, v{t}")
    def wave_allreduce(self, op, regs, tmps, full=True):
        self.nop(2)
        self.row_allreduce(op, regs)
        self.swap_allreduce(op, regs, tmps, 16)
        if full: self.swap_allreduce(op, regs, tmps, 32)

    def stamp(self, idx):
        if not self.stamps: return
        self.a(f"s_memrealtime s[{70+2*idx}:{71+2*idx}]")
    def stamp_init(self):
        if not self.stamps: return
        for i in range(8): self.a(f"s_mov_b32 s{70+2*i}, 0")
    def stamp_flush(self):
        if not self.stamps: return
        a = self.a
        if self.stamps == 2:
            a("s_memrealtime s[92:93]")
            a("s_load_dwordx2 s[94:95], s[0:1], 80")
            a("s_waitcnt lgkmcnt(0)")
            a("s_lshl_b32 s98, s2, 4"); a("s_add_u32 s98, s98, s3")
            a("s_mov_b32 s99, 0")
            a(f"s_cmp_eq_u32 s98, {22*16}"); a("s_cbranch_scc1 L_dbgw")
            a("s_mov_b32 s99, 32")
            a(f"s_cmp_eq_u32 s98, {1*16+7}"); a("s_cbranch_scc0 L_end")
            self.L("L_dbgw")
            for i in range(7):
                a(f"s_sub_u32 s96, s{70+2*i}, s84"); a(f"v_mov_b32 v{8+i}, s96")
            a("s_sub_u32 s96, s92, s84"); a("v_mov_b32 v15, s96")
            a("v_mov_b32 v16, s99")
            a("s_mov_b64 exec, 1")
            a("global_store_dwordx4 v16, v[8:11], s[94:95]")
            a("global_store_dwordx4 v16, v[12:15], s[94:95] offset:16")
            return
        a("s_waitcnt lgkmcnt(0)")
        for i in range(8): a(f"v_mov_b32 v{8+i}, s{70+2*i}")
        a("s_lshl_b32 s98, s2, 9"); a("s_lshl_b32 s99, s3, 5"); a("s_add_u32 s98, s98, s99"); a(f"s_add_u32 s98, s98, {WS_DBG}")
        a("v_mov_b32 v16, s98")
        a("s_mov_b64 exec, 1")
        a("global_store_dwordx4 v16, v[8:11], s[20:21]")
        a("global_store_dwordx4 v16, v[12:15], s[20:21] offset:16")

    def build(self):
        a, L, c = self.a, self.L, self.c
        Q, KR, VR, ACC, FR, DD, ST, T = 8, 40, 72, 104, 120, 136, 140, 144
        R0, R1, PW, PR = 156, 157, 158, 159
        PT, PREG = FR, FR + 8
        c("---------------- entry ----------------")
        a("s_cmp_ge_u32 s2, 256")
        a("s_cbranch_scc1 L_end")
        self.stamp_init(); self.stamp(7)
        a("s_load_dwordx4 s[4:7], s[0:1], 8")
        a("s_load_dwordx2 s[20:21], s[0:1], 88")
        a("v_lshrrev_b32 v1, 6, v0")
        a("s_lshr_b32 s22, s2, 5")
        a("v_readfirstlane_b32 s3, v1")
        a("s_and_b32 s23, s2, 31")
        a("v_and_b32 v1, 63, v0")
        a("s_cmp_eq_u32 s3, 8")
        a("s_cbranch_scc1 L_helper")
        a("s_cmp_gt_u32 s3, 8")
        a("s_cbranch_scc1 L_support")
        c("---------------- streamer prologue ----------------")
        a("v_lshrrev_b32 v2, 3, v1")
        a("v_lshlrev_b32 v2, 9, v2")
        a("v_and_b32 v7, 7, v1")
        a("v_lshl_add_u32 v2, v7, 4, v2")
        a("v_add_u32 v5, 0x1000, v2")
        a("v_and_b32 v3, 31, v1")
        a("v_lshlrev_b32 v3, 4, v3")
        a("v_lshrrev_b32 v6, 5, v1")
        a("v_lshl_add_u32 v3, v6, 10, v3")
        if "lin" in self.exp.split(","):
            a("v_lshlrev_b32 v3, 4, v1"); a("v_mov_b32 v2, v3"); a("v_add_u32 v5, 0x1000, v2")
        a("v_add_u32 v4, 0x1000, v3")
        a("s_lshl_b32 s24, s23, 3")
        a("s_add_u32 s24, s24, s3")
        a("s_lshl_b32 s40, s24, 13")
        a("s_lshl_b32 s25, s22, 24")
        a("s_waitcnt lgkmcnt(0)")
        a("s_add_u32 s8, s4, s25"); a("s_addc_u32 s9, s5, 0"); a("s_mov_b32 s10, 0x1000000"); a("s_mov_b32 s11, 0x20000")
        a("s_add_u32 s12, s6, s25"); a("s_addc_u32 s13, s7, 0"); a("s_mov_b32 s14, 0x1000000"); a("s_mov_b32 s15, 0x20000")
        a("s_barrier")
        NS = self.NS
        RND = 256
        def first_load(i):
            if "lin" in self.exp.split(","):
                j = i & 7; reg = KR + 4 * i if i < 8 else VR + 4 * (i - 8)
                a(f"buffer_load_dwordx4 v[{reg}:{reg+3}], {'v3' if j < 4 else 'v4'}, {'s[8:11]' if i < 8 else 's[12:15]'}, s40 offen offset:{(j&3)*1024}{self.nt}")
                return
            if i < 8:
                cb, hf = i >> 1, i & 1
                a(f"buffer_load_dwordx4 v[{KR+4*i}:{KR+4*i+3}], {'v2' if hf == 0 else 'v5'}, s[8:11], s40 offen offset:{cb*128}{self.nt}")
            else:
                j = i - 8; iq, b = j >> 1, j & 1
                a(f"buffer_load_dwordx4 v[{VR+4*j}:{VR+4*j+3}], {'v3' if iq < 2 else 'v4'}, s[12:15], s40 offen offset:{(iq&1)*2048 + b*512}{self.nt}")
        def issue_k():
            for i in range(8): first_load(i)
        def issue_v():
            for i in range(8): first_load(8 + i)
        def k_pair(b):
            first_load(2 * b); first_load(2 * b + 1)
        def v_pair(q):
            first_load(8 + 2 * q); first_load(8 + 2 * q + 1)
        NFIRST = self.TH if self.TH else 16
        for i in range(NFIRST): first_load(i)
        FIRST_TILE = True
        a("s_lshl_b32 s46, s22, 8"); a(f"s_add_u32 s46, s46, {WS_CNT}")
        a("s_add_u32 s46, s20, s46"); a("s_addc_u32 s47, s21, 0")
        a("s_mov_b32 s43, 1")
        a("s_mov_b32 s59, 0")
        a("s_mov_b32 s38, s23"); a("s_mov_b32 s39, 0")
        a("s_mov_b32 s50, 0xffff0000"); a("s_mov_b32 s51, 0")
        a("s_mov_b32 s52, 0"); a("s_mov_b32 s53, 0x0000ffff")
        a("s_mov_b32 s54, 0"); a("s_mov_b32 s55, 0xffff0000")
        a("s_mov_b32 s57, 0x05040100"); a("s_mov_b32 s58, 0x07060302")
        a(f"s_mov_b32 s56, {hexf(LOG2E/16)}")
        a("s_mov_b32 s16, s20"); a("s_mov_b32 s17, s21"); a(f"s_mov_b32 s18, {WS_SIZE_USED}"); a("s_mov_b32 s19, 0x20000")
        a("s_lshl_b32 s26, s3, 12"); a(f"s_add_u32 s26, s26, {L_SCR}")
        a(f"v_bfe_u32 v{PW}, v1, 3, 1"); a(f"v_lshlrev_b32 v{PW}, 5, v{PW}")
        a(f"v_bfe_u32 v{T}, v1, 1, 1"); a(f"v_lshl_add_u32 v{PW}, v{T}, 4, v{PW}")
        a(f"v_bfe_u32 v{T}, v1, 2, 1"); a(f"v_lshl_add_u32 v{PW}, v{T}, 3, v{PW}")
        a(f"v_and_b32 v{T}, 1, v1"); a(f"v_lshl_add_u32 v{PW}, v{T}, 1, v{PW}")
        a(f"v_add_u32 v{PW}, s26, v{PW}")
        a(f"v_lshlrev_b32 v{PR}, 4, v6"); a(f"v_add_u32 v{PR}, s26, v{PR}")
        a(f"v_lshrrev_b32 v{T}, 4, v1"); a("v_and_b32 v6, 7, v1"); a(f"v_xor_b32 v6, v6, v{T}")
        a("v_lshlrev_b32 v6, 4, v6")
        a(f"v_lshrrev_b32 v{T+1}, 3, v1"); a(f"v_lshl_add_u32 v6, v{T+1}, 7, v6"); a("v_add_u32 v6, s26, v6")
        a("v_xor_b32 v7, 64, v6"); a("v_add_u32 v7, 0x400, v7")
        a(f"v_bfe_u32 v{R0}, v1, 1, 3"); a(f"v_xor_b32 v{R0}, v{R0}, v{T}")
        a(f"v_lshlrev_b32 v{R0}, 4, v{R0}")
        a(f"v_and_b32 v{T+1}, 15, v1"); a(f"v_lshl_add_u32 v{R0}, v{T+1}, 7, v{R0}"); a(f"v_add_u32 v{R0}, s26, v{R0}")
        a(f"v_xor_b32 v{R1}, 64, v{R0}")
        a(f"v_and_b32 v{T+1}, 1, v1"); a(f"v_lshlrev_b32 v{T+1}, 9, v{T+1}")
        a(f"v_lshl_add_u32 v{T+1}, v{T}, 4, v{T+1}"); a(f"v_add_u32 v{T+1}, {L_Q}, v{T+1}")
        a(f"v_mov_b32 v{ST}, 0xff800000"); a(f"v_mov_b32 v{ST+1}, 0xff800000"); a(f"v_mov_b32 v{ST+2}, 0"); a(f"v_mov_b32 v{ST+3}, 0")
        for j in range(16): a(f"v_mov_b32 v{ACC+j}, 0")
        a(f"v_mov_b32 v160, {L_QF}"); a("s_mov_b32 s42, 0")
        for i in range(NFIRST, 16):
            if self.TH and i >= self.TH:
                a(f"s_cmp_eq_u32 s42, 4"); a(f"s_cbranch_scc1 L_fl{i}")
                a("ds_read_b32 v161, v160"); a("s_waitcnt lgkmcnt(0)"); a("v_readfirstlane_b32 s42, v161")
                a(f"s_cmp_eq_u32 s42, 4"); a(f"s_cbranch_scc1 L_fl{i}")
                a(f"s_waitcnt vmcnt({self.TH-1})")
                L(f"L_fl{i}")
            first_load(i)
        self.stamp(0)
        a(f"s_mov_b32 s37, {self.spin_max * 16}")
        L("L_qwait")
        if "noq" in self.exp: a("s_branch L_qready")
        a("s_cmp_eq_u32 s42, 4"); a("s_cbranch_scc1 L_qready")
        a("s_sleep 1")
        a("ds_read_b32 v161, v160"); a("s_waitcnt lgkmcnt(0)"); a("v_readfirstlane_b32 s42, v161")
        a("s_sub_u32 s37, s37, 1"); a("s_cmp_lg_u32 s37, 0"); a("s_cbranch_scc1 L_qwait")
        L("L_qready")
        if "nob1" not in self.exp: a("s_barrier")
        self.stamp(1)
        for st in range(8):
            a(f"ds_read_b128 v[{Q+4*st}:{Q+4*st+3}], v{T+1} offset:{st*64}")
        a("s_waitcnt lgkmcnt(0)")
        c("---------------- tile loop ----------------")
        L("L_proc")
        def claim():
            a(f"s_cmp_lt_u32 s43, {self.S}"); a("s_cbranch_scc1 L_static")
            a("s_mov_b32 s41, 0x10000")
            a(f"s_cmp_lt_u32 s3, {8 - NS}"); a("s_cbranch_scc1 L_claimed")
            if self.taper:
                a("s_cmp_ge_u32 s3, 6"); a("s_cbranch_scc1 L_doclaim")
                a(f"s_cmp_ge_u32 s59, {2048 - self.taper}"); a("s_cbranch_scc1 L_claimed")
                L("L_doclaim")
            a("s_mov_b32 s41, 1")
            a("s_atomic_add s41, s[46:47], 0x0 glc")
            a("s_branch L_claimed")
            L("L_static")
            a(f"s_add_u32 s39, s39, {RND}")
            a(f"s_add_u32 s38, s38, {self.rot}"); a("s_and_b32 s38, s38, 31")
            a("s_lshl_b32 s48, s38, 3"); a("s_add_u32 s48, s48, s3"); a("s_add_u32 s48, s48, s39")
            a(f"s_sub_u32 s41, s48, {self.S * RND}")
            L("L_claimed")
            a("s_add_u32 s43, s43, 1")
            if "altprio" in self.exp:
                a("s_lshr_b32 s42, s3, 2"); a("s_add_u32 s42, s42, s43"); a("s_bitcmp1_b32 s42, 0")
                a("s_cbranch_scc1 L_prio1"); a("s_setprio 0"); a("s_branch L_priod"); L("L_prio1"); a("s_setprio 1"); L("L_priod")
        if self.pipe: claim()
        def kmfma(b):
            for e in range(2):
                st = 2 * b + e
                f = FR + 8 * (b & 1) + 4 * e
                src_c = "0" if st == 0 else f"v[{DD}:{DD+3}]"
                a(f"v_mfma_f32_16x16x32_bf16 v[{DD}:{DD+3}], v[{Q+4*st}:{Q+4*st+3}], v[{f}:{f+3}], {src_c}")
        for b in range(4):
            a(f"s_waitcnt vmcnt({6 if self.pipe == 2 else 14 - 2*b})")
            buf = (b & 1) * 2048
            if "nok" not in self.exp:
                a(f"ds_write_b128 v6, v[{KR+8*b}:{KR+8*b+3}] offset:{buf}")
                a(f"ds_write_b128 v7, v[{KR+8*b+4}:{KR+8*b+7}] offset:{buf}")
                f = FR + 8 * (b & 1)
                a(f"ds_read_b128 v[{f}:{f+3}], v{R0} offset:{buf}")
                a(f"ds_read_b128 v[{f+4}:{f+7}], v{R1} offset:{buf}")
            if self.pipe == 2:
                a("s_cmp_eq_u32 s43, 2"); a(f"s_cbranch_scc1 L_nov{b}")
                v_pair(b)
                L(f"L_nov{b}")
            if b > 0 and "nok" not in self.exp:
                a("s_waitcnt lgkmcnt(4)")
                kmfma(b - 1)
        a("s_waitcnt lgkmcnt(0)")
        kmfma(3)
        def resolve():
            a(f"s_add_u32 s41, s41, {self.S * RND}")
            a("s_cmp_lt_u32 s41, 2048")
            a("s_cselect_b32 s10, 0x1000000, 0"); a("s_cselect_b32 s14, 0x1000000, 0"); a("s_cselect_b32 s40, s41, 0")
            a("s_mov_b32 s59, s41")
            a("s_lshl_b32 s40, s40, 13")
        if self.pipe == 1:
            resolve()
            issue_k()
        elif self.pipe == 2:
            resolve()
            self.nop(2)
        else:
            self.nop(8)
        if "nosm" in self.exp: a("s_branch L_aftersm")
        a(f"v_cvt_pk_bf16_f32 v{T}, v{DD}, v{DD+1}")
        a(f"v_lshlrev_b32 v{T+1}, 16, v{T}"); a(f"v_and_b32 v{T+2}, 0xffff0000, v{T}")
        a(f"v_mov_b32 v{T+3}, v{T+1}"); a(f"v_mov_b32 v{T+4}, v{T+2}")
        self.nop(1)
        self.row_allreduce("v_max_f32", [T+3, T+4])
        a(f"v_max_f32 v{T+3}, v{T+3}, v{ST}"); a(f"v_max_f32 v{T+4}, v{T+4}, v{ST+1}")
        a(f"v_cmp_gt_f32 vcc, v{T+3}, v{ST}")
        a(f"v_cmp_gt_f32 s[44:45], v{T+4}, v{ST+1}")
        a("s_or_b64 vcc, vcc, s[44:45]")
        a("s_cbranch_vccz L_norescale")
        a(f"v_sub_f32 v{T+5}, v{ST}, v{T+3}"); a(f"v_sub_f32 v{T+6}, v{ST+1}, v{T+4}")
        a(f"v_mul_f32 v{T+5}, s56, v{T+5}"); a(f"v_mul_f32 v{T+6}, s56, v{T+6}")
        a(f"v_exp_f32 v{T+5}, v{T+5}"); a(f"v_exp_f32 v{T+6}, v{T+6}")
        a(f"v_mov_b32 v{ST}, v{T+3}"); a(f"v_mov_b32 v{ST+1}, v{T+4}")
        for j in range(8):
            a(f"v_mul_f32 v{ACC+j}, v{T+5}, v{ACC+j}"); a(f"v_mul_f32 v{ACC+8+j}, v{T+6}, v{ACC+8+j}")
        a(f"v_mul_f32 v{ST+2}, v{T+5}, v{ST+2}"); a(f"v_mul_f32 v{ST+3}, v{T+6}, v{ST+3}")
        L("L_norescale")
        a(f"v_mul_f32 v{T+5}, s56, v{ST}"); a(f"v_mul_f32 v{T+6}, s56, v{ST+1}")
        a(f"v_fma_f32 v{T+1}, v{T+1}, s56, -v{T+5}"); a(f"v_fma_f32 v{T+2}, v{T+2}, s56, -v{T+6}")
        a(f"v_exp_f32 v{T+1}, v{T+1}"); a(f"v_exp_f32 v{T+2}, v{T+2}")
        self.nop(1)
        a(f"v_cvt_pk_bf16_f32 v{T}, v{T+1}, v{T+2}")
        a(f"v_add_f32 v{ST+2}, v{ST+2}, v{T+1}"); a(f"v_add_f32 v{ST+3}, v{ST+3}, v{T+2}")
        a("s_mov_b64 exec, 0xffff")
        a(f"ds_write_b16 v{PW}, v{T}"); a(f"ds_write_b16_d16_hi v{PW}, v{T} offset:4")
        a("s_mov_b64 exec, -1")
        a(f"ds_read_b128 v[{PREG}:{PREG+3}], v{PR}"); a(f"ds_read_b128 v[{PREG+4}:{PREG+7}], v{PR} offset:32")
        L("L_aftersm")
        if not self.pipe:
            a("s_waitcnt lgkmcnt(0)")
            claim()
        for iq in range(4):
            la, lb = VR + 8 * iq, VR + 8 * iq + 4
            a(f"s_waitcnt vmcnt({6 if self.pipe == 2 else (14 if self.pipe else 6) - 2*iq})")
            if "nopv" not in self.exp:
                for w in range(4):
                    a(f"v_perm_b32 v{PT+2*w}, v{lb+w}, v{la+w}, s57")
                    a(f"v_perm_b32 v{PT+2*w+1}, v{lb+w}, v{la+w}, s58")
            if self.pipe == 2: k_pair(iq)
            if "nopv" in self.exp: continue
            if self.pipe and iq in (0, 2): a(f"s_waitcnt lgkmcnt({1 if iq == 0 else 0})")
            pr = PREG + 4 * (iq >> 1) + 2 * (iq & 1)
            for h in range(2):
                for j in range(8):
                    a(f"v_dot2c_f32_bf16 v{ACC+8*h+j}, v{PT+j}, v{pr+h}")
        if self.pipe:
            if self.pipe == 1: issue_v()
            a("s_cmp_lg_u32 s10, 0"); a("s_cbranch_scc1 L_proc")
        else:
            a("s_waitcnt lgkmcnt(0)")
            resolve()
            a("s_cmp_eq_u32 s10, 0"); a("s_cbranch_scc1 L_stream_done")
            issue_k(); issue_v()
            a("s_branch L_proc")
        L("L_stream_done")
        a("s_waitcnt vmcnt(0)")
        self.stamp(3)
        if self.tailpf:
            a("s_cmp_lg_u32 s3, 0"); a("s_cbranch_scc1 L_nopf")
            a("s_getpc_b64 s[44:45]")
            L("L_pc2")
            a(f"v_lshlrev_b32 v{T}, 7, v1")
            a(f"v_cmp_gt_u32 vcc, L_helper - L_pc2, v{T}")
            a("s_and_saveexec_b64 s[46:47], vcc")
            a(f"global_load_dword v{T+1}, v{T}, s[44:45]")
            a("s_mov_b64 exec, s[46:47]")
            L("L_nopf")
        self.nop(2)
        self.row_allreduce("v_add_f32", [ST+2, ST+3])
        a("s_lshl_b32 s27, s3, 2"); a(f"s_add_u32 s27, s27, {L_M}")
        a(f"v_mov_b32 v{T}, s27")
        a("s_mov_b64 exec, 1")
        a(f"ds_write2_b32 v{T}, v{ST}, v{ST+1} offset0:0 offset1:8")
        a(f"ds_write2_b32 v{T}, v{ST+2}, v{ST+3} offset0:16 offset1:24")
        a("s_mov_b64 exec, -1")
        for j in range(16): a(f"v_mov_b32 v{8+j}, v{ACC+j}")
        ACC = 8
        if "notail" in self.exp: a("s_branch L_exit")
        c("---------------- merge inside the workgroup ----------------")
        self.nop(3)
        for j in range(8): a(f"v_permlane32_swap_b32 v{ACC+j}, v{ACC+8+j}")
        self.nop(1)
        for j in range(8): a(f"v_add_f32 v{ACC+j}, v{ACC+j}, v{ACC+8+j}")
        a("s_lshl_b32 s27, s3, 12"); a(f"s_add_u32 s27, s27, {L_SCR + 1024}")
        a("v_lshlrev_b32 v24, 5, v1"); a("v_add_u32 v24, s27, v24")
        a(f"ds_write_b128 v24, v[{ACC}:{ACC+3}]")
        a(f"ds_write_b128 v24, v[{ACC+4}:{ACC+7}] offset:16")
        a("s_waitcnt lgkmcnt(0)")
        a("s_barrier")
        a("s_cmp_gt_u32 s3, 1"); a("s_cbranch_scc1 L_roles")
        a("s_lshl_b32 s27, s3, 5"); a(f"s_add_u32 s27, s27, {L_M}")
        a("v_mov_b32 v25, s27")
        a("ds_read_b128 v[8:11], v25"); a("ds_read_b128 v[12:15], v25 offset:16")
        a("ds_read_b128 v[16:19], v25 offset:64"); a("ds_read_b128 v[20:23], v25 offset:80")
        a("v_lshlrev_b32 v24, 4, v0"); a(f"v_add_u32 v25, {L_SCR + 1024}, v24")
        for w in range(8):
            a(f"ds_read_b128 v[{28+4*w}:{28+4*w+3}], v25 offset:{w*4096}")
        a("s_lshl_b32 s27, s2, 11"); a(f"s_add_u32 s27, s27, {WS_H1}")
        a("v_add_u32 v24, s27, v24")
        a("s_waitcnt lgkmcnt(10)")
        a("v_max3_f32 v60, v8, v9, v10"); a("v_max3_f32 v60, v60, v11, v12"); a("v_max3_f32 v60, v60, v13, v14"); a("v_max_f32 v60, v60, v15")
        a("v_mul_f32 v61, s56, v60")
        for w in range(8): a(f"v_fma_f32 v{8+w}, v{8+w}, s56, -v61")
        for w in range(8): a(f"v_exp_f32 v{8+w}, v{8+w}")
        a("s_waitcnt lgkmcnt(7)")
        for e in range(4): a(f"v_mul_f32 v{28+e}, v8, v{28+e}")
        for w in range(1, 8):
            a(f"s_waitcnt lgkmcnt({7-w})")
            for e in range(4):
                a(f"v_fma_f32 v{28+e}, v{8+w}, v{28+4*w+e}, v{28+e}")
        a("global_store_dwordx4 v24, v[28:31], s[20:21] sc1")
        a("v_mul_f32 v61, v8, v16")
        for w in range(1, 8): a(f"v_fma_f32 v61, v{8+w}, v{16+w}, v61")
        a("s_lshl_b32 s27, s2, 4"); a("s_lshl_b32 s28, s3, 3"); a("s_add_u32 s27, s27, s28"); a(f"s_add_u32 s27, s27, {WS_ML}")
        a("v_mov_b32 v24, s27")
        a("s_mov_b64 exec, 1")
        a("global_store_dwordx2 v24, v[60:61], s[20:21] sc1")
        a("s_mov_b64 exec, -1")
        c("---------------- role dispatch ----------------")
        L("L_roles")
        self.stamp(4)
        a("s_bitcmp1_b32 s23, 0"); a("s_cbranch_scc1 L_exit")
        a("s_cmp_lt_u32 s23, 8"); a("s_cbranch_scc1 L_t1")
        a("s_cmp_lt_u32 s23, 22"); a("s_cbranch_scc1 L_ffn")
        a("s_cmp_lg_u32 s23, 22"); a("s_cbranch_scc1 L_exit")
        a("s_cmp_lt_u32 s22, 7"); a("s_cbranch_scc1 L_fin")
        a("s_branch L_exit")
        self.gen_t1(); self.gen_ffn(); self.gen_fin(); self.gen_helper(); self.gen_support()
        L("L_exit")
        self.stamp_flush()
        L("L_end")
        a("s_endpgm")
        return self.o

    def poll_sentinel(self, name, loads, regs, tmp, cnt="s30", mask_exec=None):
        a = self.a
        lab = self.newlabel(name)
        a(f"s_mov_b32 {cnt}, {self.spin_max}")
        self.L(lab)
        loads()
        a("s_waitcnt vmcnt(0)")
        rs = list(regs)
        first = True
        while rs:
            if first:
                if len(rs) >= 3:
                    a(f"v_max3_u32 v{tmp}, v{rs[0]}, v{rs[1]}, v{rs[2]}"); rs = rs[3:]
                elif len(rs) == 2:
                    a(f"v_max_u32 v{tmp}, v{rs[0]}, v{rs[1]}"); rs = []
                else:
                    a(f"v_mov_b32 v{tmp}, v{rs[0]}"); rs = []
                first = False
            elif len(rs) >= 2:
                a(f"v_max3_u32 v{tmp}, v{tmp}, v{rs[0]}, v{rs[1]}"); rs = rs[2:]
            else:
                a(f"v_max_u32 v{tmp}, v{tmp}, v{rs[0]}"); rs = []
        a(f"v_cmp_eq_u32 vcc, -1, v{tmp}")
        done = self.newlabel(name + "_done")
        a(f"s_cbranch_vccz {done}")
        a(f"s_sub_u32 {cnt}, {cnt}, 1")
        a(f"s_cmp_lg_u32 {cnt}, 0")
        a(f"s_cbranch_scc1 {lab}")
        self.L(done)

    def select4(self, dst, d0, d1, d2, d3):
        a = self.a
        a(f"v_cndmask_b32 v{dst}, v{d0}, v{d1}, s[50:51]")
        a(f"v_cndmask_b32 v{dst}, v{dst}, v{d2}, s[52:53]")
        a(f"v_cndmask_b32 v{dst}, v{dst}, v{d3}, s[54:55]")

    def store_wide(self, src, tmp, addr):
        a = self.a
        self.nop(2)
        for j in range(4): a(f"v_mov_b32_dpp v{tmp+j}, v{src} quad_perm:[{j},{j},{j},{j}] row_mask:0xf bank_mask:0xf")
        a("s_mov_b32 exec_lo, 0x11111111"); a("s_mov_b32 exec_hi, 0x11111111")
        a(f"global_store_dwordx4 v{addr}, v[{tmp}:{tmp+3}], s[20:21] sc1")
        a("s_mov_b64 exec, -1")

    def round_bf16_pair(self, dst_pk, x0, x1, o0=None, o1=None):
        a = self.a
        a(f"v_cvt_pk_bf16_f32 v{dst_pk}, v{x0}, v{x1}")
        if o0 is not None: a(f"v_lshlrev_b32 v{o0}, 16, v{dst_pk}")
        if o1 is not None: a(f"v_and_b32 v{o1}, 0xffff0000, v{dst_pk}")

    def gen_t1(self):
        a, L, c = self.a, self.L, self.c
        c("================ T1: softmax combine + wo slice ================")
        L("L_t1")
        a("s_lshr_b32 s24, s23, 1")
        a("v_lshrrev_b32 v2, 2, v1")
        a(f"v_mul_u32_u24 v2, {WPITCH}, v2")
        a("v_and_b32 v3, 3, v1")
        a("v_lshl_add_u32 v2, v3, 3, v2")
        a("s_lshl_b32 s25, s3, 7")
        a("v_add_u32 v2, s25, v2")
        a(f"v_add_u32 v3, {64*WPITCH}, v2")
        BF = 64
        a("s_cmp_eq_u32 s3, 7"); a("s_cbranch_scc1 L_t1_nob")
        for ks in range(4):
            for tt in range(4):
                for h in range(2):
                    r = BF + ((ks * 4 + tt) * 2 + h) * 2
                    base = "v2" if ks < 2 else "v3"
                    off = (32 * (ks & 1) + 16 * h) * WPITCH + tt * 32
                    a(f"ds_read_b64_tr_b16 v[{r}:{r+1}], {base} offset:{off}")
            a("s_waitcnt lgkmcnt(0)")
        L("L_t1_nob")
        a("s_lshl_b32 s26, s22, 5")
        a("v_lshrrev_b32 v6, 5, v1")
        a("v_and_b32 v7, 31, v1")
        a("s_lshl_b32 s27, s3, 2"); a("s_add_u32 s27, s27, s26")
        a("v_add_u32 v8, s27, v6")
        a("v_lshlrev_b32 v9, 11, v8")
        a("v_lshl_add_u32 v9, v7, 4, v9")
        a("s_lshl_b32 s28, s24, 9"); a(f"s_add_u32 s28, s28, {WS_H1 + 2048}")
        a("v_add_u32 v9, s28, v9")
        a("s_lshr_b32 s29, s24, 1"); a("s_lshl_b32 s29, s29, 3"); a(f"s_add_u32 s29, s29, {WS_ML}")
        a("v_add_u32 v11, s26, v7"); a("v_lshlrev_b32 v11, 4, v11"); a("v_add_u32 v11, s29, v11")
        a("s_lshl_b32 s27, s3, 2"); a("v_add_u32 v10, s27, v6"); a("v_lshlrev_b32 v10, 2, v10"); a("v_add_u32 v22, 8, v10")
        def loads():
            a("global_load_dwordx4 v[12:15], v9, s[20:21] offset:-2048 sc1")
            a("global_load_dwordx4 v[16:19], v9, s[20:21] offset:2048 sc1")
            a("global_load_dwordx2 v[20:21], v11, s[20:21] sc1")
        self.poll_sentinel("t1", loads, list(range(12, 22)), 24)
        self.stamp(5)
        a("v_mov_b32 v25, v20")
        self.wave_allreduce("v_max_f32", [25], [26], full=False)
        a("v_sub_f32 v27, v20, v25")
        a("v_mul_f32 v27, s56, v27")
        a("v_exp_f32 v27, v27")
        self.nop(1)
        a("ds_bpermute_b32 v28, v10, v27"); a("ds_bpermute_b32 v29, v22, v27")
        a("v_mul_f32 v31, v27, v21")
        self.wave_allreduce("v_add_f32", [31], [26], full=False)
        a("v_rcp_f32 v30, v31")
        self.nop(1)
        a("v_fma_f32 v26, -v31, v30, 1.0"); a("v_fma_f32 v30, v26, v30, v30")
        a("s_waitcnt lgkmcnt(0)")
        a("v_mul_f32 v28, v28, v30"); a("v_mul_f32 v29, v29, v30")
        for e in range(4): a(f"v_mul_f32 v{12+e}, v28, v{12+e}")
        for e in range(4): a(f"v_fma_f32 v{12+e}, v29, v{16+e}, v{12+e}")
        self.nop(2)
        a("v_permlane32_swap_b32 v12, v13"); a("v_permlane32_swap_b32 v14, v15")
        self.nop(1)
        a("v_add_f32 v12, v12, v13"); a("v_add_f32 v14, v14, v15")
        a("v_lshl_add_u32 v16, v7, 2, v6"); a("v_lshlrev_b32 v16, 2, v16")
        a("s_lshl_b32 s27, s3, 9"); a(f"s_add_u32 s27, s27, {L_ACC}")
        a("v_add_u32 v16, s27, v16")
        a("ds_write_b32 v16, v12"); a("ds_write_b32 v16, v14 offset:8")
        a("s_waitcnt lgkmcnt(0)")
        a("s_barrier")
        a("s_cmp_eq_u32 s3, 7"); a("s_cbranch_scc1 L_exit")
        a("v_lshlrev_b32 v17, 3, v1"); a(f"v_add_u32 v17, {L_ACC}, v17")
        for w in range(8):
            a(f"ds_read_b64 v[{32+2*w}:{32+2*w+1}], v17 offset:{w*512}")
        a("v_lshrrev_b32 v18, 4, v1"); a("v_lshlrev_b32 v18, 6, v18")
        a("v_bfe_u32 v19, v1, 1, 2"); a("v_lshl_add_u32 v18, v19, 4, v18")
        a("v_bfe_u32 v19, v1, 3, 1"); a("v_lshl_add_u32 v18, v19, 3, v18")
        a("v_and_b32 v19, 1, v1"); a("v_lshl_add_u32 v18, v19, 2, v18")
        a("s_lshl_b32 s27, s3, 10"); a(f"s_add_u32 s27, s27, {L_PRIV}")
        a("v_add_u32 v18, s27, v18")
        a("v_lshrrev_b32 v19, 4, v1"); a("v_lshlrev_b32 v19, 4, v19"); a("v_add_u32 v19, s27, v19")
        for w in range(1, 8):
            a(f"s_waitcnt lgkmcnt({7-w})")
            a(f"v_add_f32 v32, v32, v{32+2*w}"); a(f"v_add_f32 v33, v33, v{33+2*w}")
        a("v_cvt_pk_bf16_f32 v34, v32, v33")
        a("ds_write_b32 v18, v34")
        a("s_waitcnt lgkmcnt(0)")
        for ks in range(4):
            a(f"ds_read_b128 v[{36+4*ks}:{36+4*ks+3}], v19 offset:{ks*64}")
        a("s_waitcnt lgkmcnt(0)")
        DD = 128
        for ks in range(4):
            for tt in range(4):
                r = BF + (ks * 4 + tt) * 4
                cc = "0" if ks == 0 else f"v[{DD+4*tt}:{DD+4*tt+3}]"
                a(f"v_mfma_f32_16x16x32_bf16 v[{DD+4*tt}:{DD+4*tt+3}], v[{36+4*ks}:{36+4*ks+3}], v[{r}:{r+3}], {cc}")
        a("s_lshl_b32 s27, s22, 2"); a("s_add_u32 s27, s27, s24")
        a("s_lshl_b32 s27, s27, 11"); a(f"s_add_u32 s27, s27, {WS_T1O}")
        a("s_lshl_b32 s28, s3, 8"); a("s_add_u32 s27, s27, s28")
        a("v_lshlrev_b32 v20, 2, v1"); a("v_add_u32 v20, s27, v20")
        self.nop(6)
        self.select4(21, DD, DD+4, DD+8, DD+12)
        self.store_wide(21, 24, 20)
        self.stamp(6)
        a("s_branch L_exit")

    def gen_ffn(self):
        a, L, c = self.a, self.L, self.c
        c("================ FFN slice ================")
        L("L_ffn")
        a("s_sub_u32 s24, s23, 8"); a("s_lshr_b32 s24, s24, 1"); a("s_lshl_b32 s24, s24, 3"); a("s_add_u32 s24, s24, s22")
        a("v_lshrrev_b32 v2, 2, v1")
        a("v_and_b32 v3, 3, v1")
        a("v_bfe_u32 v4, v1, 4, 1")
        a("v_lshlrev_b32 v5, 6, v2"); a("v_lshl_add_u32 v5, v3, 3, v5")
        a("s_lshl_b32 s25, s3, 12"); a("v_add_u32 v5, s25, v5")
        a("v_lshl_add_u32 v6, v4, 5, v5")
        a("v_xor_b32 v4, 1, v4"); a("v_lshl_add_u32 v7, v4, 5, v5")
        a(f"v_mul_u32_u24 v8, {WPITCH}, v2"); a("v_lshl_add_u32 v8, v3, 3, v8")
        a("s_lshl_b32 s25, s3, 7"); a(f"s_add_u32 s25, s25, {L_DOWN}"); a("v_add_u32 v8, s25, v8")
        BG = 64
        BD = 96
        XR = 112
        a("s_cmp_eq_u32 s3, 7"); a("s_cbranch_scc1 L_ffn_nob")
        for ksl in range(2):
            for m in range(2):
                for ct in range(2):
                    for h in range(2):
                        r = BG + ((ksl * 2 + m) * 2 + ct) * 4 + 2 * h
                        a(f"ds_read_b64_tr_b16 v[{r}:{r+1}], v{6+ct} offset:{m*L_UP + ksl*2048 + h*1024}")
            a("s_waitcnt lgkmcnt(0)")
        for tt in range(4):
            for h in range(2):
                r = BD + tt * 4 + 2 * h
                a(f"ds_read_b64_tr_b16 v[{r}:{r+1}], v8 offset:{16*h*WPITCH + tt*32}")
        a(f"v_lshlrev_b32 v9, 4, v1"); a(f"v_add_u32 v9, {L_XR}, v9")
        a(f"ds_read_b128 v[{XR}:{XR+3}], v9")
        a("s_mov_b32 s26, 586")
        a("v_mul_lo_u32 v10, s26, v0"); a("v_lshrrev_b32 v10, 16, v10")
        a("v_mul_u32_u24 v11, 112, v10"); a("v_sub_u32 v11, v0, v11")
        a("v_lshlrev_b32 v12, 14, v10"); a("v_lshl_add_u32 v12, v11, 4, v12")
        a(f"v_add_u32 v12, {WS_T1O}, v12")
        for j in range(8): a(f"s_mov_b32 s{60+j}, {j*2048}")
        a("v_mul_u32_u24 v13, 1792, v10"); a("v_lshl_add_u32 v13, v11, 4, v13"); a(f"v_add_u32 v13, {L_ACC}, v13")
        a("s_mov_b32 s31, 0xff"); a(f"s_mov_b32 s30, {self.spin_max}")
        L("L_ffn_poll")
        for j in range(8):
            a(f"s_bitcmp1_b32 s31, {j}"); a(f"s_cbranch_scc0 L_ffn_nl{j}")
            a(f"buffer_load_dwordx4 v[{16+4*j}:{16+4*j+3}], v12, s[16:19], s{60+j} offen sc1")
            L(f"L_ffn_nl{j}")
        a("s_waitcnt vmcnt(0)")
        for j in range(8):
            r = 16 + 4 * j
            a(f"v_max3_u32 v14, v{r}, v{r+1}, v{r+2}"); a(f"v_max_u32 v14, v14, v{r+3}")
            a("v_cmp_eq_u32 vcc, -1, v14")
            a(f"s_cbranch_vccnz L_ffn_nc{j}")
            a(f"s_bitset0_b32 s31, {j}")
            L(f"L_ffn_nc{j}")
        a("s_cmp_eq_u32 s31, 0"); a("s_cbranch_scc1 L_ffn_got")
        a("s_sub_u32 s30, s30, 1"); a("s_cmp_lg_u32 s30, 0"); a("s_cbranch_scc1 L_ffn_poll")
        L("L_ffn_got")
        self.stamp(5)
        for j in range(1, 8):
            for e in range(4): a(f"v_add_f32 v{16+e}, v{16+e}, v{16+4*j+e}")
        a("ds_write_b128 v13, v[16:19]")
        L("L_ffn_nob")
        a("s_waitcnt lgkmcnt(0)")
        a("s_barrier")
        a("s_cmp_eq_u32 s3, 7"); a("s_cbranch_scc1 L_ffn_w7")
        a("v_lshlrev_b32 v14, 5, v1"); a(f"v_add_u32 v14, {L_ACC}, v14")
        for ps in range(4):
            a(f"ds_read_b128 v[{16+8*ps}:{16+8*ps+3}], v14 offset:{ps*1792}")
            a(f"ds_read_b128 v[{16+8*ps+4}:{16+8*ps+7}], v14 offset:{ps*1792+16}")
        for ps in range(1, 4):
            a(f"s_waitcnt lgkmcnt({2*(3-ps)})")
            for e in range(8): a(f"v_add_f32 v{16+e}, v{16+e}, v{16+8*ps+e}")
        for e in range(4): self.round_bf16_pair(24+e, 16+2*e, 17+2*e, 16+2*e, 17+2*e)
        for e in range(4):
            a(f"v_lshlrev_b32 v{28+2*e}, 16, v{XR+e}"); a(f"v_and_b32 v{29+2*e}, 0xffff0000, v{XR+e}")
        for e in range(8): a(f"v_add_f32 v{16+e}, v{16+e}, v{28+e}")
        for e in range(4): self.round_bf16_pair(24+e, 16+2*e, 17+2*e, 16+2*e, 17+2*e)
        self.layernorm(16, 28, 36, 24)
        a("v_lshrrev_b32 v36, 2, v1"); a("v_lshlrev_b32 v36, 6, v36")
        a("v_and_b32 v37, 1, v1"); a("v_lshl_add_u32 v36, v37, 5, v36")
        a("v_bfe_u32 v37, v1, 1, 1"); a("v_lshl_add_u32 v36, v37, 3, v36")
        a("s_lshl_b32 s27, s3, 10"); a(f"s_add_u32 s27, s27, {L_PRIV}")
        a("v_add_u32 v36, s27, v36")
        a("v_cmp_gt_u32 vcc, 56, v1")
        a("s_and_saveexec_b64 s[32:33], vcc")
        a("ds_write_b64 v36, v[24:25]"); a("ds_write_b64 v36, v[26:27] offset:16")
        a("s_mov_b64 exec, s[32:33]")
        a("v_lshrrev_b32 v37, 4, v1"); a("v_lshlrev_b32 v37, 4, v37")
        a("s_lshl_b32 s28, s3, 7"); a("s_add_u32 s28, s28, s27"); a("v_add_u32 v37, s28, v37")
        a("s_waitcnt lgkmcnt(0)")
        a("ds_read_b128 v[40:43], v37"); a("ds_read_b128 v[44:47], v37 offset:64")
        a("s_waitcnt lgkmcnt(0)")
        DD = 48
        for ksl in range(2):
            for m in range(2):
                for ct in range(2):
                    r = BG + ((ksl * 2 + m) * 2 + ct) * 4
                    d = DD + (m * 2 + ct) * 4
                    cc = "0" if ksl == 0 else f"v[{d}:{d+3}]"
                    a(f"v_mfma_f32_16x16x32_bf16 v[{d}:{d+3}], v[{40+4*ksl}:{40+4*ksl+3}], v[{r}:{r+3}], {cc}")
        GU = L_ACC + 8192
        a("s_lshl_b32 s28, s3, 8"); a(f"s_add_u32 s28, s28, {GU}")
        a("v_lshlrev_b32 v38, 2, v1"); a("v_add_u32 v39, s28, v38")
        self.nop(6)
        self.select4(16, DD, DD+4, DD+8, DD+12)
        a("ds_write_b32 v39, v16")
        L("L_ffn_w7")
        a("s_waitcnt lgkmcnt(0)")
        a("s_barrier")
        a("s_cmp_eq_u32 s3, 7"); a("s_cbranch_scc1 L_exit")
        a(f"v_add_u32 v39, {GU}, v38")
        for w in range(7): a(f"ds_read_b32 v{16+w}, v39 offset:{w*256}")
        a("v_bfe_u32 v40, v1, 2, 2"); a("v_lshlrev_b32 v40, 4, v40")
        a("v_bfe_u32 v41, v1, 4, 1"); a("v_lshl_add_u32 v40, v41, 3, v40")
        a("v_and_b32 v41, 3, v1"); a("v_lshl_add_u32 v40, v41, 1, v40")
        a("v_add_u32 v40, s27, v40")
        a("v_lshrrev_b32 v41, 4, v1"); a("v_lshlrev_b32 v41, 4, v41"); a("v_add_u32 v41, s27, v41")
        for w in range(1, 7):
            a(f"s_waitcnt lgkmcnt({6-w})")
            a(f"v_add_f32 v16, v16, v{16+w}")
        a("v_cvt_pk_bf16_f32 v17, v16, v16")
        a("v_and_b32 v16, 0xffff0000, v17")
        a("v_mov_b32 v17, v16")
        self.nop(2)
        a("v_permlane32_swap_b32 v16, v17")
        self.nop(1)
        k1 = -2.0 * LOG2E * 0.7978845608028654
        a(f"s_mov_b32 s28, {hexf(0.044715)}"); a(f"s_mov_b32 s29, {hexf(k1)}")
        a("v_mul_f32 v18, v16, v16")
        a("v_fma_f32 v18, v18, s28, 1.0")
        a("v_mul_f32 v18, v18, v16")
        a("v_mul_f32 v18, s29, v18")
        a("v_exp_f32 v18, v18")
        self.nop(1)
        a("v_add_f32 v18, 1.0, v18")
        a("v_rcp_f32 v18, v18")
        self.nop(1)
        a("v_mul_f32 v18, v16, v18")
        a("v_cvt_pk_bf16_f32 v18, v18, v18"); a("v_and_b32 v18, 0xffff0000, v18")
        a("v_mul_f32 v18, v18, v17")
        a("v_cvt_pk_bf16_f32 v18, v18, v18")
        a("s_mov_b32 exec_hi, 0")
        a("ds_write_b16 v40, v18")
        a("s_mov_b32 exec_hi, -1")
        a("s_waitcnt lgkmcnt(0)")
        a("ds_read_b128 v[20:23], v41")
        a("s_waitcnt lgkmcnt(0)")
        for tt in range(4):
            a(f"v_mfma_f32_16x16x32_bf16 v[{DD+4*tt}:{DD+4*tt+3}], v[20:23], v[{BD+4*tt}:{BD+4*tt+3}], 0")
        a("s_lshl_b32 s27, s24, 11"); a(f"s_add_u32 s27, s27, {WS_FFO}")
        a("s_lshl_b32 s28, s3, 8"); a("s_add_u32 s27, s27, s28")
        a("v_add_u32 v38, s27, v38")
        self.nop(6)
        self.select4(16, DD, DD+4, DD+8, DD+12)
        self.store_wide(16, 20, 38)
        self.stamp(6)
        a("s_branch L_exit")

    def layernorm(self, X, T, U, OUT):
        a = self.a
        a(f"v_readfirstlane_b32 s34, v{X}")
        a(f"v_mov_b32 v{U}, 0"); a(f"v_mov_b32 v{U+1}, 0")
        a("s_mov_b32 exec_hi, 0x00ffffff")
        a("s_mov_b32 s35, s34")
        for e in range(0, 8, 2): a(f"v_pk_add_f32 v[{T+e}:{T+e+1}], v[{X+e}:{X+e+1}], s[34:35] neg_lo:[0,1] neg_hi:[0,1]")
        a(f"v_pk_add_f32 v[{U+4}:{U+5}], v[{T}:{T+1}], v[{T+2}:{T+3}]"); a(f"v_pk_mul_f32 v[{U+6}:{U+7}], v[{T}:{T+1}], v[{T}:{T+1}]")
        a(f"v_pk_add_f32 v[{U+2}:{U+3}], v[{T+4}:{T+5}], v[{T+6}:{T+7}]"); a(f"v_pk_fma_f32 v[{U+6}:{U+7}], v[{T+2}:{T+3}], v[{T+2}:{T+3}], v[{U+6}:{U+7}]")
        a(f"v_pk_add_f32 v[{U+4}:{U+5}], v[{U+4}:{U+5}], v[{U+2}:{U+3}]"); a(f"v_pk_fma_f32 v[{U+6}:{U+7}], v[{T+4}:{T+5}], v[{T+4}:{T+5}], v[{U+6}:{U+7}]")
        a(f"v_pk_fma_f32 v[{U+6}:{U+7}], v[{T+6}:{T+7}], v[{T+6}:{T+7}], v[{U+6}:{U+7}]")
        a(f"v_add_f32 v{U}, v{U+4}, v{U+5}"); a(f"v_add_f32 v{U+1}, v{U+6}, v{U+7}")
        a("s_mov_b64 exec, -1")
        self.wave_allreduce("v_add_f32", [U, U+1], [U+2, U+3])
        a(f"s_mov_b32 s35, {hexf(1.0/448)}")
        a(f"v_mul_f32 v{U}, s35, v{U}"); a(f"v_mul_f32 v{U+1}, s35, v{U+1}")
        a(f"v_fma_f32 v{U+1}, -v{U}, v{U}, v{U+1}")
        a(f"v_add_f32 v{U}, s34, v{U}")
        a(f"v_max_f32 v{U+1}, 0, v{U+1}")
        self.round_bf16_pair(U+2, U, U+1, U, U+1)
        a(f"v_add_f32 v{U+1}, {hexf(1e-5)}, v{U+1}")
        a(f"v_cvt_pk_bf16_f32 v{U+1}, v{U+1}, v{U+1}"); a(f"v_and_b32 v{U+1}, 0xffff0000, v{U+1}")
        a(f"v_sqrt_f32 v{U+2}, v{U+1}")
        a(f"v_mov_b32 v{U+1}, v{U}")
        for e in range(0, 8, 2): a(f"v_pk_add_f32 v[{T+e}:{T+e+1}], v[{X+e}:{X+e+1}], v[{U}:{U+1}] neg_lo:[0,1] neg_hi:[0,1]")
        a(f"v_cvt_pk_bf16_f32 v{U+2}, v{U+2}, v{U+2}"); a(f"v_and_b32 v{U+2}, 0xffff0000, v{U+2}")
        a(f"v_rcp_f32 v{U+4}, v{U+2}")
        for e in range(4): self.round_bf16_pair(U+3, T+2*e, T+2*e+1, T+2*e, T+2*e+1)
        a(f"v_fma_f32 v{U+5}, -v{U+2}, v{U+4}, 1.0"); a(f"v_fma_f32 v{U+4}, v{U+5}, v{U+4}, v{U+4}"); a(f"v_mov_b32 v{U+5}, v{U+4}")
        for e in range(0, 8, 2): a(f"v_pk_mul_f32 v[{T+e}:{T+e+1}], v[{T+e}:{T+e+1}], v[{U+4}:{U+5}]")
        for e in range(4): a(f"v_cvt_pk_bf16_f32 v{OUT+e}, v{T+2*e}, v{T+2*e+1}")

    def gen_fin(self):
        a, L, c = self.a, self.L, self.c
        c("================ final reduce ================")
        L("L_fin")
        a("s_load_dwordx2 s[36:37], s[0:1], 72")
        a("v_lshrrev_b32 v2, 4, v1")
        a("v_and_b32 v3, 15, v1")
        a("s_lshl_b32 s24, s3, 2"); a("v_add_u32 v4, s24, v2")
        a("v_lshlrev_b32 v4, 11, v4"); a("v_lshl_add_u32 v4, v3, 4, v4")
        a("s_lshl_b32 s25, s22, 8"); a("v_add_u32 v4, s25, v4")
        a(f"v_add_u32 v5, {WS_T1O}, v4"); a(f"v_add_u32 v6, {WS_FFO}, v4"); a(f"v_add_u32 v7, {32*2048}, v6")
        a("v_bfrev_b32 v8, v2"); a("v_lshrrev_b32 v8, 30, v8")
        a("v_lshl_add_u32 v8, v3, 2, v8"); a("v_lshlrev_b32 v8, 2, v8")
        a("s_lshl_b32 s26, s3, 8"); a(f"s_add_u32 s26, s26, {L_ACC}"); a("v_add_u32 v8, s26, v8")
        def red(r):
            self.nop(2)
            a(f"v_permlane32_swap_b32 v{r}, v{r+1}"); a(f"v_permlane32_swap_b32 v{r+2}, v{r+3}")
            self.nop(1)
            a(f"v_add_f32 v{r}, v{r}, v{r+1}"); a(f"v_add_f32 v{r+2}, v{r+2}, v{r+3}")
            self.nop(2)
            a(f"v_permlane16_swap_b32 v{r}, v{r+2}")
            self.nop(1)
            a(f"v_add_f32 v{r}, v{r}, v{r+2}")
        def loads1(): a("global_load_dwordx4 v[12:15], v5, s[20:21] sc1")
        self.poll_sentinel("fin1", loads1, [12, 13, 14, 15], 10)
        red(12)
        a("ds_write_b32 v8, v12")
        a("s_cmp_lt_u32 s3, 6"); a("s_cbranch_scc1 L_fin_two")
        def loads2a(): a("global_load_dwordx4 v[12:15], v6, s[20:21] sc1")
        self.poll_sentinel("fin2a", loads2a, [12, 13, 14, 15], 10)
        a("s_branch L_fin_red")
        L("L_fin_two")
        def loads2b():
            a("global_load_dwordx4 v[12:15], v6, s[20:21] sc1")
            a("global_load_dwordx4 v[16:19], v7, s[20:21] sc1")
        self.poll_sentinel("fin2b", loads2b, list(range(12, 20)), 10)
        for e in range(4): a(f"v_add_f32 v{12+e}, v{12+e}, v{16+e}")
        L("L_fin_red")
        self.stamp(5)
        red(12)
        a("ds_write_b32 v8, v12 offset:2048")
        a("s_waitcnt lgkmcnt(0)")
        a("s_barrier")
        a("s_cmp_lg_u32 s3, 0"); a("s_cbranch_scc1 L_exit")
        a("v_lshlrev_b32 v9, 2, v1"); a(f"v_add_u32 v9, {L_ACC}, v9")
        for w in range(8): a(f"ds_read_b32 v{16+w}, v9 offset:{w*256}")
        a("s_waitcnt lgkmcnt(0)")
        for w in range(8): a(f"ds_read_b32 v{24+w}, v9 offset:{2048+w*256}")
        a("s_lshl_b32 s25, s22, 7"); a(f"s_add_u32 s25, s25, {L_XR}")
        a("v_lshlrev_b32 v10, 1, v1"); a("v_add_u32 v11, s25, v10")
        a("ds_read_u16 v32, v11")
        for w in range(1, 8): a(f"v_add_f32 v16, v16, v{16+w}")
        a("s_waitcnt lgkmcnt(0)")
        for w in range(1, 8): a(f"v_add_f32 v24, v24, v{24+w}")
        a("v_lshlrev_b32 v32, 16, v32")
        self.round_bf16_pair(33, 16, 24, 16, 24)
        a("v_add_f32 v16, v16, v32")
        a("v_cvt_pk_bf16_f32 v33, v16, v16"); a("v_and_b32 v16, 0xffff0000, v33")
        a("v_add_f32 v16, v16, v24")
        a("v_cvt_pk_bf16_f32 v33, v16, v16")
        a("s_lshl_b32 s25, s22, 7"); a("v_add_u32 v10, s25, v10")
        a("global_store_short v10, v33, s[36:37]")
        a("s_cmp_lg_u32 s22, 0"); a("s_cbranch_scc1 L_fin_end")
        a(f"v_mov_b32 v34, {L_XN + 1020}")
        a("ds_read_b32 v35, v34")
        a("s_waitcnt lgkmcnt(0)")
        a("v_mov_b32 v34, 0")
        a("s_mov_b64 exec, 1")
        a("global_store_dword v34, v35, s[20:21] sc1")
        a("s_mov_b64 exec, -1")
        L("L_fin_end")
        self.stamp(6)
        a("s_branch L_exit")

    def gen_helper(self):
        a, L, c = self.a, self.L, self.c
        c("================ helper wave ================")
        L("L_helper")
        if "nosup" in self.exp: a("s_barrier"); a("s_branch L_exit")
        a("s_setprio 3")
        a("s_load_dwordx2 s[56:57], s[0:1], 0")
        a("s_load_dwordx2 s[8:9], s[0:1], 24")
        a("s_and_b32 s24, s23, 7"); a("s_lshr_b32 s25, s23, 3")
        a("s_mul_i32 s26, s25, 112")
        a("s_lshl_b32 s27, s22, 3"); a("s_add_u32 s27, s27, s24"); a("s_lshl_b32 s27, s27, 7")
        a("v_lshrrev_b32 v2, 3, v1"); a("v_add_u32 v3, s26, v2"); a("v_lshlrev_b32 v3, 13, v3")
        a("v_and_b32 v4, 7, v1"); a("v_lshl_add_u32 v3, v4, 4, v3"); a("v_add_u32 v3, s27, v3")
        a("v_lshlrev_b32 v5, 4, v1")
        a("v_mov_b32 v6, 0")
        a("s_waitcnt lgkmcnt(0)")
        a("s_mov_b32 s40, s56"); a("s_mov_b32 s41, s57"); a("s_mov_b32 s42, 896"); a("s_mov_b32 s43, 0x20000")
        a("s_mov_b32 s44, s8"); a("s_mov_b32 s45, s9"); a(f"s_mov_b32 s46, {448*4096*2}"); a("s_mov_b32 s47, 0x20000")
        a("s_load_dword s36, s[20:21], 0x0")
        a("buffer_load_dwordx4 v[8:11], v5, s[40:43], 0 offen")
        WQ = 64
        for i in range(14):
            a(f"s_mov_b32 s28, {i*8*8192}")
            if "nowq" not in self.exp: a(f"buffer_load_dwordx4 v[{WQ+4*i}:{WQ+4*i+3}], v3, s[44:47], s28 offen{self.ntw}")
        a("s_cmp_lg_u32 s23, 0"); a("s_cbranch_scc1 L_h_nocnt")
        a("s_lshl_b32 s28, s22, 8"); a(f"s_add_u32 s28, s28, {WS_CNT}"); a("v_mov_b32 v17, s28")
        a("s_mov_b64 exec, 1")
        a("global_store_dword v17, v6, s[20:21] sc1")
        a("s_mov_b64 exec, -1")
        L("L_h_nocnt")
        a(f"v_mov_b32 v18, {L_QF}"); a("ds_write_b32 v18, v6"); a("ds_write_b32 v18, v6 offset:4")
        a("s_waitcnt lgkmcnt(0)")
        a("s_barrier")
        a("s_waitcnt vmcnt(14)" )
        self.stamp(0)
        a(f"v_add_u32 v18, {L_XR}, v5")
        a("v_cmp_gt_u32 vcc, 56, v1")
        a("s_and_saveexec_b64 s[32:33], vcc")
        a("ds_write_b128 v18, v[8:11]")
        a("s_mov_b64 exec, s[32:33]")
        for e in range(4):
            a(f"v_lshlrev_b32 v{20+2*e}, 16, v{8+e}"); a(f"v_and_b32 v{21+2*e}, 0xffff0000, v{8+e}")
        a("s_mul_i32 s36, s36, 0x9E3779B1"); a("s_add_u32 s36, s36, 0x7F4A7C15")
        a("v_mov_b32 v19, s36"); a(f"v_mov_b32 v18, {L_XN+1020}")
        a("ds_write_b32 v18, v19")
        self.layernorm(20, 28, 36, 44)
        a(f"v_add_u32 v18, {L_XN}, v5")
        a("v_cmp_gt_u32 vcc, 56, v1")
        a("s_and_saveexec_b64 s[32:33], vcc")
        a("ds_write_b128 v18, v[44:47]")
        a("s_mov_b64 exec, s[32:33]")
        a("v_add_u32 v18, s26, v2"); a("v_lshlrev_b32 v18, 1, v18"); a(f"v_add_u32 v18, {L_XN}, v18")
        a("s_waitcnt lgkmcnt(0)")
        for i in range(14): a(f"ds_read_u16 v{48+i}, v18 offset:{i*16}")
        for j in range(8): a(f"v_mov_b32 v{28+j}, 0")
        a("s_waitcnt vmcnt(0) lgkmcnt(0)")
        self.stamp(1)
        for i in range(14):
            a(f"v_lshlrev_b32 v62, 16, v{48+i}")
            for w in range(4):
                a(f"v_dot2c_f32_bf16 v{28+2*w}, v{WQ+4*i+w}, v{48+i}")
                a(f"v_dot2c_f32_bf16 v{28+2*w+1}, v{WQ+4*i+w}, v62")
        self.nop(3)
        for j in range(4): a(f"v_permlane32_swap_b32 v{28+j}, v{32+j}")
        self.nop(1)
        for j in range(4): a(f"v_add_f32 v{28+j}, v{28+j}, v{32+j}")
        self.nop(2)
        for j in range(2): a(f"v_permlane16_swap_b32 v{28+j}, v{30+j}")
        self.nop(1)
        for j in range(2): a(f"v_add_f32 v{28+j}, v{28+j}, v{30+j}")
        self.nop(2)
        for j in range(2): a(f"v_add_f32_dpp v{28+j}, v{28+j}, v{28+j} row_ror:8 row_mask:0xf bank_mask:0xf")
        a("v_mov_b32 v30, v29"); a("v_mov_b32 v29, s36"); a("v_mov_b32 v31, s36")
        a("v_lshlrev_b32 v32, 6, v4")
        a("v_bfe_u32 v33, v1, 5, 1"); a("v_lshl_add_u32 v32, v33, 5, v32")
        a("v_bfe_u32 v33, v1, 4, 1"); a("v_lshl_add_u32 v32, v33, 4, v32")
        a("s_lshl_b32 s28, s2, 9"); a(f"s_add_u32 s28, s28, {WS_QG}"); a("v_add_u32 v32, s28, v32")
        a("v_and_b32 v33, 8, v1"); a("v_cmp_eq_u32 vcc, 0, v33")
        a("s_and_saveexec_b64 s[32:33], vcc")
        a("global_store_dwordx4 v32, v[28:31], s[20:21] sc1")
        a("s_mov_b64 exec, s[32:33]")
        self.stamp(2)
        a("s_getpc_b64 s[44:45]")
        L("L_pc")
        a(f"s_sub_u32 s44, s44, L_pc - {KNAME}"); a("s_subb_u32 s45, s45, 0")
        a("v_lshlrev_b32 v60, 7, v1")
        for i in range(0 if "nopf" in self.exp else self.code_kb // 8):
            a(f"v_cmp_gt_u32 vcc, L_end - {KNAME}, v60")
            a("s_and_saveexec_b64 s[46:47], vcc")
            a(f"global_load_dword v{61+i}, v60, s[44:45]")
            a("s_mov_b64 exec, s[46:47]")
            a("v_add_u32 v60, 0x2000, v60")
        a(f"v_mov_b32 v160, {L_QF}"); a("v_mov_b32 v161, 1")
        a("ds_write_b32 v160, v161 offset:4")
        a("v_mov_b32 v153, s36")
        a("s_branch L_sup_gather")
        L("L_h_resets")
        if "nores" in self.exp.split(","): a("s_branch L_exit")
        a("v_lshlrev_b32 v5, 4, v1")
        a("v_mov_b32 v12, -1"); a("v_mov_b32 v13, -1"); a("v_mov_b32 v14, -1"); a("v_mov_b32 v15, -1")
        a("s_lshl_b32 s28, s2, 11"); a(f"s_add_u32 s28, s28, {WS_H1}"); a("v_add_u32 v16, s28, v5")
        self.rs("global_store_dwordx4 v16, v[12:15], s[20:21] sc1")
        self.rs("global_store_dwordx4 v16, v[12:15], s[20:21] offset:1024 sc1")
        a("s_lshl_b32 s28, s2, 4"); a(f"s_add_u32 s28, s28, {WS_ML}"); a("v_mov_b32 v17, s28")
        a("s_mov_b64 exec, 1")
        self.rs("global_store_dwordx4 v17, v[12:15], s[20:21] sc1")
        a("s_mov_b64 exec, -1")
        a("s_mov_b32 s29, 0")
        a("s_bitcmp1_b32 s23, 0"); a("s_cbranch_scc1 L_h_role_done")
        a("s_cmp_lt_u32 s23, 8"); a("s_cbranch_scc0 L_h_not_t1")
        a("s_mov_b32 s29, 1")
        a("s_lshr_b32 s30, s23, 1"); a("s_lshl_b32 s31, s22, 2"); a("s_add_u32 s30, s30, s31")
        a("s_lshl_b32 s31, s30, 11"); a(f"s_add_u32 s31, s31, {WS_T1O}")
        a("s_branch L_h_reset_role")
        L("L_h_not_t1")
        a("s_cmp_lt_u32 s23, 22"); a("s_cbranch_scc0 L_h_not_ffn")
        a("s_mov_b32 s29, 2")
        a("s_sub_u32 s30, s23, 8"); a("s_lshr_b32 s30, s30, 1"); a("s_lshl_b32 s30, s30, 3"); a("s_add_u32 s30, s30, s22")
        a("s_lshl_b32 s31, s30, 11"); a(f"s_add_u32 s31, s31, {WS_FFO}")
        L("L_h_reset_role")
        a("v_add_u32 v16, s31, v5")
        self.rs("global_store_dwordx4 v16, v[12:15], s[20:21] sc1")
        self.rs("global_store_dwordx4 v16, v[12:15], s[20:21] offset:1024 sc1")
        a("s_branch L_h_role_done")
        L("L_h_not_ffn")
        a("s_cmp_eq_u32 s23, 22"); a("s_cbranch_scc0 L_h_role_done")
        a("s_cmp_lt_u32 s22, 7"); a("s_cbranch_scc0 L_h_role_done")
        a("s_mov_b32 s29, 3")
        L("L_h_role_done")
        a("s_waitcnt vmcnt(0)")
        a("s_lshl_b32 s28, s2, 2"); a(f"s_add_u32 s28, s28, {WS_TOK}"); a("v_mov_b32 v17, s28"); a("v_mov_b32 v18, s36")
        a("s_mov_b64 exec, 1")
        a("global_store_dword v17, v18, s[20:21] sc1")
        a("s_mov_b64 exec, -1")
        a("s_branch L_sup_dma")
        L("L_h_tokens")
        if "notok" in self.exp: a("s_branch L_exit")
        a("s_cmp_eq_u32 s29, 0"); a("s_cbranch_scc1 L_exit")
        a("s_cmp_eq_u32 s29, 1"); a("s_cbranch_scc0 L_h_tok_fin")
        a("v_and_b32 v20, 31, v1"); a("s_lshl_b32 s28, s22, 5"); a("v_add_u32 v20, s28, v20")
        a(f"v_lshlrev_b32 v21, 2, v20"); a(f"v_add_u32 v21, {WS_TOK}, v21")
        self.poll_tag("tok0", 21)
        a("s_branch L_h_end")
        L("L_h_tok_fin")
        a("v_and_b32 v20, 31, v1")
        a("v_lshrrev_b32 v21, 2, v20"); a("v_lshlrev_b32 v21, 5, v21"); a("v_and_b32 v22, 3, v20"); a("v_lshl_add_u32 v21, v22, 1, v21")
        a("v_lshlrev_b32 v21, 2, v21"); a(f"v_add_u32 v21, {WS_TOK}, v21")
        self.poll_tag("tok1", 21)
        a("s_cmp_eq_u32 s29, 3"); a("s_cbranch_scc0 L_h_end")
        a("v_min_u32 v20, 55, v1")
        a("v_and_b32 v21, 7, v20"); a("v_lshlrev_b32 v21, 5, v21"); a("v_lshrrev_b32 v22, 3, v20"); a("v_lshl_add_u32 v21, v22, 1, v21")
        a("v_add_u32 v21, 8, v21"); a("v_lshlrev_b32 v21, 2, v21"); a(f"v_add_u32 v21, {WS_TOK}, v21")
        self.poll_tag("tok2", 21)
        L("L_h_end")
        self.stamp(4)
        a("s_branch L_exit")


    def gen_support(self):
        a, L, c = self.a, self.L, self.c
        c("================ support waves 9..11 (and the helper after its q slice) ================")
        L("L_support")
        if "nosup" in self.exp: a("s_barrier"); a("s_branch L_exit")
        a("s_setprio 3")
        a("s_waitcnt lgkmcnt(0)")
        a("s_load_dword s36, s[20:21], 0x0")
        a("s_barrier")
        a("s_waitcnt lgkmcnt(0)")
        a("s_mul_i32 s36, s36, 0x9E3779B1"); a("s_add_u32 s36, s36, 0x7F4A7C15")
        a("v_mov_b32 v153, s36")
        a(f"v_mov_b32 v160, {L_QF}"); a(f"s_mov_b32 s37, {self.spin_max * 16}")
        L("L_sup_wait")
        a("ds_read_b32 v161, v160 offset:4"); a("s_waitcnt lgkmcnt(0)"); a("v_readfirstlane_b32 s42, v161")
        a("s_cmp_lg_u32 s42, 0"); a("s_cbranch_scc1 L_sup_gather")
        a("s_sleep 2")
        a("s_sub_u32 s37, s37, 1"); a("s_cmp_lg_u32 s37, 0"); a("s_cbranch_scc1 L_sup_wait")
        L("L_sup_gather")
        a("s_load_dwordx2 s[60:61], s[0:1], 32")
        a("s_load_dwordx4 s[64:67], s[0:1], 48")
        a("s_load_dwordx2 s[62:63], s[0:1], 64")
        NSUP = 4
        NCB = 2
        a("s_sub_u32 s28, s3, 8")
        a("s_lshl_b32 s27, s22, 5"); a("s_add_u32 s27, s27, s28"); a("s_lshl_b32 s27, s27, 9"); a(f"s_add_u32 s27, s27, {WS_QG}")
        a("v_lshrrev_b32 v150, 5, v1"); a("v_lshlrev_b32 v150, 12, v150")
        a("v_and_b32 v152, 31, v1"); a("v_lshl_add_u32 v150, v152, 4, v150"); a("v_add_u32 v150, s27, v150")
        a("v_add_u32 v151, 0x2000, v150")
        a("s_lshl_b32 s27, s28, 7"); a(f"s_add_u32 s27, s27, {L_Q}")
        a("v_lshlrev_b32 v152, 2, v152"); a("v_add_u32 v152, s27, v152")
        a(f"s_mov_b32 s37, {self.spin_max}")
        a("s_mov_b32 s42, 15")
        if "noqp" in self.exp: a("s_branch L_qdone")
        L("L_qpoll")
        for j in range(4):
            k, hf = j >> 1, j & 1
            a(f"s_bitcmp1_b32 s42, {j}"); a(f"s_cbranch_scc0 L_qnl{j}")
            a(f"global_load_dwordx4 v[{40+4*j}:{43+4*j}], {'v150' if hf == 0 else 'v151'}, s[20:21] offset:{k*NSUP*512} sc1")
            L(f"L_qnl{j}")
        a("s_waitcnt vmcnt(0)")
        for j in range(4):
            a(f"v_xor_b32 v154, v{41+4*j}, v153")
            a(f"v_bitop3_b32 v154, v154, v{43+4*j}, v153 bitop3:0xf6")
            a("v_cmp_ne_u32 vcc, 0, v154")
            a(f"s_cbranch_vccnz L_qnc{j}")
            a(f"s_bitset0_b32 s42, {j}")
            L(f"L_qnc{j}")
        a("s_cmp_eq_u32 s42, 0"); a("s_cbranch_scc1 L_qdone")
        a("s_sub_u32 s37, s37, 1"); a("s_cmp_lg_u32 s37, 0"); a("s_cbranch_scc1 L_qpoll")
        L("L_qdone")
        for k in range(NCB):
            b = 40 + 8 * k
            a(f"v_add_f32 v{b}, v{b}, v{b+4}"); a(f"v_add_f32 v{b+2}, v{b+2}, v{b+6}")
            a(f"v_mov_b32 v{b+4}, v{b}"); a(f"v_mov_b32 v{b+6}, v{b+2}")
        self.nop(2)
        for k in range(NCB):
            b = 40 + 8 * k
            a(f"v_permlane32_swap_b32 v{b}, v{b+4}"); a(f"v_permlane32_swap_b32 v{b+2}, v{b+6}")
        self.nop(1)
        for k in range(NCB):
            b = 40 + 8 * k
            a(f"v_add_f32 v{b}, v{b}, v{b+4}"); a(f"v_add_f32 v{b+2}, v{b+2}, v{b+6}")
            a(f"v_cvt_pk_bf16_f32 v{b}, v{b}, v{b+2}")
            a(f"ds_write_b32 v152, v{b} offset:{k*NSUP*128}")
        a("s_waitcnt lgkmcnt(0)")
        self.stamp(5)
        a(f"v_mov_b32 v160, {L_QF}"); a("v_mov_b32 v161, 1")
        a("s_mov_b64 exec, 1")
        a("ds_add_u32 v160, v161")
        a("s_mov_b64 exec, -1")
        if "nob1" not in self.exp: a("s_barrier")
        self.stamp(3)
        a("s_cmp_eq_u32 s3, 8"); a("s_cbranch_scc1 L_h_resets")
        L("L_sup_dma")
        if "nodma" not in self.exp: self.gen_weight_dma()
        a("s_waitcnt vmcnt(0)")
        a("s_cmp_eq_u32 s3, 8"); a("s_cbranch_scc1 L_h_tokens")
        self.stamp(4)
        a("s_branch L_exit")

    def gen_weight_dma(self):
        a, L = self.a, self.L
        NSUP = 4
        a("s_bitcmp1_b32 s23, 0"); a("s_cbranch_scc1 L_wd_done")
        a("s_cmp_lt_u32 s23, 22"); a("s_cbranch_scc0 L_wd_done")
        a("s_sub_u32 s34, s3, 8")
        a("v_lshlrev_b32 v144, 4, v1")
        a("s_cmp_lt_u32 s23, 8"); a("s_cbranch_scc0 L_wd_ffn")
        rows = 128 // NSUP
        a("s_mov_b32 s88, s60"); a("s_mov_b32 s89, s61"); a(f"s_mov_b32 s90, {4096*448*2}"); a("s_mov_b32 s91, 0x20000")
        a("s_lshr_b32 s30, s23, 1"); a("s_lshl_b32 s31, s22, 2"); a("s_add_u32 s30, s30, s31")
        a("s_lshl_b32 s30, s30, 7"); a(f"s_mul_i32 s31, s34, {rows}"); a("s_add_u32 s30, s30, s31")
        a("s_mul_i32 s38, s30, 896")
        a(f"s_mul_i32 s39, s31, {WPITCH}")
        a(f"s_mov_b32 s49, {rows}")
        self.dma_rows("s[88:91]", "v144", "s49")
        a("s_branch L_wd_done")
        L("L_wd_ffn")
        a("s_sub_u32 s30, s23, 8"); a("s_lshr_b32 s30, s30, 1"); a("s_lshl_b32 s30, s30, 3"); a("s_add_u32 s30, s30, s22")
        a("v_lshrrev_b32 v145, 2, v1"); a("v_bfe_u32 v146, v1, 4, 1"); a("v_lshlrev_b32 v146, 1, v146")
        a("v_and_b32 v147, 3, v1"); a("v_xor_b32 v147, v147, v146")
        a("v_mul_u32_u24 v145, 3584, v145"); a("v_lshl_add_u32 v145, v147, 4, v145")
        for m, (plo, base) in enumerate(((64, L_GATE), (66, L_UP))):
            a(f"s_mov_b32 s88, s{plo}"); a(f"s_mov_b32 s89, s{plo+1}"); a(f"s_mov_b32 s90, {448*1792*2}"); a("s_mov_b32 s91, 0x20000")
            a(f"s_mul_i32 s38, s34, {16*3584}"); a("s_lshl_b32 s31, s30, 6"); a("s_add_u32 s38, s38, s31")
            a("s_lshl_b32 s39, s34, 10"); a(f"s_add_u32 s39, s39, {base}")
            a("s_mov_b32 s49, s34")
            lab = self.newlabel("gu")
            L(lab)
            a("s_mov_b32 m0, s39")
            a(f"s_add_u32 s39, s39, {NSUP*1024}")
            a(f"buffer_load_dwordx4 v145, s[88:91], s38 offen{self.ntw} lds")
            a(f"s_add_u32 s38, s38, {NSUP*16*3584}")
            a(f"s_add_u32 s49, s49, {NSUP}"); a("s_cmp_lt_u32 s49, 28"); a(f"s_cbranch_scc1 {lab}")
        drows = 32 // NSUP
        a("s_mov_b32 s88, s62"); a("s_mov_b32 s89, s63"); a(f"s_mov_b32 s90, {1792*448*2}"); a("s_mov_b32 s91, 0x20000")
        a("s_lshl_b32 s31, s30, 5"); a(f"s_mul_i32 s49, s34, {drows}"); a("s_add_u32 s31, s31, s49")
        a("s_mul_i32 s38, s31, 896")
        a(f"s_mul_i32 s39, s49, {WPITCH}"); a(f"s_add_u32 s39, s39, {L_DOWN}")
        a(f"s_mov_b32 s49, {drows}")
        self.dma_rows("s[88:91]", "v144", "s49")
        L("L_wd_done")

    def dma_rows(self, srd, vaddr, cnt):
        a = self.a
        a("s_mov_b32 exec_hi, 0x00ffffff")
        lab = self.newlabel("rows")
        self.L(lab)
        a("s_mov_b32 m0, s39")
        a(f"s_add_u32 s39, s39, {WPITCH}")
        a(f"buffer_load_dwordx4 {vaddr}, {srd}, s38 offen{self.ntw} lds")
        a("s_add_u32 s38, s38, 896")
        a("s_waitcnt vmcnt(48)")
        a(f"s_sub_u32 {cnt}, {cnt}, 1"); a(f"s_cmp_lg_u32 {cnt}, 0"); a(f"s_cbranch_scc1 {lab}")
        a("s_mov_b64 exec, -1")

    def poll_tag(self, name, addr):
        a = self.a
        lab = self.newlabel(name); done = self.newlabel(name + "d")
        a(f"s_mov_b32 s37, {self.spin_max}")
        self.L(lab)
        a(f"global_load_dword v23, v{addr}, s[20:21] sc1")
        a("s_waitcnt vmcnt(0)")
        a("v_cmp_ne_u32 vcc, s36, v23")
        a(f"s_cbranch_vccz {done}")
        a("s_sleep 8")
        a("s_sub_u32 s37, s37, 1"); a("s_cmp_lg_u32 s37, 0"); a(f"s_cbranch_scc1 {lab}")
        self.L(done)

def emit(path, **kw):
    g = Gen(**kw)
    body = g.build()
    hdr = open("cdna_kernels/" + KNAME[:-7] + ".s.ref").read().split("\n")
    top = [l for l in hdr if l.startswith(";") and "@launch" not in l and "Override launch" not in l and "grid=ceil" not in l]
    top = top[:15]
    out = top + [f"; @launch grid=(256,1,1) block=(768,1,1) lds={LDS_TOTAL}",
                 '.amdgcn_target "amdgcn-amd-amdhsa--gfx950"', ".text", f".globl {KNAME}", ".p2align 8",
                 f".type {KNAME},@function", f"{KNAME}:"]
    out += body
    out += ['.section .rodata,"a"', ".p2align 6", f".amdhsa_kernel {KNAME}",
            "  .amdhsa_next_free_vgpr 168", "  .amdhsa_next_free_sgpr 102", "  .amdhsa_accum_offset 168",
            "  .amdhsa_group_segment_fixed_size 0", "  .amdhsa_kernarg_size 96", "  .amdhsa_user_sgpr_count 2",
            "  .amdhsa_user_sgpr_kernarg_segment_ptr 1", "  .amdhsa_system_sgpr_workgroup_id_x 1",
            "  .amdhsa_float_denorm_mode_32 3", "  .amdhsa_float_denorm_mode_16_64 3",
            ".end_amdhsa_kernel", ""]
    open(path, "w").write("\n".join(out))

if __name__ == "__main__":
    import argparse
    ap = argparse.ArgumentParser()
    ap.add_argument("-o", default="main.s")
    ap.add_argument("--stamps", type=int, default=0)
    ap.add_argument("-S", type=int, default=5)
    ap.add_argument("--exp", default="")
    ap.add_argument("--NS", type=int, default=4)
    ap.add_argument("--TH", type=int, default=4)
    ap.add_argument("--taper", type=int, default=0)
    ap.add_argument("--pipe", type=int, default=1)
    ap.add_argument("--rot", type=int, default=11)
    args = ap.parse_args()
    emit(args.o, S=args.S, NS=args.NS, TH=args.TH, taper=args.taper, pipe=args.pipe, rot=args.rot, dbg_stamps=args.stamps, exp=args.exp)
    print("LDS", LDS_TOTAL)
```

```python
import sys

KNAME = "sequential_preLN__gqa_block_cached__geglu_ffn__decode_kernel"

WS_G   = 0x0
WS_QG  = 0x1000
WS_TOK = 0x30000
WS_CNT = 0x38000
WS_H1  = 0x40000
WS_ML  = 0xC0000
WS_T1O = 0xC4000
WS_HO  = 0xD4000
WS_FFO = 0xD8000
WS_DBG = 0x100000
WS_SIZE_USED = 0x200000

WPITCH = 928
L_W    = 0
L_GATE = 0
L_UP   = 28672
L_DOWN = 57344
L_Q    = 118784
L_XR   = L_Q + 1024
L_XN   = L_XR + 1024
L_M    = L_XN + 1024
L_L    = L_M + 64
L_QF   = L_M + 192
L_SCR  = L_M + 256
L_ACC  = L_SCR
L_PRIV = L_SCR + 16384
LDS_TOTAL = L_SCR + 32768

BLOCK = 768
SENT = 0xFFFFFFFF
LOG2E = 1.4426950408889634
import struct
def f2u(x): return struct.unpack("<I", struct.pack("<f", x))[0]
def hexf(x): return "0x%08x" % f2u(x)

class Gen:
    def __init__(self, S=5, NS=4, TH=3, taper=0, tailpf=1, pipe=1, rot=11, early_reset=1, code_kb=16, exp="", dbg_stamps=False, nt_stream=True, nt_w=True, spin_max=20000):
        self.o = []
        self.S = S
        self.NS = NS
        self.early_reset = early_reset
        self.rot = rot
        self.pipe = pipe
        self.tailpf = tailpf
        self.taper = taper
        self.TH = TH
        self.exp = exp
        self.code_kb = code_kb
        self.stamps = dbg_stamps
        self.nt = " nt" if nt_stream else ""
        self.ntw = " nt" if nt_w else ""
        self.spin_max = spin_max
        self.lab = 0
    def a(self, s): self.o.append("  " + s)
    def L(self, s): self.o.append(s + ":")
    def c(self, s): self.o.append("  ; " + s)
    def newlabel(self, base):
        self.lab += 1
        return f"L_{base}_{self.lab}"
    def rs(self, ins):
        if "noreset" not in self.exp: self.a(ins)
    def nop(self, n):
        while n > 0:
            k = min(n, 16); self.a(f"s_nop {k-1}"); n -= k

    def row_allreduce(self, op, regs):
        for sh in (8, 4, 2, 1):
            if len(regs) < 3: self.nop(2 - (len(regs) - 1) if len(regs) > 0 else 2)
            for r in regs:
                self.a(f"{op}_dpp v{r}, v{r}, v{r} row_ror:{sh} row_mask:0xf bank_mask:0xf")
    def swap_allreduce(self, op, regs, tmps, kind):
        self.nop(1)
        for r, t in zip(regs, tmps): self.a(f"v_mov_b32 v{t}, v{r}")
        self.nop(2)
        for r, t in zip(regs, tmps): self.a(f"v_permlane{kind}_swap_b32 v{r}, v{t}")
        self.nop(1)
        for r, t in zip(regs, tmps): self.a(f"{op} v{r}, v{r}, v{t}")
    def wave_allreduce(self, op, regs, tmps, full=True):
        self.nop(2)
        self.row_allreduce(op, regs)
        self.swap_allreduce(op, regs, tmps, 16)
        if full: self.swap_allreduce(op, regs, tmps, 32)

    def stamp(self, idx):
        if not self.stamps: return
        self.a(f"s_memrealtime s[{70+2*idx}:{71+2*idx}]")
    def stamp_init(self):
        if not self.stamps: return
        for i in range(8): self.a(f"s_mov_b32 s{70+2*i}, 0")
    def stamp_flush(self):
        if not self.stamps: return
        a = self.a
        if self.stamps == 2:
            a("s_memrealtime s[92:93]")
            a("s_load_dwordx2 s[94:95], s[0:1], 80")
            a("s_waitcnt lgkmcnt(0)")
            a("s_lshl_b32 s98, s2, 4"); a("s_add_u32 s98, s98, s3")
            a("s_mov_b32 s99, 0")
            a(f"s_cmp_eq_u32 s98, {22*16}"); a("s_cbranch_scc1 L_dbgw")
            a("s_mov_b32 s99, 32")
            a(f"s_cmp_eq_u32 s98, {1*16+7}"); a("s_cbranch_scc0 L_end")
            self.L("L_dbgw")
            for i in range(7):
                a(f"s_sub_u32 s96, s{70+2*i}, s84"); a(f"v_mov_b32 v{8+i}, s96")
            a("s_sub_u32 s96, s92, s84"); a("v_mov_b32 v15, s96")
            a("v_mov_b32 v16, s99")
            a("s_mov_b64 exec, 1")
            a("global_store_dwordx4 v16, v[8:11], s[94:95]")
            a("global_store_dwordx4 v16, v[12:15], s[94:95] offset:16")
            return
        a("s_waitcnt lgkmcnt(0)")
        for i in range(8): a(f"v_mov_b32 v{8+i}, s{70+2*i}")
        a("s_lshl_b32 s98, s2, 9"); a("s_lshl_b32 s99, s3, 5"); a("s_add_u32 s98, s98, s99"); a(f"s_add_u32 s98, s98, {WS_DBG}")
        a("v_mov_b32 v16, s98")
        a("s_mov_b64 exec, 1")
        a("global_store_dwordx4 v16, v[8:11], s[20:21]")
        a("global_store_dwordx4 v16, v[12:15], s[20:21] offset:16")

    def build(self):
        a, L, c = self.a, self.L, self.c
        Q, KR, VR, ACC, FR, DD, ST, T = 8, 40, 72, 104, 120, 136, 140, 144
        R0, R1, PW, PR = 156, 157, 158, 159
        PT, PREG = FR, FR + 8
        c("---------------- entry ----------------")
        a("s_cmp_ge_u32 s2, 256")
        a("s_cbranch_scc1 L_end")
        self.stamp_init(); self.stamp(7)
        a("s_load_dwordx4 s[4:7], s[0:1], 8")
        a("s_load_dwordx2 s[20:21], s[0:1], 88")
        a("v_lshrrev_b32 v1, 6, v0")
        a("s_lshr_b32 s22, s2, 5")
        a("v_readfirstlane_b32 s3, v1")
        a("s_and_b32 s23, s2, 31")
        a("v_and_b32 v1, 63, v0")
        a("s_cmp_eq_u32 s3, 8")
        a("s_cbranch_scc1 L_helper")
        a("s_cmp_gt_u32 s3, 8")
        a("s_cbranch_scc1 L_support")
        c("---------------- streamer prologue ----------------")
        a("v_lshrrev_b32 v2, 3, v1")
        a("v_lshlrev_b32 v2, 9, v2")
        a("v_and_b32 v7, 7, v1")
        a("v_lshl_add_u32 v2, v7, 4, v2")
        a("v_add_u32 v5, 0x1000, v2")
        a("v_and_b32 v3, 31, v1")
        a("v_lshlrev_b32 v3, 4, v3")
        a("v_lshrrev_b32 v6, 5, v1")
        a("v_lshl_add_u32 v3, v6, 10, v3")
        if "lin" in self.exp.split(","):
            a("v_lshlrev_b32 v3, 4, v1"); a("v_mov_b32 v2, v3"); a("v_add_u32 v5, 0x1000, v2")
        a("v_add_u32 v4, 0x1000, v3")
        a("s_lshl_b32 s24, s23, 3")
        a("s_add_u32 s24, s24, s3")
        a("s_lshl_b32 s40, s24, 13")
        a("s_lshl_b32 s25, s22, 24")
        a("s_waitcnt lgkmcnt(0)")
        a("s_add_u32 s8, s4, s25"); a("s_addc_u32 s9, s5, 0"); a("s_mov_b32 s10, 0x1000000"); a("s_mov_b32 s11, 0x20000")
        a("s_add_u32 s12, s6, s25"); a("s_addc_u32 s13, s7, 0"); a("s_mov_b32 s14, 0x1000000"); a("s_mov_b32 s15, 0x20000")
        a("s_barrier")
        NS = self.NS
        RND = 256
        def first_load(i):
            if "lin" in self.exp.split(","):
                j = i & 7; reg = KR + 4 * i if i < 8 else VR + 4 * (i - 8)
                a(f"buffer_load_dwordx4 v[{reg}:{reg+3}], {'v3' if j < 4 else 'v4'}, {'s[8:11]' if i < 8 else 's[12:15]'}, s40 offen offset:{(j&3)*1024}{self.nt}")
                return
            if i < 8:
                cb, hf = i >> 1, i & 1
                a(f"buffer_load_dwordx4 v[{KR+4*i}:{KR+4*i+3}], {'v2' if hf == 0 else 'v5'}, s[8:11], s40 offen offset:{cb*128}{self.nt}")
            else:
                j = i - 8; iq, b = j >> 1, j & 1
                a(f"buffer_load_dwordx4 v[{VR+4*j}:{VR+4*j+3}], {'v3' if iq < 2 else 'v4'}, s[12:15], s40 offen offset:{(iq&1)*2048 + b*512}{self.nt}")
        def issue_k():
            for i in range(8): first_load(i)
        def issue_v():
            for i in range(8): first_load(8 + i)
        def k_pair(b):
            first_load(2 * b); first_load(2 * b + 1)
        def v_pair(q):
            first_load(8 + 2 * q); first_load(8 + 2 * q + 1)
        NFIRST = self.TH if self.TH else 16
        for i in range(NFIRST): first_load(i)
        FIRST_TILE = True
        a("s_lshl_b32 s46, s22, 8"); a(f"s_add_u32 s46, s46, {WS_CNT}")
        a("s_add_u32 s46, s20, s46"); a("s_addc_u32 s47, s21, 0")
        a("s_mov_b32 s43, 1")
        a("s_mov_b32 s59, 0")
        a("s_mov_b32 s38, s23"); a("s_mov_b32 s39, 0")
        a("s_mov_b32 s50, 0xffff0000"); a("s_mov_b32 s51, 0")
        a("s_mov_b32 s52, 0"); a("s_mov_b32 s53, 0x0000ffff")
        a("s_mov_b32 s54, 0"); a("s_mov_b32 s55, 0xffff0000")
        a("s_mov_b32 s57, 0x05040100"); a("s_mov_b32 s58, 0x07060302")
        a(f"s_mov_b32 s56, {hexf(LOG2E/16)}")
        a("s_mov_b32 s16, s20"); a("s_mov_b32 s17, s21"); a(f"s_mov_b32 s18, {WS_SIZE_USED}"); a("s_mov_b32 s19, 0x20000")
        a("s_lshl_b32 s26, s3, 12"); a(f"s_add_u32 s26, s26, {L_SCR}")
        a(f"v_bfe_u32 v{PW}, v1, 3, 1"); a(f"v_lshlrev_b32 v{PW}, 5, v{PW}")
        a(f"v_bfe_u32 v{T}, v1, 1, 1"); a(f"v_lshl_add_u32 v{PW}, v{T}, 4, v{PW}")
        a(f"v_bfe_u32 v{T}, v1, 2, 1"); a(f"v_lshl_add_u32 v{PW}, v{T}, 3, v{PW}")
        a(f"v_and_b32 v{T}, 1, v1"); a(f"v_lshl_add_u32 v{PW}, v{T}, 1, v{PW}")
        a(f"v_add_u32 v{PW}, s26, v{PW}")
        a(f"v_lshlrev_b32 v{PR}, 4, v6"); a(f"v_add_u32 v{PR}, s26, v{PR}")
        a(f"v_lshrrev_b32 v{T}, 4, v1"); a("v_and_b32 v6, 7, v1"); a(f"v_xor_b32 v6, v6, v{T}")
        a("v_lshlrev_b32 v6, 4, v6")
        a(f"v_lshrrev_b32 v{T+1}, 3, v1"); a(f"v_lshl_add_u32 v6, v{T+1}, 7, v6"); a("v_add_u32 v6, s26, v6")
        a("v_xor_b32 v7, 64, v6"); a("v_add_u32 v7, 0x400, v7")
        a(f"v_bfe_u32 v{R0}, v1, 1, 3"); a(f"v_xor_b32 v{R0}, v{R0}, v{T}")
        a(f"v_lshlrev_b32 v{R0}, 4, v{R0}")
        a(f"v_and_b32 v{T+1}, 15, v1"); a(f"v_lshl_add_u32 v{R0}, v{T+1}, 7, v{R0}"); a(f"v_add_u32 v{R0}, s26, v{R0}")
        a(f"v_xor_b32 v{R1}, 64, v{R0}")
        a(f"v_and_b32 v{T+1}, 1, v1"); a(f"v_lshlrev_b32 v{T+1}, 9, v{T+1}")
        a(f"v_lshl_add_u32 v{T+1}, v{T}, 4, v{T+1}"); a(f"v_add_u32 v{T+1}, {L_Q}, v{T+1}")
        a(f"v_mov_b32 v{ST}, 0xff800000"); a(f"v_mov_b32 v{ST+1}, 0xff800000"); a(f"v_mov_b32 v{ST+2}, 0"); a(f"v_mov_b32 v{ST+3}, 0")
        for j in range(16): a(f"v_mov_b32 v{ACC+j}, 0")
        a(f"v_mov_b32 v160, {L_QF}"); a("s_mov_b32 s42, 0")
        for i in range(NFIRST, 16):
            if self.TH and i >= self.TH:
                a(f"s_cmp_eq_u32 s42, 4"); a(f"s_cbranch_scc1 L_fl{i}")
                a("ds_read_b32 v161, v160"); a("s_waitcnt lgkmcnt(0)"); a("v_readfirstlane_b32 s42, v161")
                a(f"s_cmp_eq_u32 s42, 4"); a(f"s_cbranch_scc1 L_fl{i}")
                a(f"s_waitcnt vmcnt({self.TH-1})")
                L(f"L_fl{i}")
            first_load(i)
        self.stamp(0)
        a(f"s_mov_b32 s37, {self.spin_max * 16}")
        L("L_qwait")
        if "noq" in self.exp: a("s_branch L_qready")
        a("s_cmp_eq_u32 s42, 4"); a("s_cbranch_scc1 L_qready")
        a("s_sleep 1")
        a("ds_read_b32 v161, v160"); a("s_waitcnt lgkmcnt(0)"); a("v_readfirstlane_b32 s42, v161")
        a("s_sub_u32 s37, s37, 1"); a("s_cmp_lg_u32 s37, 0"); a("s_cbranch_scc1 L_qwait")
        L("L_qready")
        if "nob1" not in self.exp: a("s_barrier")
        self.stamp(1)
        for st in range(8):
            a(f"ds_read_b128 v[{Q+4*st}:{Q+4*st+3}], v{T+1} offset:{st*64}")
        a("s_waitcnt lgkmcnt(0)")
        c("---------------- tile loop ----------------")
        L("L_proc")
        def claim():
            a(f"s_cmp_lt_u32 s43, {self.S}"); a("s_cbranch_scc1 L_static")
            a("s_mov_b32 s41, 0x10000")
            a(f"s_cmp_lt_u32 s3, {8 - NS}"); a("s_cbranch_scc1 L_claimed")
            if self.taper:
                a("s_cmp_ge_u32 s3, 6"); a("s_cbranch_scc1 L_doclaim")
                a(f"s_cmp_ge_u32 s59, {2048 - self.taper}"); a("s_cbranch_scc1 L_claimed")
                L("L_doclaim")
            a("s_mov_b32 s41, 1")
            a("s_atomic_add s41, s[46:47], 0x0 glc")
            a("s_branch L_claimed")
            L("L_static")
            a(f"s_add_u32 s39, s39, {RND}")
            a(f"s_add_u32 s38, s38, {self.rot}"); a("s_and_b32 s38, s38, 31")
            a("s_lshl_b32 s48, s38, 3"); a("s_add_u32 s48, s48, s3"); a("s_add_u32 s48, s48, s39")
            a(f"s_sub_u32 s41, s48, {self.S * RND}")
            L("L_claimed")
            a("s_add_u32 s43, s43, 1")
            if "altprio" in self.exp:
                a("s_lshr_b32 s42, s3, 2"); a("s_add_u32 s42, s42, s43"); a("s_bitcmp1_b32 s42, 0")
                a("s_cbranch_scc1 L_prio1"); a("s_setprio 0"); a("s_branch L_priod"); L("L_prio1"); a("s_setprio 1"); L("L_priod")
        if self.pipe: claim()
        def kmfma(b):
            for e in range(2):
                st = 2 * b + e
                f = FR + 8 * (b & 1) + 4 * e
                src_c = "0" if st == 0 else f"v[{DD}:{DD+3}]"
                a(f"v_mfma_f32_16x16x32_bf16 v[{DD}:{DD+3}], v[{Q+4*st}:{Q+4*st+3}], v[{f}:{f+3}], {src_c}")
        for b in range(4):
            a(f"s_waitcnt vmcnt({6 if self.pipe == 2 else 14 - 2*b})")
            buf = (b & 1) * 2048
            if "nok" not in self.exp:
                a(f"ds_write_b128 v6, v[{KR+8*b}:{KR+8*b+3}] offset:{buf}")
                a(f"ds_write_b128 v7, v[{KR+8*b+4}:{KR+8*b+7}] offset:{buf}")
                f = FR + 8 * (b & 1)
                a(f"ds_read_b128 v[{f}:{f+3}], v{R0} offset:{buf}")
                a(f"ds_read_b128 v[{f+4}:{f+7}], v{R1} offset:{buf}")
            if self.pipe == 2:
                a("s_cmp_eq_u32 s43, 2"); a(f"s_cbranch_scc1 L_nov{b}")
                v_pair(b)
                L(f"L_nov{b}")
            if b > 0 and "nok" not in self.exp:
                a("s_waitcnt lgkmcnt(4)")
                kmfma(b - 1)
        a("s_waitcnt lgkmcnt(0)")
        kmfma(3)
        def resolve():
            a(f"s_add_u32 s41, s41, {self.S * RND}")
            a("s_cmp_lt_u32 s41, 2048")
            a("s_cselect_b32 s10, 0x1000000, 0"); a("s_cselect_b32 s14, 0x1000000, 0"); a("s_cselect_b32 s40, s41, 0")
            a("s_mov_b32 s59, s41")
            a("s_lshl_b32 s40, s40, 13")
        if self.pipe == 1:
            resolve()
            issue_k()
        elif self.pipe == 2:
            resolve()
            self.nop(2)
        else:
            self.nop(8)
        if "nosm" in self.exp: a("s_branch L_aftersm")
        a(f"v_cvt_pk_bf16_f32 v{T}, v{DD}, v{DD+1}")
        a(f"v_lshlrev_b32 v{T+1}, 16, v{T}"); a(f"v_and_b32 v{T+2}, 0xffff0000, v{T}")
        a(f"v_mov_b32 v{T+3}, v{T+1}"); a(f"v_mov_b32 v{T+4}, v{T+2}")
        self.nop(1)
        self.row_allreduce("v_max_f32", [T+3, T+4])
        a(f"v_max_f32 v{T+3}, v{T+3}, v{ST}"); a(f"v_max_f32 v{T+4}, v{T+4}, v{ST+1}")
        a(f"v_cmp_gt_f32 vcc, v{T+3}, v{ST}")
        a(f"v_cmp_gt_f32 s[44:45], v{T+4}, v{ST+1}")
        a("s_or_b64 vcc, vcc, s[44:45]")
        a("s_cbranch_vccz L_norescale")
        a(f"v_sub_f32 v{T+5}, v{ST}, v{T+3}"); a(f"v_sub_f32 v{T+6}, v{ST+1}, v{T+4}")
        a(f"v_mul_f32 v{T+5}, s56, v{T+5}"); a(f"v_mul_f32 v{T+6}, s56, v{T+6}")
        a(f"v_exp_f32 v{T+5}, v{T+5}"); a(f"v_exp_f32 v{T+6}, v{T+6}")
        a(f"v_mov_b32 v{ST}, v{T+3}"); a(f"v_mov_b32 v{ST+1}, v{T+4}")
        for j in range(8):
            a(f"v_mul_f32 v{ACC+j}, v{T+5}, v{ACC+j}"); a(f"v_mul_f32 v{ACC+8+j}, v{T+6}, v{ACC+8+j}")
        a(f"v_mul_f32 v{ST+2}, v{T+5}, v{ST+2}"); a(f"v_mul_f32 v{ST+3}, v{T+6}, v{ST+3}")
        L("L_norescale")
        a(f"v_mul_f32 v{T+5}, s56, v{ST}"); a(f"v_mul_f32 v{T+6}, s56, v{ST+1}")
        a(f"v_fma_f32 v{T+1}, v{T+1}, s56, -v{T+5}"); a(f"v_fma_f32 v{T+2}, v{T+2}, s56, -v{T+6}")
        a(f"v_exp_f32 v{T+1}, v{T+1}"); a(f"v_exp_f32 v{T+2}, v{T+2}")
        self.nop(1)
        a(f"v_cvt_pk_bf16_f32 v{T}, v{T+1}, v{T+2}")
        a(f"v_add_f32 v{ST+2}, v{ST+2}, v{T+1}"); a(f"v_add_f32 v{ST+3}, v{ST+3}, v{T+2}")
        a("s_mov_b64 exec, 0xffff")
        a(f"ds_write_b16 v{PW}, v{T}"); a(f"ds_write_b16_d16_hi v{PW}, v{T} offset:4")
        a("s_mov_b64 exec, -1")
        a(f"ds_read_b128 v[{PREG}:{PREG+3}], v{PR}"); a(f"ds_read_b128 v[{PREG+4}:{PREG+7}], v{PR} offset:32")
        L("L_aftersm")
        if not self.pipe:
            a("s_waitcnt lgkmcnt(0)")
            claim()
        for iq in range(4):
            la, lb = VR + 8 * iq, VR + 8 * iq + 4
            a(f"s_waitcnt vmcnt({6 if self.pipe == 2 else (14 if self.pipe else 6) - 2*iq})")
            if "nopv" not in self.exp:
                for w in range(4):
                    a(f"v_perm_b32 v{PT+2*w}, v{lb+w}, v{la+w}, s57")
                    a(f"v_perm_b32 v{PT+2*w+1}, v{lb+w}, v{la+w}, s58")
            if self.pipe == 2: k_pair(iq)
            if "nopv" in self.exp: continue
            if self.pipe and iq in (0, 2): a(f"s_waitcnt lgkmcnt({1 if iq == 0 else 0})")
            pr = PREG + 4 * (iq >> 1) + 2 * (iq & 1)
            for h in range(2):
                for j in range(8):
                    a(f"v_dot2c_f32_bf16 v{ACC+8*h+j}, v{PT+j}, v{pr+h}")
        if self.pipe:
            if self.pipe == 1: issue_v()
            a("s_cmp_lg_u32 s10, 0"); a("s_cbranch_scc1 L_proc")
        else:
            a("s_waitcnt lgkmcnt(0)")
            resolve()
            a("s_cmp_eq_u32 s10, 0"); a("s_cbranch_scc1 L_stream_done")
            issue_k(); issue_v()
            a("s_branch L_proc")
        L("L_stream_done")
        a("s_waitcnt vmcnt(0)")
        self.stamp(3)
        if self.tailpf:
            a("s_cmp_lg_u32 s3, 0"); a("s_cbranch_scc1 L_nopf")
            a("s_getpc_b64 s[44:45]")
            L("L_pc2")
            a(f"v_lshlrev_b32 v{T}, 7, v1")
            a(f"v_cmp_gt_u32 vcc, L_helper - L_pc2, v{T}")
            a("s_and_saveexec_b64 s[46:47], vcc")
            a(f"global_load_dword v{T+1}, v{T}, s[44:45]")
            a("s_mov_b64 exec, s[46:47]")
            L("L_nopf")
        self.nop(2)
        self.row_allreduce("v_add_f32", [ST+2, ST+3])
        a("s_lshl_b32 s27, s3, 2"); a(f"s_add_u32 s27, s27, {L_M}")
        a(f"v_mov_b32 v{T}, s27")
        a("s_mov_b64 exec, 1")
        a(f"ds_write2_b32 v{T}, v{ST}, v{ST+1} offset0:0 offset1:8")
        a(f"ds_write2_b32 v{T}, v{ST+2}, v{ST+3} offset0:16 offset1:24")
        a("s_mov_b64 exec, -1")
        if "notail" in self.exp: a("s_branch L_exit")
        c("---------------- merge inside the workgroup ----------------")
        self.nop(3)
        for j in range(8): a(f"v_permlane32_swap_b32 v{ACC+j}, v{ACC+8+j}")
        self.nop(1)
        for j in range(8): a(f"v_add_f32 v{ACC+j}, v{ACC+j}, v{ACC+8+j}")
        a("s_lshl_b32 s27, s3, 12"); a(f"s_add_u32 s27, s27, {L_SCR + 1024}")
        a("v_lshlrev_b32 v24, 5, v1"); a("v_add_u32 v24, s27, v24")
        a(f"ds_write_b128 v24, v[{ACC}:{ACC+3}]")
        a(f"ds_write_b128 v24, v[{ACC+4}:{ACC+7}] offset:16")
        a("s_waitcnt lgkmcnt(0)")
        a("s_barrier")
        a("s_cmp_gt_u32 s3, 1"); a("s_cbranch_scc1 L_roles")
        a("s_lshl_b32 s27, s3, 5"); a(f"s_add_u32 s27, s27, {L_M}")
        a("v_mov_b32 v25, s27")
        a("ds_read_b128 v[8:11], v25"); a("ds_read_b128 v[12:15], v25 offset:16")
        a("ds_read_b128 v[16:19], v25 offset:64"); a("ds_read_b128 v[20:23], v25 offset:80")
        a("v_lshlrev_b32 v24, 4, v0"); a(f"v_add_u32 v25, {L_SCR + 1024}, v24")
        for w in range(8):
            a(f"ds_read_b128 v[{28+4*w}:{28+4*w+3}], v25 offset:{w*4096}")
        a("s_lshl_b32 s27, s2, 11"); a(f"s_add_u32 s27, s27, {WS_H1}")
        a("v_add_u32 v24, s27, v24")
        a("s_waitcnt lgkmcnt(10)")
        a("v_max3_f32 v60, v8, v9, v10"); a("v_max3_f32 v60, v60, v11, v12"); a("v_max3_f32 v60, v60, v13, v14"); a("v_max_f32 v60, v60, v15")
        a("v_mul_f32 v61, s56, v60")
        for w in range(8): a(f"v_fma_f32 v{8+w}, v{8+w}, s56, -v61")
        for w in range(8): a(f"v_exp_f32 v{8+w}, v{8+w}")
        a("s_waitcnt lgkmcnt(7)")
        for e in range(4): a(f"v_mul_f32 v{28+e}, v8, v{28+e}")
        for w in range(1, 8):
            a(f"s_waitcnt lgkmcnt({7-w})")
            for e in range(4):
                a(f"v_fma_f32 v{28+e}, v{8+w}, v{28+4*w+e}, v{28+e}")
        a("global_store_dwordx4 v24, v[28:31], s[20:21] sc1")
        a("v_mul_f32 v61, v8, v16")
        for w in range(1, 8): a(f"v_fma_f32 v61, v{8+w}, v{16+w}, v61")
        a("s_lshl_b32 s27, s2, 4"); a("s_lshl_b32 s28, s3, 3"); a("s_add_u32 s27, s27, s28"); a(f"s_add_u32 s27, s27, {WS_ML}")
        a("v_mov_b32 v24, s27")
        a("s_mov_b64 exec, 1")
        a("global_store_dwordx2 v24, v[60:61], s[20:21] sc1")
        a("s_mov_b64 exec, -1")
        c("---------------- role dispatch ----------------")
        L("L_roles")
        self.stamp(4)
        a("s_bitcmp1_b32 s23, 0"); a("s_cbranch_scc1 L_exit")
        a("s_cmp_lt_u32 s23, 8"); a("s_cbranch_scc1 L_t1")
        a("s_cmp_lt_u32 s23, 22"); a("s_cbranch_scc1 L_ffn")
        a("s_cmp_lg_u32 s23, 22"); a("s_cbranch_scc1 L_exit")
        a("s_cmp_lt_u32 s22, 7"); a("s_cbranch_scc1 L_fin")
        a("s_branch L_exit")
        self.gen_t1(); self.gen_ffn(); self.gen_fin(); self.gen_helper(); self.gen_support()
        L("L_exit")
        self.stamp_flush()
        L("L_end")
        a("s_endpgm")
        return self.o

    def poll_sentinel(self, name, loads, regs, tmp, cnt="s30", mask_exec=None):
        a = self.a
        lab = self.newlabel(name)
        a(f"s_mov_b32 {cnt}, {self.spin_max}")
        self.L(lab)
        loads()
        a("s_waitcnt vmcnt(0)")
        rs = list(regs)
        first = True
        while rs:
            if first:
                if len(rs) >= 3:
                    a(f"v_max3_u32 v{tmp}, v{rs[0]}, v{rs[1]}, v{rs[2]}"); rs = rs[3:]
                elif len(rs) == 2:
                    a(f"v_max_u32 v{tmp}, v{rs[0]}, v{rs[1]}"); rs = []
                else:
                    a(f"v_mov_b32 v{tmp}, v{rs[0]}"); rs = []
                first = False
            elif len(rs) >= 2:
                a(f"v_max3_u32 v{tmp}, v{tmp}, v{rs[0]}, v{rs[1]}"); rs = rs[2:]
            else:
                a(f"v_max_u32 v{tmp}, v{tmp}, v{rs[0]}"); rs = []
        a(f"v_cmp_eq_u32 vcc, -1, v{tmp}")
        done = self.newlabel(name + "_done")
        a(f"s_cbranch_vccz {done}")
        a(f"s_sub_u32 {cnt}, {cnt}, 1")
        a(f"s_cmp_lg_u32 {cnt}, 0")
        a(f"s_cbranch_scc1 {lab}")
        self.L(done)

    def poll_incr(self, name, items, tmp, cnt="s30", msk="s31"):
        a = self.a
        lab = self.newlabel(name); done = self.newlabel(name + "_done")
        n = len(items)
        a(f"s_mov_b32 {msk}, {(1 << n) - 1}"); a(f"s_mov_b32 {cnt}, {self.spin_max}")
        self.L(lab)
        for j, (ins, regs) in enumerate(items):
            a(f"s_bitcmp1_b32 {msk}, {j}"); a(f"s_cbranch_scc0 {lab}_nl{j}")
            a(ins)
            self.L(f"{lab}_nl{j}")
        a("s_waitcnt vmcnt(0)")
        for j, (ins, regs) in enumerate(items):
            rs = list(regs)
            if len(rs) == 4:
                a(f"v_max3_u32 v{tmp}, v{rs[0]}, v{rs[1]}, v{rs[2]}"); a(f"v_max_u32 v{tmp}, v{tmp}, v{rs[3]}")
            elif len(rs) == 2:
                a(f"v_max_u32 v{tmp}, v{rs[0]}, v{rs[1]}")
            a(f"v_cmp_eq_u32 vcc, -1, v{tmp}")
            a(f"s_cbranch_vccnz {lab}_nc{j}")
            a(f"s_bitset0_b32 {msk}, {j}")
            self.L(f"{lab}_nc{j}")
        a(f"s_cmp_eq_u32 {msk}, 0"); a(f"s_cbranch_scc1 {done}")
        a(f"s_sub_u32 {cnt}, {cnt}, 1"); a(f"s_cmp_lg_u32 {cnt}, 0"); a(f"s_cbranch_scc1 {lab}")
        self.L(done)

    def select4(self, dst, d0, d1, d2, d3):
        a = self.a
        a(f"v_cndmask_b32 v{dst}, v{d0}, v{d1}, s[50:51]")
        a(f"v_cndmask_b32 v{dst}, v{dst}, v{d2}, s[52:53]")
        a(f"v_cndmask_b32 v{dst}, v{dst}, v{d3}, s[54:55]")

    def store_wide(self, src, tmp, addr):
        a = self.a
        self.nop(2)
        for j in range(4): a(f"v_mov_b32_dpp v{tmp+j}, v{src} quad_perm:[{j},{j},{j},{j}] row_mask:0xf bank_mask:0xf")
        a("s_mov_b32 exec_lo, 0x11111111"); a("s_mov_b32 exec_hi, 0x11111111")
        a(f"global_store_dwordx4 v{addr}, v[{tmp}:{tmp+3}], s[20:21] sc1")
        a("s_mov_b64 exec, -1")

    def round_bf16_pair(self, dst_pk, x0, x1, o0=None, o1=None):
        a = self.a
        a(f"v_cvt_pk_bf16_f32 v{dst_pk}, v{x0}, v{x1}")
        if o0 is not None: a(f"v_lshlrev_b32 v{o0}, 16, v{dst_pk}")
        if o1 is not None: a(f"v_and_b32 v{o1}, 0xffff0000, v{dst_pk}")

    def gen_t1(self):
        a, L, c = self.a, self.L, self.c
        c("================ T1: softmax combine + wo slice ================")
        L("L_t1")
        a("s_lshr_b32 s24, s23, 1")
        a("v_lshrrev_b32 v2, 2, v1")
        a(f"v_mul_u32_u24 v2, {WPITCH}, v2")
        a("v_and_b32 v3, 3, v1")
        a("v_lshl_add_u32 v2, v3, 3, v2")
        a("s_lshl_b32 s25, s3, 7")
        a("v_add_u32 v2, s25, v2")
        a(f"v_add_u32 v3, {64*WPITCH}, v2")
        BF = 64
        a("s_cmp_eq_u32 s3, 7"); a("s_cbranch_scc1 L_t1_nob")
        for ks in range(4):
            for tt in range(4):
                for h in range(2):
                    r = BF + ((ks * 4 + tt) * 2 + h) * 2
                    base = "v2" if ks < 2 else "v3"
                    off = (32 * (ks & 1) + 16 * h) * WPITCH + tt * 32
                    a(f"ds_read_b64_tr_b16 v[{r}:{r+1}], {base} offset:{off}")
            a("s_waitcnt lgkmcnt(0)")
        L("L_t1_nob")
        a("s_lshl_b32 s26, s22, 5")
        a("v_lshrrev_b32 v6, 5, v1")
        a("v_and_b32 v7, 31, v1")
        a("s_lshl_b32 s27, s3, 2"); a("s_add_u32 s27, s27, s26")
        a("v_add_u32 v8, s27, v6")
        a("v_lshlrev_b32 v9, 11, v8")
        a("v_lshl_add_u32 v9, v7, 4, v9")
        a("s_lshl_b32 s28, s24, 9"); a(f"s_add_u32 s28, s28, {WS_H1 + 2048}")
        a("v_add_u32 v9, s28, v9")
        a("s_lshr_b32 s29, s24, 1"); a("s_lshl_b32 s29, s29, 3"); a(f"s_add_u32 s29, s29, {WS_ML}")
        a("v_add_u32 v11, s26, v7"); a("v_lshlrev_b32 v11, 4, v11"); a("v_add_u32 v11, s29, v11")
        a("s_lshl_b32 s27, s3, 2"); a("v_add_u32 v10, s27, v6"); a("v_lshlrev_b32 v10, 2, v10"); a("v_add_u32 v22, 8, v10")
        self.poll_incr("t1", [("global_load_dwordx4 v[12:15], v9, s[20:21] offset:-2048 sc1", [12, 13, 14, 15]),
                              ("global_load_dwordx4 v[16:19], v9, s[20:21] offset:2048 sc1", [16, 17, 18, 19]),
                              ("global_load_dwordx2 v[20:21], v11, s[20:21] sc1", [20, 21])], 24)
        self.stamp(5)
        a("v_mov_b32 v25, v20")
        self.wave_allreduce("v_max_f32", [25], [26], full=False)
        a("v_sub_f32 v27, v20, v25")
        a("v_mul_f32 v27, s56, v27")
        a("v_exp_f32 v27, v27")
        self.nop(1)
        a("ds_bpermute_b32 v28, v10, v27"); a("ds_bpermute_b32 v29, v22, v27")
        a("v_mul_f32 v31, v27, v21")
        self.wave_allreduce("v_add_f32", [31], [26], full=False)
        a("v_rcp_f32 v30, v31")
        self.nop(1)
        a("v_fma_f32 v26, -v31, v30, 1.0"); a("v_fma_f32 v30, v26, v30, v30")
        a("s_waitcnt lgkmcnt(0)")
        a("v_mul_f32 v28, v28, v30"); a("v_mul_f32 v29, v29, v30")
        for e in range(4): a(f"v_mul_f32 v{12+e}, v28, v{12+e}")
        for e in range(4): a(f"v_fma_f32 v{12+e}, v29, v{16+e}, v{12+e}")
        self.nop(2)
        a("v_permlane32_swap_b32 v12, v13"); a("v_permlane32_swap_b32 v14, v15")
        self.nop(1)
        a("v_add_f32 v12, v12, v13"); a("v_add_f32 v14, v14, v15")
        a("v_lshl_add_u32 v16, v7, 2, v6"); a("v_lshlrev_b32 v16, 2, v16")
        a("s_lshl_b32 s27, s3, 9"); a(f"s_add_u32 s27, s27, {L_ACC}")
        a("v_add_u32 v16, s27, v16")
        a("ds_write_b32 v16, v12"); a("ds_write_b32 v16, v14 offset:8")
        a("s_waitcnt lgkmcnt(0)")
        a("s_barrier")
        a("s_cmp_eq_u32 s3, 7"); a("s_cbranch_scc1 L_exit")
        a("v_lshlrev_b32 v17, 3, v1"); a(f"v_add_u32 v17, {L_ACC}, v17")
        for w in range(8):
            a(f"ds_read_b64 v[{32+2*w}:{32+2*w+1}], v17 offset:{w*512}")
        a("v_lshrrev_b32 v18, 4, v1"); a("v_lshlrev_b32 v18, 6, v18")
        a("v_bfe_u32 v19, v1, 1, 2"); a("v_lshl_add_u32 v18, v19, 4, v18")
        a("v_bfe_u32 v19, v1, 3, 1"); a("v_lshl_add_u32 v18, v19, 3, v18")
        a("v_and_b32 v19, 1, v1"); a("v_lshl_add_u32 v18, v19, 2, v18")
        a("s_lshl_b32 s27, s3, 10"); a(f"s_add_u32 s27, s27, {L_PRIV}")
        a("v_add_u32 v18, s27, v18")
        a("v_lshrrev_b32 v19, 4, v1"); a("v_lshlrev_b32 v19, 4, v19"); a("v_add_u32 v19, s27, v19")
        for w in range(1, 8):
            a(f"s_waitcnt lgkmcnt({7-w})")
            a(f"v_add_f32 v32, v32, v{32+2*w}"); a(f"v_add_f32 v33, v33, v{33+2*w}")
        a("v_cvt_pk_bf16_f32 v34, v32, v33")
        a("ds_write_b32 v18, v34")
        a("s_waitcnt lgkmcnt(0)")
        for ks in range(4):
            a(f"ds_read_b128 v[{36+4*ks}:{36+4*ks+3}], v19 offset:{ks*64}")
        a("s_waitcnt lgkmcnt(0)")
        DD = 128
        for ks in range(4):
            for tt in range(4):
                r = BF + (ks * 4 + tt) * 4
                cc = "0" if ks == 0 else f"v[{DD+4*tt}:{DD+4*tt+3}]"
                a(f"v_mfma_f32_16x16x32_bf16 v[{DD+4*tt}:{DD+4*tt+3}], v[{36+4*ks}:{36+4*ks+3}], v[{r}:{r+3}], {cc}")
        a("s_lshl_b32 s27, s22, 2"); a("s_add_u32 s27, s27, s24")
        a("s_lshl_b32 s27, s27, 11"); a(f"s_add_u32 s27, s27, {WS_T1O}")
        a("s_lshl_b32 s28, s3, 8"); a("s_add_u32 s27, s27, s28")
        a("v_lshlrev_b32 v20, 2, v1"); a("v_add_u32 v20, s27, v20")
        self.nop(6)
        self.select4(21, DD, DD+4, DD+8, DD+12)
        self.store_wide(21, 24, 20)
        self.stamp(6)
        a("s_branch L_exit")

    def gen_ffn(self):
        a, L, c = self.a, self.L, self.c
        c("================ FFN slice ================")
        L("L_ffn")
        a("s_sub_u32 s24, s23, 8"); a("s_lshr_b32 s24, s24, 1"); a("s_lshl_b32 s24, s24, 3"); a("s_add_u32 s24, s24, s22")
        a("v_lshrrev_b32 v2, 2, v1")
        a("v_and_b32 v3, 3, v1")
        a("v_bfe_u32 v4, v1, 4, 1")
        a("v_lshlrev_b32 v5, 6, v2"); a("v_lshl_add_u32 v5, v3, 3, v5")
        a("s_lshl_b32 s25, s3, 12"); a("v_add_u32 v5, s25, v5")
        a("v_lshl_add_u32 v6, v4, 5, v5")
        a("v_xor_b32 v4, 1, v4"); a("v_lshl_add_u32 v7, v4, 5, v5")
        a(f"v_mul_u32_u24 v8, {WPITCH}, v2"); a("v_lshl_add_u32 v8, v3, 3, v8")
        a("s_lshl_b32 s25, s3, 7"); a(f"s_add_u32 s25, s25, {L_DOWN}"); a("v_add_u32 v8, s25, v8")
        BG = 64
        BD = 96
        HN = L_PRIV + 7 * 1024
        a("s_lshl_b32 s27, s3, 10"); a(f"s_add_u32 s27, s27, {L_PRIV}")
        a("s_cmp_eq_u32 s3, 7"); a("s_cbranch_scc1 L_ffn_ln")
        for ksl in range(2):
            for m in range(2):
                for ct in range(2):
                    for h in range(2):
                        r = BG + ((ksl * 2 + m) * 2 + ct) * 4 + 2 * h
                        a(f"ds_read_b64_tr_b16 v[{r}:{r+1}], v{6+ct} offset:{m*L_UP + ksl*2048 + h*1024}")
            a("s_waitcnt lgkmcnt(0)")
        for tt in range(4):
            for h in range(2):
                r = BD + tt * 4 + 2 * h
                a(f"ds_read_b64_tr_b16 v[{r}:{r+1}], v8 offset:{16*h*WPITCH + tt*32}")
        a("v_lshrrev_b32 v37, 4, v1"); a("v_lshlrev_b32 v37, 4, v37")
        a("s_lshl_b32 s28, s3, 7"); a(f"s_add_u32 s28, s28, {HN}"); a("v_add_u32 v37, s28, v37")
        a("s_branch L_ffn_bc")
        L("L_ffn_ln")
        a("v_lshlrev_b32 v12, 5, v1"); a(f"v_add_u32 v12, {WS_HO}, v12")
        a("v_lshrrev_b32 v36, 2, v1"); a("v_lshlrev_b32 v44, 6, v36")
        a("v_and_b32 v37, 1, v1"); a("v_lshl_add_u32 v44, v37, 5, v44")
        a("v_bfe_u32 v37, v1, 1, 1"); a("v_lshl_add_u32 v44, v37, 3, v44")
        a(f"v_add_u32 v44, {HN}, v44")
        a("s_mov_b32 exec_hi, 0x00ffffff")
        def loads():
            a("global_load_dwordx4 v[16:19], v12, s[20:21] sc1")
            a("global_load_dwordx4 v[20:23], v12, s[20:21] offset:16 sc1")
        self.poll_sentinel("ffn", loads, list(range(16, 24)), 14)
        a("s_mov_b64 exec, -1")
        self.stamp(5)
        self.layernorm(16, 28, 36, 24)
        a("s_mov_b32 exec_hi, 0x00ffffff")
        a("ds_write_b64 v44, v[24:25]"); a("ds_write_b64 v44, v[26:27] offset:16")
        a("s_mov_b64 exec, -1")
        L("L_ffn_bc")
        a("s_waitcnt lgkmcnt(0)")
        a("s_barrier")
        a("s_cmp_eq_u32 s3, 7"); a("s_cbranch_scc1 L_ffn_w7")
        a("ds_read_b128 v[40:43], v37"); a("ds_read_b128 v[44:47], v37 offset:64")
        a("s_waitcnt lgkmcnt(0)")
        DD = 48
        for ksl in range(2):
            for m in range(2):
                for ct in range(2):
                    r = BG + ((ksl * 2 + m) * 2 + ct) * 4
                    d = DD + (m * 2 + ct) * 4
                    cc = "0" if ksl == 0 else f"v[{d}:{d+3}]"
                    a(f"v_mfma_f32_16x16x32_bf16 v[{d}:{d+3}], v[{40+4*ksl}:{40+4*ksl+3}], v[{r}:{r+3}], {cc}")
        GU = L_ACC + 8192
        a("s_lshl_b32 s28, s3, 8"); a(f"s_add_u32 s28, s28, {GU}")
        a("v_lshlrev_b32 v38, 2, v1"); a("v_add_u32 v39, s28, v38")
        self.nop(6)
        self.select4(16, DD, DD+4, DD+8, DD+12)
        a("ds_write_b32 v39, v16")
        L("L_ffn_w7")
        a("s_waitcnt lgkmcnt(0)")
        a("s_barrier")
        a("s_cmp_eq_u32 s3, 7"); a("s_cbranch_scc1 L_exit")
        a(f"v_add_u32 v39, {GU}, v38")
        for w in range(7): a(f"ds_read_b32 v{16+w}, v39 offset:{w*256}")
        a("v_bfe_u32 v40, v1, 2, 2"); a("v_lshlrev_b32 v40, 4, v40")
        a("v_bfe_u32 v41, v1, 4, 1"); a("v_lshl_add_u32 v40, v41, 3, v40")
        a("v_and_b32 v41, 3, v1"); a("v_lshl_add_u32 v40, v41, 1, v40")
        a("v_add_u32 v40, s27, v40")
        a("v_lshrrev_b32 v41, 4, v1"); a("v_lshlrev_b32 v41, 4, v41"); a("v_add_u32 v41, s27, v41")
        for w in range(1, 7):
            a(f"s_waitcnt lgkmcnt({6-w})")
            a(f"v_add_f32 v16, v16, v{16+w}")
        a("v_cvt_pk_bf16_f32 v17, v16, v16")
        a("v_and_b32 v16, 0xffff0000, v17")
        a("v_mov_b32 v17, v16")
        self.nop(2)
        a("v_permlane32_swap_b32 v16, v17")
        self.nop(1)
        k1 = -2.0 * LOG2E * 0.7978845608028654
        a(f"s_mov_b32 s28, {hexf(0.044715)}"); a(f"s_mov_b32 s29, {hexf(k1)}")
        a("v_mul_f32 v18, v16, v16")
        a("v_fma_f32 v18, v18, s28, 1.0")
        a("v_mul_f32 v18, v18, v16")
        a("v_mul_f32 v18, s29, v18")
        a("v_exp_f32 v18, v18")
        self.nop(1)
        a("v_add_f32 v18, 1.0, v18")
        a("v_rcp_f32 v18, v18")
        self.nop(1)
        a("v_mul_f32 v18, v16, v18")
        a("v_cvt_pk_bf16_f32 v18, v18, v18"); a("v_and_b32 v18, 0xffff0000, v18")
        a("v_mul_f32 v18, v18, v17")
        a("v_cvt_pk_bf16_f32 v18, v18, v18")
        a("s_mov_b32 exec_hi, 0")
        a("ds_write_b16 v40, v18")
        a("s_mov_b32 exec_hi, -1")
        a("s_waitcnt lgkmcnt(0)")
        a("ds_read_b128 v[20:23], v41")
        a("s_waitcnt lgkmcnt(0)")
        for tt in range(4):
            a(f"v_mfma_f32_16x16x32_bf16 v[{DD+4*tt}:{DD+4*tt+3}], v[20:23], v[{BD+4*tt}:{BD+4*tt+3}], 0")
        a("s_lshl_b32 s27, s24, 11"); a(f"s_add_u32 s27, s27, {WS_FFO}")
        a("s_lshl_b32 s28, s3, 8"); a("s_add_u32 s27, s27, s28")
        a("v_add_u32 v38, s27, v38")
        self.nop(6)
        self.select4(16, DD, DD+4, DD+8, DD+12)
        self.store_wide(16, 20, 38)
        self.stamp(6)
        a("s_branch L_exit")

    def layernorm(self, X, T, U, OUT):
        a = self.a
        a(f"v_readfirstlane_b32 s34, v{X}")
        a(f"v_mov_b32 v{U}, 0"); a(f"v_mov_b32 v{U+1}, 0")
        a("s_mov_b32 exec_hi, 0x00ffffff")
        a("s_mov_b32 s35, s34")
        for e in range(0, 8, 2): a(f"v_pk_add_f32 v[{T+e}:{T+e+1}], v[{X+e}:{X+e+1}], s[34:35] neg_lo:[0,1] neg_hi:[0,1]")
        a(f"v_pk_add_f32 v[{U+4}:{U+5}], v[{T}:{T+1}], v[{T+2}:{T+3}]"); a(f"v_pk_mul_f32 v[{U+6}:{U+7}], v[{T}:{T+1}], v[{T}:{T+1}]")
        a(f"v_pk_add_f32 v[{U+2}:{U+3}], v[{T+4}:{T+5}], v[{T+6}:{T+7}]"); a(f"v_pk_fma_f32 v[{U+6}:{U+7}], v[{T+2}:{T+3}], v[{T+2}:{T+3}], v[{U+6}:{U+7}]")
        a(f"v_pk_add_f32 v[{U+4}:{U+5}], v[{U+4}:{U+5}], v[{U+2}:{U+3}]"); a(f"v_pk_fma_f32 v[{U+6}:{U+7}], v[{T+4}:{T+5}], v[{T+4}:{T+5}], v[{U+6}:{U+7}]")
        a(f"v_pk_fma_f32 v[{U+6}:{U+7}], v[{T+6}:{T+7}], v[{T+6}:{T+7}], v[{U+6}:{U+7}]")
        a(f"v_add_f32 v{U}, v{U+4}, v{U+5}"); a(f"v_add_f32 v{U+1}, v{U+6}, v{U+7}")
        a("s_mov_b64 exec, -1")
        self.wave_allreduce("v_add_f32", [U, U+1], [U+2, U+3])
        a(f"s_mov_b32 s35, {hexf(1.0/448)}")
        a(f"v_mul_f32 v{U}, s35, v{U}"); a(f"v_mul_f32 v{U+1}, s35, v{U+1}")
        a(f"v_fma_f32 v{U+1}, -v{U}, v{U}, v{U+1}")
        a(f"v_add_f32 v{U}, s34, v{U}")
        a(f"v_max_f32 v{U+1}, 0, v{U+1}")
        self.round_bf16_pair(U+2, U, U+1, U, U+1)
        a(f"v_add_f32 v{U+1}, {hexf(1e-5)}, v{U+1}")
        a(f"v_cvt_pk_bf16_f32 v{U+1}, v{U+1}, v{U+1}"); a(f"v_and_b32 v{U+1}, 0xffff0000, v{U+1}")
        a(f"v_sqrt_f32 v{U+2}, v{U+1}")
        a(f"v_mov_b32 v{U+1}, v{U}")
        for e in range(0, 8, 2): a(f"v_pk_add_f32 v[{T+e}:{T+e+1}], v[{X+e}:{X+e+1}], v[{U}:{U+1}] neg_lo:[0,1] neg_hi:[0,1]")
        a(f"v_cvt_pk_bf16_f32 v{U+2}, v{U+2}, v{U+2}"); a(f"v_and_b32 v{U+2}, 0xffff0000, v{U+2}")
        a(f"v_rcp_f32 v{U+4}, v{U+2}")
        for e in range(4): self.round_bf16_pair(U+3, T+2*e, T+2*e+1, T+2*e, T+2*e+1)
        a(f"v_fma_f32 v{U+5}, -v{U+2}, v{U+4}, 1.0"); a(f"v_fma_f32 v{U+4}, v{U+5}, v{U+4}, v{U+4}"); a(f"v_mov_b32 v{U+5}, v{U+4}")
        for e in range(0, 8, 2): a(f"v_pk_mul_f32 v[{T+e}:{T+e+1}], v[{T+e}:{T+e+1}], v[{U+4}:{U+5}]")
        for e in range(4): a(f"v_cvt_pk_bf16_f32 v{OUT+e}, v{T+2*e}, v{T+2*e+1}")

    def gen_fin(self):
        a, L, c = self.a, self.L, self.c
        c("================ final reduce ================")
        L("L_fin")
        a("s_load_dwordx2 s[36:37], s[0:1], 72")
        a("v_lshrrev_b32 v2, 4, v1")
        a("v_and_b32 v3, 15, v1")
        a("s_lshl_b32 s24, s3, 2"); a("v_add_u32 v4, s24, v2")
        a("v_lshlrev_b32 v4, 11, v4"); a("v_lshl_add_u32 v4, v3, 4, v4")
        a("s_lshl_b32 s25, s22, 8"); a("v_add_u32 v4, s25, v4")
        a(f"v_add_u32 v5, {WS_T1O}, v4"); a(f"v_add_u32 v6, {WS_FFO}, v4"); a(f"v_add_u32 v7, {32*2048}, v6")
        a("v_bfrev_b32 v8, v2"); a("v_lshrrev_b32 v8, 30, v8")
        a("v_lshl_add_u32 v8, v3, 2, v8"); a("v_lshlrev_b32 v8, 2, v8")
        a("s_lshl_b32 s26, s3, 8"); a(f"s_add_u32 s26, s26, {L_ACC}"); a("v_add_u32 v8, s26, v8")
        def red(r):
            self.nop(2)
            a(f"v_permlane32_swap_b32 v{r}, v{r+1}"); a(f"v_permlane32_swap_b32 v{r+2}, v{r+3}")
            self.nop(1)
            a(f"v_add_f32 v{r}, v{r}, v{r+1}"); a(f"v_add_f32 v{r+2}, v{r+2}, v{r+3}")
            self.nop(2)
            a(f"v_permlane16_swap_b32 v{r}, v{r+2}")
            self.nop(1)
            a(f"v_add_f32 v{r}, v{r}, v{r+2}")
        def loads1(): a("global_load_dwordx4 v[12:15], v5, s[20:21] sc1")
        self.poll_sentinel("fin1", loads1, [12, 13, 14, 15], 10)
        red(12)
        a("ds_write_b32 v8, v12")
        a("v_lshlrev_b32 v9, 2, v1"); a(f"v_add_u32 v9, {L_ACC}, v9")
        a("s_lshl_b32 s25, s22, 7"); a(f"s_add_u32 s25, s25, {L_XR}")
        a("v_lshlrev_b32 v10, 1, v1"); a("v_add_u32 v11, s25, v10")
        a("ds_read_u16 v32, v11")
        a("s_lshl_b32 s27, s22, 8"); a(f"s_add_u32 s27, s27, {WS_HO}")
        a("v_lshlrev_b32 v34, 2, v1"); a("v_add_u32 v34, s27, v34")
        a("s_waitcnt lgkmcnt(0)")
        a("s_barrier")
        a("s_cmp_lg_u32 s3, 0"); a("s_cbranch_scc1 L_fin_fb")
        for w in range(8): a(f"ds_read_b32 v{16+w}, v9 offset:{w*256}")
        a("v_lshlrev_b32 v32, 16, v32")
        for w in range(1, 8):
            a(f"s_waitcnt lgkmcnt({7-w})")
            a(f"v_add_f32 v16, v16, v{16+w}")
        a("v_cvt_pk_bf16_f32 v33, v16, v16"); a("v_and_b32 v16, 0xffff0000, v33")
        a("v_add_f32 v16, v16, v32")
        a("v_cvt_pk_bf16_f32 v33, v16, v16"); a("v_and_b32 v40, 0xffff0000, v33")
        self.store_wide(40, 36, 34)
        L("L_fin_fb")
        a("s_cmp_lt_u32 s3, 6"); a("s_cbranch_scc1 L_fin_two")
        def loads2a(): a("global_load_dwordx4 v[12:15], v6, s[20:21] sc1")
        self.poll_sentinel("fin2a", loads2a, [12, 13, 14, 15], 10)
        a("s_branch L_fin_red")
        L("L_fin_two")
        self.poll_incr("fin2b", [("global_load_dwordx4 v[12:15], v6, s[20:21] sc1", [12, 13, 14, 15]),
                                 ("global_load_dwordx4 v[16:19], v7, s[20:21] sc1", [16, 17, 18, 19])], 10)
        for e in range(4): a(f"v_add_f32 v{12+e}, v{12+e}, v{16+e}")
        L("L_fin_red")
        self.stamp(5)
        red(12)
        a("ds_write_b32 v8, v12 offset:2048")
        a("s_waitcnt lgkmcnt(0)")
        a("s_barrier")
        a("s_cmp_lg_u32 s3, 0"); a("s_cbranch_scc1 L_exit")
        for w in range(8): a(f"ds_read_b32 v{24+w}, v9 offset:{2048+w*256}")
        for w in range(1, 8):
            a(f"s_waitcnt lgkmcnt({7-w})")
            a(f"v_add_f32 v24, v24, v{24+w}")
        a("v_cvt_pk_bf16_f32 v33, v24, v24"); a("v_and_b32 v24, 0xffff0000, v33")
        a("v_add_f32 v16, v40, v24")
        a("v_cvt_pk_bf16_f32 v33, v16, v16")
        a("s_lshl_b32 s25, s22, 7"); a("v_lshlrev_b32 v10, 1, v1"); a("v_add_u32 v10, s25, v10")
        a("global_store_short v10, v33, s[36:37]")
        a("s_cmp_lg_u32 s22, 0"); a("s_cbranch_scc1 L_fin_end")
        a(f"v_mov_b32 v34, {L_XN + 1020}")
        a("ds_read_b32 v35, v34")
        a("s_waitcnt lgkmcnt(0)")
        a("v_mov_b32 v34, 0")
        a("s_mov_b64 exec, 1")
        a("global_store_dword v34, v35, s[20:21] sc1")
        a("s_mov_b64 exec, -1")
        L("L_fin_end")
        self.stamp(6)
        a("s_branch L_exit")

    def gen_helper(self):
        a, L, c = self.a, self.L, self.c
        c("================ helper wave ================")
        L("L_helper")
        if "nosup" in self.exp: a("s_barrier"); a("s_branch L_exit")
        a("s_setprio 3")
        a("s_load_dwordx2 s[56:57], s[0:1], 0")
        a("s_load_dwordx2 s[8:9], s[0:1], 24")
        a("s_and_b32 s24, s23, 7"); a("s_lshr_b32 s25, s23, 3")
        a("s_mul_i32 s26, s25, 112")
        a("s_lshl_b32 s27, s22, 3"); a("s_add_u32 s27, s27, s24"); a("s_lshl_b32 s27, s27, 7")
        a("v_lshrrev_b32 v2, 3, v1"); a("v_add_u32 v3, s26, v2"); a("v_lshlrev_b32 v3, 13, v3")
        a("v_and_b32 v4, 7, v1"); a("v_lshl_add_u32 v3, v4, 4, v3"); a("v_add_u32 v3, s27, v3")
        a("v_lshlrev_b32 v5, 4, v1")
        a("v_mov_b32 v6, 0")
        a("s_waitcnt lgkmcnt(0)")
        a("s_mov_b32 s40, s56"); a("s_mov_b32 s41, s57"); a("s_mov_b32 s42, 896"); a("s_mov_b32 s43, 0x20000")
        a("s_mov_b32 s44, s8"); a("s_mov_b32 s45, s9"); a(f"s_mov_b32 s46, {448*4096*2}"); a("s_mov_b32 s47, 0x20000")
        a("s_load_dword s36, s[20:21], 0x0")
        a("buffer_load_dwordx4 v[8:11], v5, s[40:43], 0 offen")
        WQ = 64
        for i in range(14):
            a(f"s_mov_b32 s28, {i*8*8192}")
            if "nowq" not in self.exp: a(f"buffer_load_dwordx4 v[{WQ+4*i}:{WQ+4*i+3}], v3, s[44:47], s28 offen{self.ntw}")
        a("s_cmp_lg_u32 s23, 0"); a("s_cbranch_scc1 L_h_nocnt")
        a("s_lshl_b32 s28, s22, 8"); a(f"s_add_u32 s28, s28, {WS_CNT}"); a("v_mov_b32 v17, s28")
        a("s_mov_b64 exec, 1")
        a("global_store_dword v17, v6, s[20:21] sc1")
        a("s_mov_b64 exec, -1")
        L("L_h_nocnt")
        a(f"v_mov_b32 v18, {L_QF}"); a("ds_write_b32 v18, v6"); a("ds_write_b32 v18, v6 offset:4")
        a("s_waitcnt lgkmcnt(0)")
        a("s_barrier")
        a("s_waitcnt vmcnt(14)" )
        self.stamp(0)
        a(f"v_add_u32 v18, {L_XR}, v5")
        a("v_cmp_gt_u32 vcc, 56, v1")
        a("s_and_saveexec_b64 s[32:33], vcc")
        a("ds_write_b128 v18, v[8:11]")
        a("s_mov_b64 exec, s[32:33]")
        for e in range(4):
            a(f"v_lshlrev_b32 v{20+2*e}, 16, v{8+e}"); a(f"v_and_b32 v{21+2*e}, 0xffff0000, v{8+e}")
        a("s_mul_i32 s36, s36, 0x9E3779B1"); a("s_add_u32 s36, s36, 0x7F4A7C15")
        a("v_mov_b32 v19, s36"); a(f"v_mov_b32 v18, {L_XN+1020}")
        a("ds_write_b32 v18, v19")
        self.layernorm(20, 28, 36, 44)
        a(f"v_add_u32 v18, {L_XN}, v5")
        a("v_cmp_gt_u32 vcc, 56, v1")
        a("s_and_saveexec_b64 s[32:33], vcc")
        a("ds_write_b128 v18, v[44:47]")
        a("s_mov_b64 exec, s[32:33]")
        a("v_add_u32 v18, s26, v2"); a("v_lshlrev_b32 v18, 1, v18"); a(f"v_add_u32 v18, {L_XN}, v18")
        a("s_waitcnt lgkmcnt(0)")
        for i in range(14): a(f"ds_read_u16 v{48+i}, v18 offset:{i*16}")
        for j in range(8): a(f"v_mov_b32 v{28+j}, 0")
        a("s_waitcnt vmcnt(0) lgkmcnt(0)")
        self.stamp(1)
        for i in range(14):
            a(f"v_lshlrev_b32 v62, 16, v{48+i}")
            for w in range(4):
                a(f"v_dot2c_f32_bf16 v{28+2*w}, v{WQ+4*i+w}, v{48+i}")
                a(f"v_dot2c_f32_bf16 v{28+2*w+1}, v{WQ+4*i+w}, v62")
        self.nop(3)
        for j in range(4): a(f"v_permlane32_swap_b32 v{28+j}, v{32+j}")
        self.nop(1)
        for j in range(4): a(f"v_add_f32 v{28+j}, v{28+j}, v{32+j}")
        self.nop(2)
        for j in range(2): a(f"v_permlane16_swap_b32 v{28+j}, v{30+j}")
        self.nop(1)
        for j in range(2): a(f"v_add_f32 v{28+j}, v{28+j}, v{30+j}")
        self.nop(2)
        for j in range(2): a(f"v_add_f32_dpp v{28+j}, v{28+j}, v{28+j} row_ror:8 row_mask:0xf bank_mask:0xf")
        a("v_mov_b32 v30, v29"); a("v_mov_b32 v29, s36"); a("v_mov_b32 v31, s36")
        a("v_lshlrev_b32 v32, 6, v4")
        a("v_bfe_u32 v33, v1, 5, 1"); a("v_lshl_add_u32 v32, v33, 5, v32")
        a("v_bfe_u32 v33, v1, 4, 1"); a("v_lshl_add_u32 v32, v33, 4, v32")
        a("s_lshl_b32 s28, s2, 9"); a(f"s_add_u32 s28, s28, {WS_QG}"); a("v_add_u32 v32, s28, v32")
        a("v_and_b32 v33, 8, v1"); a("v_cmp_eq_u32 vcc, 0, v33")
        a("s_and_saveexec_b64 s[32:33], vcc")
        a("global_store_dwordx4 v32, v[28:31], s[20:21] sc1")
        a("s_mov_b64 exec, s[32:33]")
        self.stamp(2)
        a("s_getpc_b64 s[44:45]")
        L("L_pc")
        a(f"s_sub_u32 s44, s44, L_pc - {KNAME}"); a("s_subb_u32 s45, s45, 0")
        a("v_lshlrev_b32 v60, 7, v1")
        for i in range(0 if "nopf" in self.exp else self.code_kb // 8):
            a(f"v_cmp_gt_u32 vcc, L_end - {KNAME}, v60")
            a("s_and_saveexec_b64 s[46:47], vcc")
            a(f"global_load_dword v{61+i}, v60, s[44:45]")
            a("s_mov_b64 exec, s[46:47]")
            a("v_add_u32 v60, 0x2000, v60")
        a(f"v_mov_b32 v160, {L_QF}"); a("v_mov_b32 v161, 1")
        a("ds_write_b32 v160, v161 offset:4")
        a("v_mov_b32 v153, s36")
        a("s_branch L_sup_gather")
        L("L_h_resets")
        if "nores" in self.exp.split(","): a("s_branch L_exit")
        self.gen_resets("h", self.early_reset == 0)
        a("s_branch L_sup_dma")
        L("L_h_tokens")
        if "notok" in self.exp: a("s_branch L_exit")
        a("s_cmp_eq_u32 s29, 0"); a("s_cbranch_scc1 L_exit")
        a("s_cmp_eq_u32 s29, 1"); a("s_cbranch_scc0 L_h_tok_fin")
        a("v_and_b32 v20, 31, v1"); a("s_lshl_b32 s28, s22, 5"); a("v_add_u32 v20, s28, v20")
        a(f"v_lshlrev_b32 v21, 2, v20"); a(f"v_add_u32 v21, {WS_TOK}, v21")
        self.poll_tag("tok0", 21)
        a("s_branch L_h_end")
        L("L_h_tok_fin")
        a("s_cmp_eq_u32 s29, 3"); a("s_cbranch_scc1 L_h_tok_fin2")
        a("v_min_u32 v20, 6, v1"); a("v_lshlrev_b32 v21, 5, v20"); a("v_add_u32 v21, 22, v21")
        a("v_lshlrev_b32 v21, 2, v21"); a(f"v_add_u32 v21, {WS_TOK}, v21")
        self.poll_tag("tokr", 21)
        a("s_branch L_h_end")
        L("L_h_tok_fin2")
        a("v_and_b32 v20, 31, v1")
        a("v_lshrrev_b32 v21, 2, v20"); a("v_lshlrev_b32 v21, 5, v21"); a("v_and_b32 v22, 3, v20"); a("v_lshl_add_u32 v21, v22, 1, v21")
        a("v_lshlrev_b32 v21, 2, v21"); a(f"v_add_u32 v21, {WS_TOK}, v21")
        self.poll_tag("tok1", 21)
        a("v_min_u32 v20, 55, v1")
        a("v_and_b32 v21, 7, v20"); a("v_lshlrev_b32 v21, 5, v21"); a("v_lshrrev_b32 v22, 3, v20"); a("v_lshl_add_u32 v21, v22, 1, v21")
        a("v_add_u32 v21, 8, v21"); a("v_lshlrev_b32 v21, 2, v21"); a(f"v_add_u32 v21, {WS_TOK}, v21")
        self.poll_tag("tok2", 21)
        L("L_h_end")
        self.stamp(4)
        a("s_branch L_exit")


    def gen_resets(self, p, stores, token=True):
        a, L = self.a, self.L
        st = (lambda ins: self.rs(ins)) if stores else (lambda ins: None)
        a("v_lshlrev_b32 v5, 4, v1")
        a("v_mov_b32 v12, -1"); a("v_mov_b32 v13, -1"); a("v_mov_b32 v14, -1"); a("v_mov_b32 v15, -1")
        a("s_lshl_b32 s28, s2, 11"); a(f"s_add_u32 s28, s28, {WS_H1}"); a("v_add_u32 v16, s28, v5")
        st("global_store_dwordx4 v16, v[12:15], s[20:21] sc1")
        st("global_store_dwordx4 v16, v[12:15], s[20:21] offset:1024 sc1")
        a("s_lshl_b32 s28, s2, 4"); a(f"s_add_u32 s28, s28, {WS_ML}"); a("v_mov_b32 v17, s28")
        a("s_mov_b64 exec, 1")
        st("global_store_dwordx4 v17, v[12:15], s[20:21] sc1")
        a("s_mov_b64 exec, -1")
        a("s_mov_b32 s29, 0")
        a("s_bitcmp1_b32 s23, 0"); a(f"s_cbranch_scc1 L_{p}_role_done")
        a("s_cmp_lt_u32 s23, 8"); a(f"s_cbranch_scc0 L_{p}_not_t1")
        a("s_mov_b32 s29, 1")
        a("s_lshr_b32 s30, s23, 1"); a("s_lshl_b32 s31, s22, 2"); a("s_add_u32 s30, s30, s31")
        a("s_lshl_b32 s31, s30, 11"); a(f"s_add_u32 s31, s31, {WS_T1O}")
        a(f"s_branch L_{p}_reset_role")
        L(f"L_{p}_not_t1")
        a("s_cmp_lt_u32 s23, 22"); a(f"s_cbranch_scc0 L_{p}_not_ffn")
        a("s_mov_b32 s29, 2")
        a("s_sub_u32 s30, s23, 8"); a("s_lshr_b32 s30, s30, 1"); a("s_lshl_b32 s30, s30, 3"); a("s_add_u32 s30, s30, s22")
        a("s_lshl_b32 s31, s30, 11"); a(f"s_add_u32 s31, s31, {WS_FFO}")
        L(f"L_{p}_reset_role")
        a("v_add_u32 v16, s31, v5")
        st("global_store_dwordx4 v16, v[12:15], s[20:21] sc1")
        st("global_store_dwordx4 v16, v[12:15], s[20:21] offset:1024 sc1")
        a(f"s_branch L_{p}_role_done")
        L(f"L_{p}_not_ffn")
        a("s_cmp_eq_u32 s23, 22"); a(f"s_cbranch_scc0 L_{p}_role_done")
        a("s_cmp_lt_u32 s22, 7"); a(f"s_cbranch_scc0 L_{p}_role_done")
        a("s_mov_b32 s29, 3")
        a("s_lshl_b32 s31, s22, 8"); a(f"s_add_u32 s31, s31, {WS_HO}"); a("v_add_u32 v16, s31, v5")
        a("s_mov_b64 exec, 0xffff")
        st("global_store_dwordx4 v16, v[12:15], s[20:21] sc1")
        a("s_mov_b64 exec, -1")
        L(f"L_{p}_role_done")
        if stores and token: self.gen_token()

    def gen_token(self):
        a = self.a
        if True:
            a("s_waitcnt vmcnt(0)")
            a("s_lshl_b32 s28, s2, 2"); a(f"s_add_u32 s28, s28, {WS_TOK}"); a("v_mov_b32 v17, s28"); a("v_mov_b32 v18, s36")
            a("s_mov_b64 exec, 1")
            a("global_store_dword v17, v18, s[20:21] sc1")
            a("s_mov_b64 exec, -1")

    def gen_support(self):
        a, L, c = self.a, self.L, self.c
        c("================ support waves 9..11 (and the helper after its q slice) ================")
        L("L_support")
        if "nosup" in self.exp: a("s_barrier"); a("s_branch L_exit")
        a("s_setprio 3")
        a("s_waitcnt lgkmcnt(0)")
        a("s_load_dword s36, s[20:21], 0x0")
        a("s_barrier")
        if self.early_reset:
            a("s_cmp_eq_u32 s3, 9"); a("s_cbranch_scc0 L_sup_nores")
            self.gen_resets("e", True, token=False)
            L("L_sup_nores")
        a("s_waitcnt lgkmcnt(0)")
        a("s_mul_i32 s36, s36, 0x9E3779B1"); a("s_add_u32 s36, s36, 0x7F4A7C15")
        a("v_mov_b32 v153, s36")
        if self.early_reset:
            a("s_cmp_eq_u32 s3, 9"); a("s_cbranch_scc0 L_sup_notok")
            self.gen_token()
            L("L_sup_notok")
        a(f"v_mov_b32 v160, {L_QF}"); a(f"s_mov_b32 s37, {self.spin_max * 16}")
        L("L_sup_wait")
        a("ds_read_b32 v161, v160 offset:4"); a("s_waitcnt lgkmcnt(0)"); a("v_readfirstlane_b32 s42, v161")
        a("s_cmp_lg_u32 s42, 0"); a("s_cbranch_scc1 L_sup_gather")
        a("s_sleep 2")
        a("s_sub_u32 s37, s37, 1"); a("s_cmp_lg_u32 s37, 0"); a("s_cbranch_scc1 L_sup_wait")
        L("L_sup_gather")
        a("s_load_dwordx2 s[60:61], s[0:1], 32")
        a("s_load_dwordx4 s[64:67], s[0:1], 48")
        a("s_load_dwordx2 s[62:63], s[0:1], 64")
        NSUP = 4
        NCB = 2
        a("s_sub_u32 s28, s3, 8")
        a("s_lshl_b32 s27, s22, 5"); a("s_add_u32 s27, s27, s28"); a("s_lshl_b32 s27, s27, 9"); a(f"s_add_u32 s27, s27, {WS_QG}")
        a("v_lshrrev_b32 v150, 5, v1"); a("v_lshlrev_b32 v150, 12, v150")
        a("v_and_b32 v152, 31, v1"); a("v_lshl_add_u32 v150, v152, 4, v150"); a("v_add_u32 v150, s27, v150")
        a("v_add_u32 v151, 0x2000, v150")
        a("s_lshl_b32 s27, s28, 7"); a(f"s_add_u32 s27, s27, {L_Q}")
        a("v_lshlrev_b32 v152, 2, v152"); a("v_add_u32 v152, s27, v152")
        a(f"s_mov_b32 s37, {self.spin_max}")
        a("s_mov_b32 s42, 15")
        if "noqp" in self.exp: a("s_branch L_qdone")
        L("L_qpoll")
        for j in range(4):
            k, hf = j >> 1, j & 1
            a(f"s_bitcmp1_b32 s42, {j}"); a(f"s_cbranch_scc0 L_qnl{j}")
            a(f"global_load_dwordx4 v[{40+4*j}:{43+4*j}], {'v150' if hf == 0 else 'v151'}, s[20:21] offset:{k*NSUP*512} sc1")
            L(f"L_qnl{j}")
        a("s_waitcnt vmcnt(0)")
        for j in range(4):
            a(f"v_xor_b32 v154, v{41+4*j}, v153")
            a(f"v_bitop3_b32 v154, v154, v{43+4*j}, v153 bitop3:0xf6")
            a("v_cmp_ne_u32 vcc, 0, v154")
            a(f"s_cbranch_vccnz L_qnc{j}")
            a(f"s_bitset0_b32 s42, {j}")
            L(f"L_qnc{j}")
        a("s_cmp_eq_u32 s42, 0"); a("s_cbranch_scc1 L_qdone")
        a("s_sub_u32 s37, s37, 1"); a("s_cmp_lg_u32 s37, 0"); a("s_cbranch_scc1 L_qpoll")
        L("L_qdone")
        for k in range(NCB):
            b = 40 + 8 * k
            a(f"v_add_f32 v{b}, v{b}, v{b+4}"); a(f"v_add_f32 v{b+2}, v{b+2}, v{b+6}")
            a(f"v_mov_b32 v{b+4}, v{b}"); a(f"v_mov_b32 v{b+6}, v{b+2}")
        self.nop(2)
        for k in range(NCB):
            b = 40 + 8 * k
            a(f"v_permlane32_swap_b32 v{b}, v{b+4}"); a(f"v_permlane32_swap_b32 v{b+2}, v{b+6}")
        self.nop(1)
        for k in range(NCB):
            b = 40 + 8 * k
            a(f"v_add_f32 v{b}, v{b}, v{b+4}"); a(f"v_add_f32 v{b+2}, v{b+2}, v{b+6}")
            a(f"v_cvt_pk_bf16_f32 v{b}, v{b}, v{b+2}")
            a(f"ds_write_b32 v152, v{b} offset:{k*NSUP*128}")
        a("s_waitcnt lgkmcnt(0)")
        self.stamp(5)
        a(f"v_mov_b32 v160, {L_QF}"); a("v_mov_b32 v161, 1")
        a("s_mov_b64 exec, 1")
        a("ds_add_u32 v160, v161")
        a("s_mov_b64 exec, -1")
        if "nob1" not in self.exp: a("s_barrier")
        self.stamp(3)
        a("s_cmp_eq_u32 s3, 8"); a("s_cbranch_scc1 L_h_resets")
        L("L_sup_dma")
        if "nodma" not in self.exp: self.gen_weight_dma()
        a("s_waitcnt vmcnt(0)")
        a("s_cmp_eq_u32 s3, 8"); a("s_cbranch_scc1 L_h_tokens")
        self.stamp(4)
        a("s_branch L_exit")

    def gen_weight_dma(self):
        a, L = self.a, self.L
        NSUP = 4
        a("s_bitcmp1_b32 s23, 0"); a("s_cbranch_scc1 L_wd_done")
        a("s_cmp_lt_u32 s23, 22"); a("s_cbranch_scc0 L_wd_done")
        a("s_sub_u32 s34, s3, 8")
        a("v_lshlrev_b32 v144, 4, v1")
        a("s_cmp_lt_u32 s23, 8"); a("s_cbranch_scc0 L_wd_ffn")
        rows = 128 // NSUP
        a("s_mov_b32 s88, s60"); a("s_mov_b32 s89, s61"); a(f"s_mov_b32 s90, {4096*448*2}"); a("s_mov_b32 s91, 0x20000")
        a("s_lshr_b32 s30, s23, 1"); a("s_lshl_b32 s31, s22, 2"); a("s_add_u32 s30, s30, s31")
        a("s_lshl_b32 s30, s30, 7"); a(f"s_mul_i32 s31, s34, {rows}"); a("s_add_u32 s30, s30, s31")
        a("s_mul_i32 s38, s30, 896")
        a(f"s_mul_i32 s39, s31, {WPITCH}")
        a(f"s_mov_b32 s49, {rows}")
        self.dma_rows("s[88:91]", "v144", "s49")
        a("s_branch L_wd_done")
        L("L_wd_ffn")
        a("s_sub_u32 s30, s23, 8"); a("s_lshr_b32 s30, s30, 1"); a("s_lshl_b32 s30, s30, 3"); a("s_add_u32 s30, s30, s22")
        a("v_lshrrev_b32 v145, 2, v1"); a("v_bfe_u32 v146, v1, 4, 1"); a("v_lshlrev_b32 v146, 1, v146")
        a("v_and_b32 v147, 3, v1"); a("v_xor_b32 v147, v147, v146")
        a("v_mul_u32_u24 v145, 3584, v145"); a("v_lshl_add_u32 v145, v147, 4, v145")
        for m, (plo, base) in enumerate(((64, L_GATE), (66, L_UP))):
            a(f"s_mov_b32 s88, s{plo}"); a(f"s_mov_b32 s89, s{plo+1}"); a(f"s_mov_b32 s90, {448*1792*2}"); a("s_mov_b32 s91, 0x20000")
            a(f"s_mul_i32 s38, s34, {16*3584}"); a("s_lshl_b32 s31, s30, 6"); a("s_add_u32 s38, s38, s31")
            a("s_lshl_b32 s39, s34, 10"); a(f"s_add_u32 s39, s39, {base}")
            a("s_mov_b32 s49, s34")
            lab = self.newlabel("gu")
            L(lab)
            a("s_mov_b32 m0, s39")
            a(f"s_add_u32 s39, s39, {NSUP*1024}")
            a(f"buffer_load_dwordx4 v145, s[88:91], s38 offen{self.ntw} lds")
            a(f"s_add_u32 s38, s38, {NSUP*16*3584}")
            a(f"s_add_u32 s49, s49, {NSUP}"); a("s_cmp_lt_u32 s49, 28"); a(f"s_cbranch_scc1 {lab}")
        drows = 32 // NSUP
        a("s_mov_b32 s88, s62"); a("s_mov_b32 s89, s63"); a(f"s_mov_b32 s90, {1792*448*2}"); a("s_mov_b32 s91, 0x20000")
        a("s_lshl_b32 s31, s30, 5"); a(f"s_mul_i32 s49, s34, {drows}"); a("s_add_u32 s31, s31, s49")
        a("s_mul_i32 s38, s31, 896")
        a(f"s_mul_i32 s39, s49, {WPITCH}"); a(f"s_add_u32 s39, s39, {L_DOWN}")
        a(f"s_mov_b32 s49, {drows}")
        self.dma_rows("s[88:91]", "v144", "s49")
        L("L_wd_done")

    def dma_rows(self, srd, vaddr, cnt):
        a = self.a
        a("s_mov_b32 exec_hi, 0x00ffffff")
        lab = self.newlabel("rows")
        self.L(lab)
        a("s_mov_b32 m0, s39")
        a(f"s_add_u32 s39, s39, {WPITCH}")
        a(f"buffer_load_dwordx4 {vaddr}, {srd}, s38 offen{self.ntw} lds")
        a("s_add_u32 s38, s38, 896")
        a("s_waitcnt vmcnt(48)")
        a(f"s_sub_u32 {cnt}, {cnt}, 1"); a(f"s_cmp_lg_u32 {cnt}, 0"); a(f"s_cbranch_scc1 {lab}")
        a("s_mov_b64 exec, -1")

    def poll_tag(self, name, addr):
        a = self.a
        lab = self.newlabel(name); done = self.newlabel(name + "d")
        a(f"s_mov_b32 s37, {self.spin_max}")
        self.L(lab)
        a(f"global_load_dword v23, v{addr}, s[20:21] sc1")
        a("s_waitcnt vmcnt(0)")
        a("v_cmp_ne_u32 vcc, s36, v23")
        a(f"s_cbranch_vccz {done}")
        a("s_sleep 8")
        a("s_sub_u32 s37, s37, 1"); a("s_cmp_lg_u32 s37, 0"); a(f"s_cbranch_scc1 {lab}")
        self.L(done)

def emit(path, **kw):
    g = Gen(**kw)
    body = g.build()
    hdr = open("cdna_kernels/" + KNAME[:-7] + ".s.ref").read().split("\n")
    top = [l for l in hdr if l.startswith(";") and "@launch" not in l and "Override launch" not in l and "grid=ceil" not in l]
    top = top[:15]
    out = top + [f"; @launch grid=(256,1,1) block=(768,1,1) lds={LDS_TOTAL}",
                 '.amdgcn_target "amdgcn-amd-amdhsa--gfx950"', ".text", f".globl {KNAME}", ".p2align 8",
                 f".type {KNAME},@function", f"{KNAME}:"]
    out += body
    out += ['.section .rodata,"a"', ".p2align 6", f".amdhsa_kernel {KNAME}",
            "  .amdhsa_next_free_vgpr 168", "  .amdhsa_next_free_sgpr 102", "  .amdhsa_accum_offset 168",
            "  .amdhsa_group_segment_fixed_size 0", "  .amdhsa_kernarg_size 96", "  .amdhsa_user_sgpr_count 2",
            "  .amdhsa_user_sgpr_kernarg_segment_ptr 1", "  .amdhsa_system_sgpr_workgroup_id_x 1",
            "  .amdhsa_float_denorm_mode_32 3", "  .amdhsa_float_denorm_mode_16_64 3",
            ".end_amdhsa_kernel", ""]
    open(path, "w").write("\n".join(out))

if __name__ == "__main__":
    import argparse
    ap = argparse.ArgumentParser()
    ap.add_argument("-o", default="main.s")
    ap.add_argument("--stamps", type=int, default=0)
    ap.add_argument("-S", type=int, default=5)
    ap.add_argument("--exp", default="")
    ap.add_argument("--NS", type=int, default=4)
    ap.add_argument("--TH", type=int, default=4)
    ap.add_argument("--taper", type=int, default=0)
    ap.add_argument("--pipe", type=int, default=1)
    ap.add_argument("--rot", type=int, default=11)
    ap.add_argument("--er", type=int, default=1)
    args = ap.parse_args()
    emit(args.o, S=args.S, NS=args.NS, TH=args.TH, taper=args.taper, pipe=args.pipe, rot=args.rot, early_reset=args.er, dbg_stamps=args.stamps, exp=args.exp)
    print("LDS", LDS_TOTAL)
```

```python
import sys

KNAME = "sequential_preLN__gqa_block_cached__geglu_ffn__decode_kernel"

WS_G   = 0x0
WS_QG  = 0x1000
WS_TOK = 0x30000
WS_CNT = 0x38000
WS_H1  = 0x40000
WS_ML  = 0xC0000
WS_T1O = 0xC4000
WS_HO  = 0xD4000
WS_FFO = 0xD8000
WS_DBG = 0x100000
WS_SIZE_USED = 0x200000

WPITCH = 928
L_W    = 0
L_GATE = 0
L_UP   = 28672
L_DOWN = 57344
L_Q    = 118784
L_XR   = L_Q + 1024
L_XN   = L_XR + 1024
L_M    = L_XN + 1024
L_L    = L_M + 64
L_QF   = L_M + 192
L_SCR  = L_M + 256
L_ACC  = L_SCR
L_PRIV = L_SCR + 16384
LDS_TOTAL = L_SCR + 32768

BLOCK = 768
SENT = 0xFFFFFFFF
LOG2E = 1.4426950408889634
import struct
def f2u(x): return struct.unpack("<I", struct.pack("<f", x))[0]
def hexf(x): return "0x%08x" % f2u(x)

class Gen:
    def __init__(self, S=5, NS=4, TH=3, taper=0, tailpf=1, pipe=1, rot=11, early_reset=1, b0early=0, ntgu=1, stag=0, SO=0, qdelay=0, code_kb=16, exp="", dbg_stamps=False, nt_stream=True, nt_w=True, spin_max=20000):
        self.o = []
        self.S = S
        self.NS = NS
        self.qdelay = qdelay
        self.SO = SO
        self.stag = stag
        self.b0early = b0early
        self.ntgu = ntgu
        self.early_reset = early_reset
        self.rot = rot
        self.pipe = pipe
        self.tailpf = tailpf
        self.taper = taper
        self.TH = TH
        self.exp = exp
        self.code_kb = code_kb
        self.stamps = dbg_stamps
        self.nt = " nt" if nt_stream else ""
        self.ntw = " nt" if nt_w else ""
        self.spin_max = spin_max
        self.lab = 0
    def a(self, s): self.o.append("  " + s)
    def L(self, s): self.o.append(s + ":")
    def c(self, s): self.o.append("  ; " + s)
    def newlabel(self, base):
        self.lab += 1
        return f"L_{base}_{self.lab}"
    def rs(self, ins):
        if "noreset" not in self.exp: self.a(ins)
    def nop(self, n):
        while n > 0:
            k = min(n, 16); self.a(f"s_nop {k-1}"); n -= k

    def row_allreduce(self, op, regs):
        for sh in (8, 4, 2, 1):
            if len(regs) < 3: self.nop(2 - (len(regs) - 1) if len(regs) > 0 else 2)
            for r in regs:
                self.a(f"{op}_dpp v{r}, v{r}, v{r} row_ror:{sh} row_mask:0xf bank_mask:0xf")
    def swap_allreduce(self, op, regs, tmps, kind):
        self.nop(1)
        for r, t in zip(regs, tmps): self.a(f"v_mov_b32 v{t}, v{r}")
        self.nop(2)
        for r, t in zip(regs, tmps): self.a(f"v_permlane{kind}_swap_b32 v{r}, v{t}")
        self.nop(1)
        for r, t in zip(regs, tmps): self.a(f"{op} v{r}, v{r}, v{t}")
    def wave_allreduce(self, op, regs, tmps, full=True):
        self.nop(2)
        self.row_allreduce(op, regs)
        self.swap_allreduce(op, regs, tmps, 16)
        if full: self.swap_allreduce(op, regs, tmps, 32)

    def stamp(self, idx):
        if not self.stamps: return
        self.a(f"s_memrealtime s[{70+2*idx}:{71+2*idx}]")
    def stamp_init(self):
        if not self.stamps: return
        for i in range(8): self.a(f"s_mov_b32 s{70+2*i}, 0")
    def stamp_flush(self):
        if not self.stamps: return
        a = self.a
        if self.stamps == 2:
            a("s_memrealtime s[92:93]")
            a("s_load_dwordx2 s[94:95], s[0:1], 80")
            a("s_waitcnt lgkmcnt(0)")
            a("s_lshl_b32 s98, s2, 4"); a("s_add_u32 s98, s98, s3")
            a("s_mov_b32 s99, 0")
            a(f"s_cmp_eq_u32 s98, {22*16}"); a("s_cbranch_scc1 L_dbgw")
            a("s_mov_b32 s99, 32")
            a(f"s_cmp_eq_u32 s98, {1*16+7}"); a("s_cbranch_scc0 L_end")
            self.L("L_dbgw")
            for i in range(7):
                a(f"s_sub_u32 s96, s{70+2*i}, s84"); a(f"v_mov_b32 v{8+i}, s96")
            a("s_sub_u32 s96, s92, s84"); a("v_mov_b32 v15, s96")
            a("v_mov_b32 v16, s99")
            a("s_mov_b64 exec, 1")
            a("global_store_dwordx4 v16, v[8:11], s[94:95]")
            a("global_store_dwordx4 v16, v[12:15], s[94:95] offset:16")
            return
        a("s_waitcnt lgkmcnt(0)")
        for i in range(8): a(f"v_mov_b32 v{8+i}, s{70+2*i}")
        a("s_lshl_b32 s98, s2, 9"); a("s_lshl_b32 s99, s3, 5"); a("s_add_u32 s98, s98, s99"); a(f"s_add_u32 s98, s98, {WS_DBG}")
        a("v_mov_b32 v16, s98")
        a("s_mov_b64 exec, 1")
        a("global_store_dwordx4 v16, v[8:11], s[20:21]")
        a("global_store_dwordx4 v16, v[12:15], s[20:21] offset:16")

    def build(self):
        a, L, c = self.a, self.L, self.c
        Q, KR, VR, ACC, FR, DD, ST, T = 8, 40, 72, 104, 120, 136, 140, 144
        R0, R1, PW, PR = 156, 157, 158, 159
        PT, PREG = FR, FR + 8
        c("---------------- entry ----------------")
        a("s_cmp_ge_u32 s2, 256")
        a("s_cbranch_scc1 L_end")
        self.stamp_init(); self.stamp(7)
        a("s_load_dwordx4 s[4:7], s[0:1], 8")
        a("s_load_dwordx2 s[20:21], s[0:1], 88")
        a("v_lshrrev_b32 v1, 6, v0")
        a("s_lshr_b32 s22, s2, 5")
        a("v_readfirstlane_b32 s3, v1")
        a("s_and_b32 s23, s2, 31")
        a("v_and_b32 v1, 63, v0")
        a("s_cmp_eq_u32 s3, 8")
        a("s_cbranch_scc1 L_helper")
        a("s_cmp_gt_u32 s3, 8")
        a("s_cbranch_scc1 L_support")
        c("---------------- streamer prologue ----------------")
        a("v_lshrrev_b32 v2, 3, v1")
        a("v_lshlrev_b32 v2, 9, v2")
        a("v_and_b32 v7, 7, v1")
        a("v_lshl_add_u32 v2, v7, 4, v2")
        a("v_add_u32 v5, 0x1000, v2")
        a("v_and_b32 v3, 31, v1")
        a("v_lshlrev_b32 v3, 4, v3")
        a("v_lshrrev_b32 v6, 5, v1")
        a("v_lshl_add_u32 v3, v6, 10, v3")
        if "lin" in self.exp.split(","):
            a("v_lshlrev_b32 v3, 4, v1"); a("v_mov_b32 v2, v3"); a("v_add_u32 v5, 0x1000, v2")
        a("v_add_u32 v4, 0x1000, v3")
        a("s_lshl_b32 s24, s23, 3")
        a("s_add_u32 s24, s24, s3")
        a("s_lshl_b32 s40, s24, 13")
        a("s_lshl_b32 s25, s22, 24")
        a("s_waitcnt lgkmcnt(0)")
        a("s_add_u32 s8, s4, s25"); a("s_addc_u32 s9, s5, 0"); a("s_mov_b32 s10, 0x1000000"); a("s_mov_b32 s11, 0x20000")
        a("s_add_u32 s12, s6, s25"); a("s_addc_u32 s13, s7, 0"); a("s_mov_b32 s14, 0x1000000"); a("s_mov_b32 s15, 0x20000")
        a("s_barrier")
        NS = self.NS
        RND = 256
        def first_load(i):
            if "lin" in self.exp.split(","):
                j = i & 7; reg = KR + 4 * i if i < 8 else VR + 4 * (i - 8)
                a(f"buffer_load_dwordx4 v[{reg}:{reg+3}], {'v3' if j < 4 else 'v4'}, {'s[8:11]' if i < 8 else 's[12:15]'}, s40 offen offset:{(j&3)*1024}{self.nt}")
                return
            if i < 8:
                cb, hf = i >> 1, i & 1
                a(f"buffer_load_dwordx4 v[{KR+4*i}:{KR+4*i+3}], {'v2' if hf == 0 else 'v5'}, s[8:11], s40 offen offset:{cb*128}{self.nt}")
            else:
                j = i - 8; iq, b = j >> 1, j & 1
                a(f"buffer_load_dwordx4 v[{VR+4*j}:{VR+4*j+3}], {'v3' if iq < 2 else 'v4'}, s[12:15], s40 offen offset:{(iq&1)*2048 + b*512}{self.nt}")
        def issue_k():
            for i in range(8): first_load(i)
        def issue_v():
            for i in range(8): first_load(8 + i)
        def k_pair(b):
            first_load(2 * b); first_load(2 * b + 1)
        def v_pair(q):
            first_load(8 + 2 * q); first_load(8 + 2 * q + 1)
        NFIRST = self.TH if self.TH else 16
        for i in range(NFIRST): first_load(i)
        FIRST_TILE = True
        a("s_lshl_b32 s46, s22, 8"); a(f"s_add_u32 s46, s46, {WS_CNT}")
        a("s_add_u32 s46, s20, s46"); a("s_addc_u32 s47, s21, 0")
        a("s_mov_b32 s43, 1")
        a("s_mov_b32 s59, 0")
        a("s_mov_b32 s38, s23"); a("s_mov_b32 s39, 0")
        a("s_mov_b32 s50, 0xffff0000"); a("s_mov_b32 s51, 0")
        a("s_mov_b32 s52, 0"); a("s_mov_b32 s53, 0x0000ffff")
        a("s_mov_b32 s54, 0"); a("s_mov_b32 s55, 0xffff0000")
        a("s_mov_b32 s57, 0x05040100"); a("s_mov_b32 s58, 0x07060302")
        a(f"s_mov_b32 s56, {hexf(LOG2E/16)}")
        a("s_mov_b32 s16, s20"); a("s_mov_b32 s17, s21"); a(f"s_mov_b32 s18, {WS_SIZE_USED}"); a("s_mov_b32 s19, 0x20000")
        a("s_lshl_b32 s26, s3, 12"); a(f"s_add_u32 s26, s26, {L_SCR}")
        a(f"v_bfe_u32 v{PW}, v1, 3, 1"); a(f"v_lshlrev_b32 v{PW}, 5, v{PW}")
        a(f"v_bfe_u32 v{T}, v1, 1, 1"); a(f"v_lshl_add_u32 v{PW}, v{T}, 4, v{PW}")
        a(f"v_bfe_u32 v{T}, v1, 2, 1"); a(f"v_lshl_add_u32 v{PW}, v{T}, 3, v{PW}")
        a(f"v_and_b32 v{T}, 1, v1"); a(f"v_lshl_add_u32 v{PW}, v{T}, 1, v{PW}")
        a(f"v_add_u32 v{PW}, s26, v{PW}")
        a(f"v_lshlrev_b32 v{PR}, 4, v6"); a(f"v_add_u32 v{PR}, s26, v{PR}")
        a(f"v_lshrrev_b32 v{T}, 4, v1"); a("v_and_b32 v6, 7, v1"); a(f"v_xor_b32 v6, v6, v{T}")
        a("v_lshlrev_b32 v6, 4, v6")
        a(f"v_lshrrev_b32 v{T+1}, 3, v1"); a(f"v_lshl_add_u32 v6, v{T+1}, 7, v6"); a("v_add_u32 v6, s26, v6")
        a("v_xor_b32 v7, 64, v6"); a("v_add_u32 v7, 0x400, v7")
        a(f"v_bfe_u32 v{R0}, v1, 1, 3"); a(f"v_xor_b32 v{R0}, v{R0}, v{T}")
        a(f"v_lshlrev_b32 v{R0}, 4, v{R0}")
        a(f"v_and_b32 v{T+1}, 15, v1"); a(f"v_lshl_add_u32 v{R0}, v{T+1}, 7, v{R0}"); a(f"v_add_u32 v{R0}, s26, v{R0}")
        a(f"v_xor_b32 v{R1}, 64, v{R0}")
        a(f"v_and_b32 v{T+1}, 1, v1"); a(f"v_lshlrev_b32 v{T+1}, 9, v{T+1}")
        a(f"v_lshl_add_u32 v{T+1}, v{T}, 4, v{T+1}"); a(f"v_add_u32 v{T+1}, {L_Q}, v{T+1}")
        a(f"v_mov_b32 v{ST}, 0xff800000"); a(f"v_mov_b32 v{ST+1}, 0xff800000"); a(f"v_mov_b32 v{ST+2}, 0"); a(f"v_mov_b32 v{ST+3}, 0")
        for j in range(16): a(f"v_mov_b32 v{ACC+j}, 0")
        a(f"v_mov_b32 v160, {L_QF}"); a("s_mov_b32 s42, 0")
        for i in range(NFIRST, 16):
            if self.TH and i >= self.TH:
                a(f"s_cmp_eq_u32 s42, 4"); a(f"s_cbranch_scc1 L_fl{i}")
                a("ds_read_b32 v161, v160"); a("s_waitcnt lgkmcnt(0)"); a("v_readfirstlane_b32 s42, v161")
                a(f"s_cmp_eq_u32 s42, 4"); a(f"s_cbranch_scc1 L_fl{i}")
                a(f"s_waitcnt vmcnt({self.TH-1})")
                L(f"L_fl{i}")
            first_load(i)
        self.stamp(0)
        a(f"s_mov_b32 s37, {self.spin_max * 16}")
        L("L_qwait")
        if "noq" in self.exp: a("s_branch L_qready")
        a("s_cmp_eq_u32 s42, 4"); a("s_cbranch_scc1 L_qready")
        a("s_sleep 1")
        a("ds_read_b32 v161, v160"); a("s_waitcnt lgkmcnt(0)"); a("v_readfirstlane_b32 s42, v161")
        a("s_sub_u32 s37, s37, 1"); a("s_cmp_lg_u32 s37, 0"); a("s_cbranch_scc1 L_qwait")
        L("L_qready")
        if "nob1" not in self.exp: a("s_barrier")
        self.stamp(1)
        for st in range(8):
            a(f"ds_read_b128 v[{Q+4*st}:{Q+4*st+3}], v{T+1} offset:{st*64}")
        a("s_waitcnt lgkmcnt(0)")
        c("---------------- tile loop ----------------")
        L("L_proc")
        NOLD = 8 - NS
        SO = max(self.SO, self.S)
        POOL = self.S * RND + (SO - self.S) * 32 * NOLD
        def claim():
            a(f"s_cmp_lt_u32 s43, {self.S}"); a("s_cbranch_scc1 L_static")
            a(f"s_cmp_lt_u32 s3, {NOLD}"); a("s_cbranch_scc0 L_doclaim")
            a("s_mov_b32 s41, 0x10000")
            if SO > self.S:
                a(f"s_cmp_lt_u32 s43, {SO}"); a("s_cbranch_scc0 L_claimed")
                a(f"s_add_u32 s38, s38, {self.rot}"); a("s_and_b32 s38, s38, 31")
                a(f"s_sub_u32 s41, s43, {self.S}"); a(f"s_mul_i32 s41, s41, {32 * NOLD}")
                a(f"s_mul_i32 s48, s38, {NOLD}"); a("s_add_u32 s41, s41, s48"); a("s_add_u32 s41, s41, s3")
                a(f"s_sub_u32 s41, s41, {POOL - self.S * RND}")
            a("s_branch L_claimed")
            L("L_doclaim")
            a("s_mov_b32 s41, 1")
            a("s_atomic_add s41, s[46:47], 0x0 glc")
            a("s_branch L_claimed")
            L("L_static")
            a(f"s_add_u32 s39, s39, {RND}")
            a(f"s_add_u32 s38, s38, {self.rot}"); a("s_and_b32 s38, s38, 31")
            a("s_lshl_b32 s48, s38, 3"); a("s_add_u32 s48, s48, s3"); a("s_add_u32 s48, s48, s39")
            a(f"s_sub_u32 s41, s48, {POOL}")
            L("L_claimed")
            a("s_add_u32 s43, s43, 1")
        if self.pipe: claim()
        def kmfma(b):
            for e in range(2):
                st = 2 * b + e
                f = FR + 8 * (b & 1) + 4 * e
                src_c = "0" if st == 0 else f"v[{DD}:{DD+3}]"
                a(f"v_mfma_f32_16x16x32_bf16 v[{DD}:{DD+3}], v[{Q+4*st}:{Q+4*st+3}], v[{f}:{f+3}], {src_c}")
        for b in range(4):
            a(f"s_waitcnt vmcnt({6 if self.pipe == 2 else 14 - 2*b})")
            buf = (b & 1) * 2048
            if "nok" not in self.exp:
                a(f"ds_write_b128 v6, v[{KR+8*b}:{KR+8*b+3}] offset:{buf}")
                a(f"ds_write_b128 v7, v[{KR+8*b+4}:{KR+8*b+7}] offset:{buf}")
                f = FR + 8 * (b & 1)
                a(f"ds_read_b128 v[{f}:{f+3}], v{R0} offset:{buf}")
                a(f"ds_read_b128 v[{f+4}:{f+7}], v{R1} offset:{buf}")
            if self.pipe == 2:
                a("s_cmp_eq_u32 s43, 2"); a(f"s_cbranch_scc1 L_nov{b}")
                v_pair(b)
                L(f"L_nov{b}")
            if b > 0 and "nok" not in self.exp:
                a("s_waitcnt lgkmcnt(4)")
                kmfma(b - 1)
        a("s_waitcnt lgkmcnt(0)")
        kmfma(3)
        def resolve():
            a(f"s_add_u32 s41, s41, {POOL}")
            a("s_cmp_lt_u32 s41, 2048")
            a("s_cselect_b32 s10, 0x1000000, 0"); a("s_cselect_b32 s14, 0x1000000, 0"); a("s_cselect_b32 s40, s41, 0")
            a("s_mov_b32 s59, s41")
            a("s_lshl_b32 s40, s40, 13")
        if self.pipe == 1:
            resolve()
            issue_k()
        elif self.pipe == 2:
            resolve()
            self.nop(2)
        else:
            self.nop(8)
        if "nosm" in self.exp: a("s_branch L_aftersm")
        a(f"v_cvt_pk_bf16_f32 v{T}, v{DD}, v{DD+1}")
        a(f"v_lshlrev_b32 v{T+1}, 16, v{T}"); a(f"v_and_b32 v{T+2}, 0xffff0000, v{T}")
        a(f"v_mov_b32 v{T+3}, v{T+1}"); a(f"v_mov_b32 v{T+4}, v{T+2}")
        self.nop(1)
        self.row_allreduce("v_max_f32", [T+3, T+4])
        a(f"v_max_f32 v{T+3}, v{T+3}, v{ST}"); a(f"v_max_f32 v{T+4}, v{T+4}, v{ST+1}")
        a(f"v_cmp_gt_f32 vcc, v{T+3}, v{ST}")
        a(f"v_cmp_gt_f32 s[44:45], v{T+4}, v{ST+1}")
        a("s_or_b64 vcc, vcc, s[44:45]")
        a("s_cbranch_vccz L_norescale")
        a(f"v_sub_f32 v{T+5}, v{ST}, v{T+3}"); a(f"v_sub_f32 v{T+6}, v{ST+1}, v{T+4}")
        a(f"v_mul_f32 v{T+5}, s56, v{T+5}"); a(f"v_mul_f32 v{T+6}, s56, v{T+6}")
        a(f"v_exp_f32 v{T+5}, v{T+5}"); a(f"v_exp_f32 v{T+6}, v{T+6}")
        a(f"v_mov_b32 v{ST}, v{T+3}"); a(f"v_mov_b32 v{ST+1}, v{T+4}")
        for j in range(8):
            a(f"v_mul_f32 v{ACC+j}, v{T+5}, v{ACC+j}"); a(f"v_mul_f32 v{ACC+8+j}, v{T+6}, v{ACC+8+j}")
        a(f"v_mul_f32 v{ST+2}, v{T+5}, v{ST+2}"); a(f"v_mul_f32 v{ST+3}, v{T+6}, v{ST+3}")
        L("L_norescale")
        a(f"v_mul_f32 v{T+5}, s56, v{ST}"); a(f"v_mul_f32 v{T+6}, s56, v{ST+1}")
        a(f"v_fma_f32 v{T+1}, v{T+1}, s56, -v{T+5}"); a(f"v_fma_f32 v{T+2}, v{T+2}, s56, -v{T+6}")
        a(f"v_exp_f32 v{T+1}, v{T+1}"); a(f"v_exp_f32 v{T+2}, v{T+2}")
        self.nop(1)
        a(f"v_cvt_pk_bf16_f32 v{T}, v{T+1}, v{T+2}")
        a(f"v_add_f32 v{ST+2}, v{ST+2}, v{T+1}"); a(f"v_add_f32 v{ST+3}, v{ST+3}, v{T+2}")
        a("s_mov_b64 exec, 0xffff")
        a(f"ds_write_b16 v{PW}, v{T}"); a(f"ds_write_b16_d16_hi v{PW}, v{T} offset:4")
        a("s_mov_b64 exec, -1")
        a(f"ds_read_b128 v[{PREG}:{PREG+3}], v{PR}"); a(f"ds_read_b128 v[{PREG+4}:{PREG+7}], v{PR} offset:32")
        L("L_aftersm")
        if not self.pipe:
            a("s_waitcnt lgkmcnt(0)")
            claim()
        for iq in range(4):
            la, lb = VR + 8 * iq, VR + 8 * iq + 4
            a(f"s_waitcnt vmcnt({6 if self.pipe == 2 else (14 if self.pipe else 6) - 2*iq})")
            if "nopv" not in self.exp:
                for w in range(4):
                    a(f"v_perm_b32 v{PT+2*w}, v{lb+w}, v{la+w}, s57")
                    a(f"v_perm_b32 v{PT+2*w+1}, v{lb+w}, v{la+w}, s58")
            if self.pipe == 2: k_pair(iq)
            if "nopv" in self.exp: continue
            if self.pipe and iq in (0, 2): a(f"s_waitcnt lgkmcnt({1 if iq == 0 else 0})")
            pr = PREG + 4 * (iq >> 1) + 2 * (iq & 1)
            for h in range(2):
                for j in range(8):
                    a(f"v_dot2c_f32_bf16 v{ACC+8*h+j}, v{PT+j}, v{pr+h}")
        if self.pipe:
            if self.pipe == 1: issue_v()
            a("s_cmp_lg_u32 s10, 0"); a("s_cbranch_scc1 L_proc")
        else:
            a("s_waitcnt lgkmcnt(0)")
            resolve()
            a("s_cmp_eq_u32 s10, 0"); a("s_cbranch_scc1 L_stream_done")
            issue_k(); issue_v()
            a("s_branch L_proc")
        L("L_stream_done")
        a("s_waitcnt vmcnt(0)")
        self.stamp(3)
        if self.tailpf:
            a("s_cmp_lg_u32 s3, 0"); a("s_cbranch_scc1 L_nopf")
            a("s_getpc_b64 s[44:45]")
            L("L_pc2")
            a(f"v_lshlrev_b32 v{T}, 7, v1")
            a(f"v_cmp_gt_u32 vcc, L_helper - L_pc2, v{T}")
            a("s_and_saveexec_b64 s[46:47], vcc")
            a(f"global_load_dword v{T+1}, v{T}, s[44:45]")
            a("s_mov_b64 exec, s[46:47]")
            L("L_nopf")
        self.nop(2)
        self.row_allreduce("v_add_f32", [ST+2, ST+3])
        a("s_lshl_b32 s27, s3, 2"); a(f"s_add_u32 s27, s27, {L_M}")
        a(f"v_mov_b32 v{T}, s27")
        a("s_mov_b64 exec, 1")
        a(f"ds_write2_b32 v{T}, v{ST}, v{ST+1} offset0:0 offset1:8")
        a(f"ds_write2_b32 v{T}, v{ST+2}, v{ST+3} offset0:16 offset1:24")
        a("s_mov_b64 exec, -1")
        if "notail" in self.exp: a("s_branch L_exit")
        c("---------------- merge inside the workgroup ----------------")
        self.nop(3)
        for j in range(8): a(f"v_permlane32_swap_b32 v{ACC+j}, v{ACC+8+j}")
        self.nop(1)
        for j in range(8): a(f"v_add_f32 v{ACC+j}, v{ACC+j}, v{ACC+8+j}")
        a("s_lshl_b32 s27, s3, 12"); a(f"s_add_u32 s27, s27, {L_SCR + 1024}")
        a("v_lshlrev_b32 v24, 5, v1"); a("v_add_u32 v24, s27, v24")
        a(f"ds_write_b128 v24, v[{ACC}:{ACC+3}]")
        a(f"ds_write_b128 v24, v[{ACC+4}:{ACC+7}] offset:16")
        a("s_waitcnt lgkmcnt(0)")
        a("s_barrier")
        a("s_cmp_gt_u32 s3, 1"); a("s_cbranch_scc1 L_roles")
        a("s_lshl_b32 s27, s3, 5"); a(f"s_add_u32 s27, s27, {L_M}")
        a("v_mov_b32 v25, s27")
        a("ds_read_b128 v[8:11], v25"); a("ds_read_b128 v[12:15], v25 offset:16")
        a("ds_read_b128 v[16:19], v25 offset:64"); a("ds_read_b128 v[20:23], v25 offset:80")
        a("v_lshlrev_b32 v24, 4, v0"); a(f"v_add_u32 v25, {L_SCR + 1024}, v24")
        for w in range(8):
            a(f"ds_read_b128 v[{28+4*w}:{28+4*w+3}], v25 offset:{w*4096}")
        a("s_lshl_b32 s27, s2, 11"); a(f"s_add_u32 s27, s27, {WS_H1}")
        a("v_add_u32 v24, s27, v24")
        a("s_waitcnt lgkmcnt(10)")
        a("v_max3_f32 v60, v8, v9, v10"); a("v_max3_f32 v60, v60, v11, v12"); a("v_max3_f32 v60, v60, v13, v14"); a("v_max_f32 v60, v60, v15")
        a("v_mul_f32 v61, s56, v60")
        for w in range(8): a(f"v_fma_f32 v{8+w}, v{8+w}, s56, -v61")
        for w in range(8): a(f"v_exp_f32 v{8+w}, v{8+w}")
        a("s_waitcnt lgkmcnt(7)")
        for e in range(4): a(f"v_mul_f32 v{28+e}, v8, v{28+e}")
        for w in range(1, 8):
            a(f"s_waitcnt lgkmcnt({7-w})")
            for e in range(4):
                a(f"v_fma_f32 v{28+e}, v{8+w}, v{28+4*w+e}, v{28+e}")
        a("global_store_dwordx4 v24, v[28:31], s[20:21] sc1")
        a("v_mul_f32 v61, v8, v16")
        for w in range(1, 8): a(f"v_fma_f32 v61, v{8+w}, v{16+w}, v61")
        a("s_lshl_b32 s27, s2, 4"); a("s_lshl_b32 s28, s3, 3"); a("s_add_u32 s27, s27, s28"); a(f"s_add_u32 s27, s27, {WS_ML}")
        a("v_mov_b32 v24, s27")
        a("s_mov_b64 exec, 1")
        a("global_store_dwordx2 v24, v[60:61], s[20:21] sc1")
        a("s_mov_b64 exec, -1")
        c("---------------- role dispatch ----------------")
        L("L_roles")
        self.stamp(4)
        a("s_bitcmp1_b32 s23, 0"); a("s_cbranch_scc1 L_exit")
        a("s_cmp_lt_u32 s23, 8"); a("s_cbranch_scc1 L_t1")
        a("s_cmp_lt_u32 s23, 22"); a("s_cbranch_scc1 L_ffn")
        a("s_cmp_lg_u32 s23, 22"); a("s_cbranch_scc1 L_exit")
        a("s_cmp_lt_u32 s22, 7"); a("s_cbranch_scc1 L_fin")
        a("s_branch L_exit")
        self.gen_t1(); self.gen_ffn(); self.gen_fin(); self.gen_helper(); self.gen_support()
        L("L_exit")
        self.stamp_flush()
        L("L_end")
        a("s_endpgm")
        return self.o

    def poll_sentinel(self, name, loads, regs, tmp, cnt="s30", mask_exec=None):
        a = self.a
        lab = self.newlabel(name)
        a(f"s_mov_b32 {cnt}, {self.spin_max}")
        self.L(lab)
        loads()
        a("s_waitcnt vmcnt(0)")
        rs = list(regs)
        first = True
        while rs:
            if first:
                if len(rs) >= 3:
                    a(f"v_max3_u32 v{tmp}, v{rs[0]}, v{rs[1]}, v{rs[2]}"); rs = rs[3:]
                elif len(rs) == 2:
                    a(f"v_max_u32 v{tmp}, v{rs[0]}, v{rs[1]}"); rs = []
                else:
                    a(f"v_mov_b32 v{tmp}, v{rs[0]}"); rs = []
                first = False
            elif len(rs) >= 2:
                a(f"v_max3_u32 v{tmp}, v{tmp}, v{rs[0]}, v{rs[1]}"); rs = rs[2:]
            else:
                a(f"v_max_u32 v{tmp}, v{tmp}, v{rs[0]}"); rs = []
        a(f"v_cmp_eq_u32 vcc, -1, v{tmp}")
        done = self.newlabel(name + "_done")
        a(f"s_cbranch_vccz {done}")
        a(f"s_sub_u32 {cnt}, {cnt}, 1")
        a(f"s_cmp_lg_u32 {cnt}, 0")
        a(f"s_cbranch_scc1 {lab}")
        self.L(done)

    def poll_incr(self, name, items, tmp, cnt="s30", msk="s31"):
        a = self.a
        lab = self.newlabel(name); done = self.newlabel(name + "_done")
        n = len(items)
        a(f"s_mov_b32 {msk}, {(1 << n) - 1}"); a(f"s_mov_b32 {cnt}, {self.spin_max}")
        self.L(lab)
        for j, (ins, regs) in enumerate(items):
            a(f"s_bitcmp1_b32 {msk}, {j}"); a(f"s_cbranch_scc0 {lab}_nl{j}")
            a(ins)
            self.L(f"{lab}_nl{j}")
        a("s_waitcnt vmcnt(0)")
        for j, (ins, regs) in enumerate(items):
            rs = list(regs)
            if len(rs) == 4:
                a(f"v_max3_u32 v{tmp}, v{rs[0]}, v{rs[1]}, v{rs[2]}"); a(f"v_max_u32 v{tmp}, v{tmp}, v{rs[3]}")
            elif len(rs) == 2:
                a(f"v_max_u32 v{tmp}, v{rs[0]}, v{rs[1]}")
            a(f"v_cmp_eq_u32 vcc, -1, v{tmp}")
            a(f"s_cbranch_vccnz {lab}_nc{j}")
            a(f"s_bitset0_b32 {msk}, {j}")
            self.L(f"{lab}_nc{j}")
        a(f"s_cmp_eq_u32 {msk}, 0"); a(f"s_cbranch_scc1 {done}")
        a(f"s_sub_u32 {cnt}, {cnt}, 1"); a(f"s_cmp_lg_u32 {cnt}, 0"); a(f"s_cbranch_scc1 {lab}")
        self.L(done)

    def poll_stag(self, name, loads, n_ld, nreg, A, B, C, tmp, cnt="s30", sleep=4):
        a = self.a
        lab = self.newlabel(name); dA = lab + "_a"; dB = lab + "_b"; done = lab + "_done"
        def check(base, target):
            rs = list(range(base, base + nreg))
            a(f"v_max3_u32 v{tmp}, v{rs[0]}, v{rs[1]}, v{rs[2]}"); rs = rs[3:]
            while len(rs) >= 2:
                a(f"v_max3_u32 v{tmp}, v{tmp}, v{rs[0]}, v{rs[1]}"); rs = rs[2:]
            if rs: a(f"v_max_u32 v{tmp}, v{tmp}, v{rs[0]}")
            a(f"v_cmp_eq_u32 vcc, -1, v{tmp}")
            a(f"s_cbranch_vccz {target}")
        a(f"s_mov_b32 {cnt}, {self.spin_max}")
        loads(A)
        a(f"s_sleep {sleep}")
        self.L(lab)
        loads(B)
        a(f"s_waitcnt vmcnt({n_ld})")
        check(A, dA)
        loads(A)
        a(f"s_waitcnt vmcnt({n_ld})")
        check(B, dB)
        a(f"s_sub_u32 {cnt}, {cnt}, 1"); a(f"s_cmp_lg_u32 {cnt}, 0"); a(f"s_cbranch_scc1 {lab}")
        self.L(dB)
        for j in range(nreg): a(f"v_mov_b32 v{C+j}, v{B+j}")
        a(f"s_branch {done}")
        self.L(dA)
        for j in range(nreg): a(f"v_mov_b32 v{C+j}, v{A+j}")
        self.L(done)

    def select4(self, dst, d0, d1, d2, d3):
        a = self.a
        a(f"v_cndmask_b32 v{dst}, v{d0}, v{d1}, s[50:51]")
        a(f"v_cndmask_b32 v{dst}, v{dst}, v{d2}, s[52:53]")
        a(f"v_cndmask_b32 v{dst}, v{dst}, v{d3}, s[54:55]")

    def store_wide(self, src, tmp, addr):
        a = self.a
        self.nop(2)
        for j in range(4): a(f"v_mov_b32_dpp v{tmp+j}, v{src} quad_perm:[{j},{j},{j},{j}] row_mask:0xf bank_mask:0xf")
        a("s_mov_b32 exec_lo, 0x11111111"); a("s_mov_b32 exec_hi, 0x11111111")
        a(f"global_store_dwordx4 v{addr}, v[{tmp}:{tmp+3}], s[20:21] sc1")
        a("s_mov_b64 exec, -1")

    def round_bf16_pair(self, dst_pk, x0, x1, o0=None, o1=None):
        a = self.a
        a(f"v_cvt_pk_bf16_f32 v{dst_pk}, v{x0}, v{x1}")
        if o0 is not None: a(f"v_lshlrev_b32 v{o0}, 16, v{dst_pk}")
        if o1 is not None: a(f"v_and_b32 v{o1}, 0xffff0000, v{dst_pk}")

    def gen_t1(self):
        a, L, c = self.a, self.L, self.c
        c("================ T1: softmax combine + wo slice ================")
        L("L_t1")
        a("s_lshr_b32 s24, s23, 1")
        a("v_lshrrev_b32 v2, 2, v1")
        a(f"v_mul_u32_u24 v2, {WPITCH}, v2")
        a("v_and_b32 v3, 3, v1")
        a("v_lshl_add_u32 v2, v3, 3, v2")
        a("s_lshl_b32 s25, s3, 7")
        a("v_add_u32 v2, s25, v2")
        a(f"v_add_u32 v3, {64*WPITCH}, v2")
        BF = 64
        a("s_cmp_eq_u32 s3, 7"); a("s_cbranch_scc1 L_t1_nob")
        for ks in range(4):
            for tt in range(4):
                for h in range(2):
                    r = BF + ((ks * 4 + tt) * 2 + h) * 2
                    base = "v2" if ks < 2 else "v3"
                    off = (32 * (ks & 1) + 16 * h) * WPITCH + tt * 32
                    a(f"ds_read_b64_tr_b16 v[{r}:{r+1}], {base} offset:{off}")
            a("s_waitcnt lgkmcnt(0)")
        L("L_t1_nob")
        a("s_lshl_b32 s26, s22, 5")
        a("v_lshrrev_b32 v6, 5, v1")
        a("v_and_b32 v7, 31, v1")
        a("s_lshl_b32 s27, s3, 2"); a("s_add_u32 s27, s27, s26")
        a("v_add_u32 v8, s27, v6")
        a("v_lshlrev_b32 v9, 11, v8")
        a("v_lshl_add_u32 v9, v7, 4, v9")
        a("s_lshl_b32 s28, s24, 9"); a(f"s_add_u32 s28, s28, {WS_H1 + 2048}")
        a("v_add_u32 v9, s28, v9")
        a("s_lshr_b32 s29, s24, 1"); a("s_lshl_b32 s29, s29, 3"); a(f"s_add_u32 s29, s29, {WS_ML}")
        a("v_add_u32 v11, s26, v7"); a("v_lshlrev_b32 v11, 4, v11"); a("v_add_u32 v11, s29, v11")
        a("s_lshl_b32 s27, s3, 2"); a("v_add_u32 v10, s27, v6"); a("v_lshlrev_b32 v10, 2, v10"); a("v_add_u32 v22, 8, v10")
        self.poll_incr("t1", [("global_load_dwordx4 v[12:15], v9, s[20:21] offset:-2048 sc1", [12, 13, 14, 15]),
                              ("global_load_dwordx4 v[16:19], v9, s[20:21] offset:2048 sc1", [16, 17, 18, 19]),
                              ("global_load_dwordx2 v[20:21], v11, s[20:21] sc1", [20, 21])], 24)
        self.stamp(5)
        a("v_mov_b32 v25, v20")
        self.wave_allreduce("v_max_f32", [25], [26], full=False)
        a("v_sub_f32 v27, v20, v25")
        a("v_mul_f32 v27, s56, v27")
        a("v_exp_f32 v27, v27")
        self.nop(1)
        a("ds_bpermute_b32 v28, v10, v27"); a("ds_bpermute_b32 v29, v22, v27")
        a("v_mul_f32 v31, v27, v21")
        self.wave_allreduce("v_add_f32", [31], [26], full=False)
        a("v_rcp_f32 v30, v31")
        self.nop(1)
        a("v_fma_f32 v26, -v31, v30, 1.0"); a("v_fma_f32 v30, v26, v30, v30")
        a("s_waitcnt lgkmcnt(0)")
        a("v_mul_f32 v28, v28, v30"); a("v_mul_f32 v29, v29, v30")
        for e in range(4): a(f"v_mul_f32 v{12+e}, v28, v{12+e}")
        for e in range(4): a(f"v_fma_f32 v{12+e}, v29, v{16+e}, v{12+e}")
        self.nop(2)
        a("v_permlane32_swap_b32 v12, v13"); a("v_permlane32_swap_b32 v14, v15")
        self.nop(1)
        a("v_add_f32 v12, v12, v13"); a("v_add_f32 v14, v14, v15")
        a("v_lshl_add_u32 v16, v7, 2, v6"); a("v_lshlrev_b32 v16, 2, v16")
        a("s_lshl_b32 s27, s3, 9"); a(f"s_add_u32 s27, s27, {L_ACC}")
        a("v_add_u32 v16, s27, v16")
        a("ds_write_b32 v16, v12"); a("ds_write_b32 v16, v14 offset:8")
        a("s_waitcnt lgkmcnt(0)")
        a("s_barrier")
        a("s_cmp_eq_u32 s3, 7"); a("s_cbranch_scc1 L_exit")
        a("v_lshlrev_b32 v17, 3, v1"); a(f"v_add_u32 v17, {L_ACC}, v17")
        for w in range(8):
            a(f"ds_read_b64 v[{32+2*w}:{32+2*w+1}], v17 offset:{w*512}")
        a("v_lshrrev_b32 v18, 4, v1"); a("v_lshlrev_b32 v18, 6, v18")
        a("v_bfe_u32 v19, v1, 1, 2"); a("v_lshl_add_u32 v18, v19, 4, v18")
        a("v_bfe_u32 v19, v1, 3, 1"); a("v_lshl_add_u32 v18, v19, 3, v18")
        a("v_and_b32 v19, 1, v1"); a("v_lshl_add_u32 v18, v19, 2, v18")
        a("s_lshl_b32 s27, s3, 10"); a(f"s_add_u32 s27, s27, {L_PRIV}")
        a("v_add_u32 v18, s27, v18")
        a("v_lshrrev_b32 v19, 4, v1"); a("v_lshlrev_b32 v19, 4, v19"); a("v_add_u32 v19, s27, v19")
        for w in range(1, 8):
            a(f"s_waitcnt lgkmcnt({7-w})")
            a(f"v_add_f32 v32, v32, v{32+2*w}"); a(f"v_add_f32 v33, v33, v{33+2*w}")
        a("v_cvt_pk_bf16_f32 v34, v32, v33")
        a("ds_write_b32 v18, v34")
        a("s_waitcnt lgkmcnt(0)")
        for ks in range(4):
            a(f"ds_read_b128 v[{36+4*ks}:{36+4*ks+3}], v19 offset:{ks*64}")
        a("s_waitcnt lgkmcnt(0)")
        DD = 128
        for ks in range(4):
            for tt in range(4):
                r = BF + (ks * 4 + tt) * 4
                cc = "0" if ks == 0 else f"v[{DD+4*tt}:{DD+4*tt+3}]"
                a(f"v_mfma_f32_16x16x32_bf16 v[{DD+4*tt}:{DD+4*tt+3}], v[{36+4*ks}:{36+4*ks+3}], v[{r}:{r+3}], {cc}")
        a("s_lshl_b32 s27, s22, 2"); a("s_add_u32 s27, s27, s24")
        a("s_lshl_b32 s27, s27, 11"); a(f"s_add_u32 s27, s27, {WS_T1O}")
        a("s_lshl_b32 s28, s3, 8"); a("s_add_u32 s27, s27, s28")
        a("v_lshlrev_b32 v20, 2, v1"); a("v_add_u32 v20, s27, v20")
        self.nop(6)
        self.select4(21, DD, DD+4, DD+8, DD+12)
        self.store_wide(21, 24, 20)
        self.stamp(6)
        a("s_branch L_exit")

    def gen_ffn(self):
        a, L, c = self.a, self.L, self.c
        c("================ FFN slice ================")
        L("L_ffn")
        a("s_sub_u32 s24, s23, 8"); a("s_lshr_b32 s24, s24, 1"); a("s_lshl_b32 s24, s24, 3"); a("s_add_u32 s24, s24, s22")
        a("v_lshrrev_b32 v2, 2, v1")
        a("v_and_b32 v3, 3, v1")
        a("v_bfe_u32 v4, v1, 4, 1")
        a("v_lshlrev_b32 v5, 6, v2"); a("v_lshl_add_u32 v5, v3, 3, v5")
        a("s_lshl_b32 s25, s3, 12"); a("v_add_u32 v5, s25, v5")
        a("v_lshl_add_u32 v6, v4, 5, v5")
        a("v_xor_b32 v4, 1, v4"); a("v_lshl_add_u32 v7, v4, 5, v5")
        a(f"v_mul_u32_u24 v8, {WPITCH}, v2"); a("v_lshl_add_u32 v8, v3, 3, v8")
        a("s_lshl_b32 s25, s3, 7"); a(f"s_add_u32 s25, s25, {L_DOWN}"); a("v_add_u32 v8, s25, v8")
        BG = 64
        BD = 96
        HN = L_PRIV + 7 * 1024
        a("s_lshl_b32 s27, s3, 10"); a(f"s_add_u32 s27, s27, {L_PRIV}")
        a("s_cmp_eq_u32 s3, 7"); a("s_cbranch_scc1 L_ffn_ln")
        for ksl in range(2):
            for m in range(2):
                for ct in range(2):
                    for h in range(2):
                        r = BG + ((ksl * 2 + m) * 2 + ct) * 4 + 2 * h
                        a(f"ds_read_b64_tr_b16 v[{r}:{r+1}], v{6+ct} offset:{m*L_UP + ksl*2048 + h*1024}")
            a("s_waitcnt lgkmcnt(0)")
        for tt in range(4):
            for h in range(2):
                r = BD + tt * 4 + 2 * h
                a(f"ds_read_b64_tr_b16 v[{r}:{r+1}], v8 offset:{16*h*WPITCH + tt*32}")
        a("v_lshrrev_b32 v37, 4, v1"); a("v_lshlrev_b32 v37, 4, v37")
        a("s_lshl_b32 s28, s3, 7"); a(f"s_add_u32 s28, s28, {HN}"); a("v_add_u32 v37, s28, v37")
        a("s_branch L_ffn_bc")
        L("L_ffn_ln")
        a("v_lshlrev_b32 v12, 5, v1"); a(f"v_add_u32 v12, {WS_HO}, v12")
        a("v_lshrrev_b32 v36, 2, v1"); a("v_lshlrev_b32 v44, 6, v36")
        a("v_and_b32 v37, 1, v1"); a("v_lshl_add_u32 v44, v37, 5, v44")
        a("v_bfe_u32 v37, v1, 1, 1"); a("v_lshl_add_u32 v44, v37, 3, v44")
        a(f"v_add_u32 v44, {HN}, v44")
        a("s_mov_b32 exec_hi, 0x00ffffff")
        def loads():
            a("global_load_dwordx4 v[16:19], v12, s[20:21] sc1")
            a("global_load_dwordx4 v[20:23], v12, s[20:21] offset:16 sc1")
        if self.stag:
            def ld2(b):
                a(f"global_load_dwordx4 v[{b}:{b+3}], v12, s[20:21] sc1")
                a(f"global_load_dwordx4 v[{b+4}:{b+7}], v12, s[20:21] offset:16 sc1")
            self.poll_stag("ffn", ld2, 2, 8, 48, 56, 16, 14, sleep=self.stag)
        else:
            self.poll_sentinel("ffn", loads, list(range(16, 24)), 14)
        a("s_mov_b64 exec, -1")
        self.stamp(5)
        self.layernorm(16, 28, 36, 24)
        a("s_mov_b32 exec_hi, 0x00ffffff")
        a("ds_write_b64 v44, v[24:25]"); a("ds_write_b64 v44, v[26:27] offset:16")
        a("s_mov_b64 exec, -1")
        L("L_ffn_bc")
        a("s_waitcnt lgkmcnt(0)")
        a("s_barrier")
        a("s_cmp_eq_u32 s3, 7"); a("s_cbranch_scc1 L_ffn_w7")
        a("ds_read_b128 v[40:43], v37"); a("ds_read_b128 v[44:47], v37 offset:64")
        a("s_waitcnt lgkmcnt(0)")
        DD = 48
        for ksl in range(2):
            for m in range(2):
                for ct in range(2):
                    r = BG + ((ksl * 2 + m) * 2 + ct) * 4
                    d = DD + (m * 2 + ct) * 4
                    cc = "0" if ksl == 0 else f"v[{d}:{d+3}]"
                    a(f"v_mfma_f32_16x16x32_bf16 v[{d}:{d+3}], v[{40+4*ksl}:{40+4*ksl+3}], v[{r}:{r+3}], {cc}")
        GU = L_ACC + 8192
        a("s_lshl_b32 s28, s3, 8"); a(f"s_add_u32 s28, s28, {GU}")
        a("v_lshlrev_b32 v38, 2, v1"); a("v_add_u32 v39, s28, v38")
        self.nop(6)
        self.select4(16, DD, DD+4, DD+8, DD+12)
        a("ds_write_b32 v39, v16")
        L("L_ffn_w7")
        a("s_waitcnt lgkmcnt(0)")
        a("s_barrier")
        a("s_cmp_eq_u32 s3, 7"); a("s_cbranch_scc1 L_exit")
        a(f"v_add_u32 v39, {GU}, v38")
        for w in range(7): a(f"ds_read_b32 v{16+w}, v39 offset:{w*256}")
        a("v_bfe_u32 v40, v1, 2, 2"); a("v_lshlrev_b32 v40, 4, v40")
        a("v_bfe_u32 v41, v1, 4, 1"); a("v_lshl_add_u32 v40, v41, 3, v40")
        a("v_and_b32 v41, 3, v1"); a("v_lshl_add_u32 v40, v41, 1, v40")
        a("v_add_u32 v40, s27, v40")
        a("v_lshrrev_b32 v41, 4, v1"); a("v_lshlrev_b32 v41, 4, v41"); a("v_add_u32 v41, s27, v41")
        for w in range(1, 7):
            a(f"s_waitcnt lgkmcnt({6-w})")
            a(f"v_add_f32 v16, v16, v{16+w}")
        a("v_cvt_pk_bf16_f32 v17, v16, v16")
        a("v_and_b32 v16, 0xffff0000, v17")
        a("v_mov_b32 v17, v16")
        self.nop(2)
        a("v_permlane32_swap_b32 v16, v17")
        self.nop(1)
        k1 = -2.0 * LOG2E * 0.7978845608028654
        a(f"s_mov_b32 s28, {hexf(0.044715)}"); a(f"s_mov_b32 s29, {hexf(k1)}")
        a("v_mul_f32 v18, v16, v16")
        a("v_fma_f32 v18, v18, s28, 1.0")
        a("v_mul_f32 v18, v18, v16")
        a("v_mul_f32 v18, s29, v18")
        a("v_exp_f32 v18, v18")
        self.nop(1)
        a("v_add_f32 v18, 1.0, v18")
        a("v_rcp_f32 v18, v18")
        self.nop(1)
        a("v_mul_f32 v18, v16, v18")
        a("v_cvt_pk_bf16_f32 v18, v18, v18"); a("v_and_b32 v18, 0xffff0000, v18")
        a("v_mul_f32 v18, v18, v17")
        a("v_cvt_pk_bf16_f32 v18, v18, v18")
        a("s_mov_b32 exec_hi, 0")
        a("ds_write_b16 v40, v18")
        a("s_mov_b32 exec_hi, -1")
        a("s_waitcnt lgkmcnt(0)")
        a("ds_read_b128 v[20:23], v41")
        a("s_waitcnt lgkmcnt(0)")
        for tt in range(4):
            a(f"v_mfma_f32_16x16x32_bf16 v[{DD+4*tt}:{DD+4*tt+3}], v[20:23], v[{BD+4*tt}:{BD+4*tt+3}], 0")
        a("s_lshl_b32 s27, s24, 11"); a(f"s_add_u32 s27, s27, {WS_FFO}")
        a("s_lshl_b32 s28, s3, 8"); a("s_add_u32 s27, s27, s28")
        a("v_add_u32 v38, s27, v38")
        self.nop(6)
        self.select4(16, DD, DD+4, DD+8, DD+12)
        self.store_wide(16, 20, 38)
        self.stamp(6)
        a("s_branch L_exit")

    def layernorm(self, X, T, U, OUT):
        a = self.a
        a(f"v_readfirstlane_b32 s34, v{X}")
        a(f"v_mov_b32 v{U}, 0"); a(f"v_mov_b32 v{U+1}, 0")
        a("s_mov_b32 exec_hi, 0x00ffffff")
        a("s_mov_b32 s35, s34")
        for e in range(0, 8, 2): a(f"v_pk_add_f32 v[{T+e}:{T+e+1}], v[{X+e}:{X+e+1}], s[34:35] neg_lo:[0,1] neg_hi:[0,1]")
        a(f"v_pk_add_f32 v[{U+4}:{U+5}], v[{T}:{T+1}], v[{T+2}:{T+3}]"); a(f"v_pk_mul_f32 v[{U+6}:{U+7}], v[{T}:{T+1}], v[{T}:{T+1}]")
        a(f"v_pk_add_f32 v[{U+2}:{U+3}], v[{T+4}:{T+5}], v[{T+6}:{T+7}]"); a(f"v_pk_fma_f32 v[{U+6}:{U+7}], v[{T+2}:{T+3}], v[{T+2}:{T+3}], v[{U+6}:{U+7}]")
        a(f"v_pk_add_f32 v[{U+4}:{U+5}], v[{U+4}:{U+5}], v[{U+2}:{U+3}]"); a(f"v_pk_fma_f32 v[{U+6}:{U+7}], v[{T+4}:{T+5}], v[{T+4}:{T+5}], v[{U+6}:{U+7}]")
        a(f"v_pk_fma_f32 v[{U+6}:{U+7}], v[{T+6}:{T+7}], v[{T+6}:{T+7}], v[{U+6}:{U+7}]")
        a(f"v_add_f32 v{U}, v{U+4}, v{U+5}"); a(f"v_add_f32 v{U+1}, v{U+6}, v{U+7}")
        a("s_mov_b64 exec, -1")
        self.wave_allreduce("v_add_f32", [U, U+1], [U+2, U+3])
        a(f"s_mov_b32 s35, {hexf(1.0/448)}")
        a(f"v_mul_f32 v{U}, s35, v{U}"); a(f"v_mul_f32 v{U+1}, s35, v{U+1}")
        a(f"v_fma_f32 v{U+1}, -v{U}, v{U}, v{U+1}")
        a(f"v_add_f32 v{U}, s34, v{U}")
        a(f"v_max_f32 v{U+1}, 0, v{U+1}")
        self.round_bf16_pair(U+2, U, U+1, U, U+1)
        a(f"v_add_f32 v{U+1}, {hexf(1e-5)}, v{U+1}")
        a(f"v_cvt_pk_bf16_f32 v{U+1}, v{U+1}, v{U+1}"); a(f"v_and_b32 v{U+1}, 0xffff0000, v{U+1}")
        a(f"v_sqrt_f32 v{U+2}, v{U+1}")
        a(f"v_mov_b32 v{U+1}, v{U}")
        for e in range(0, 8, 2): a(f"v_pk_add_f32 v[{T+e}:{T+e+1}], v[{X+e}:{X+e+1}], v[{U}:{U+1}] neg_lo:[0,1] neg_hi:[0,1]")
        a(f"v_cvt_pk_bf16_f32 v{U+2}, v{U+2}, v{U+2}"); a(f"v_and_b32 v{U+2}, 0xffff0000, v{U+2}")
        a(f"v_rcp_f32 v{U+4}, v{U+2}")
        for e in range(4): self.round_bf16_pair(U+3, T+2*e, T+2*e+1, T+2*e, T+2*e+1)
        a(f"v_fma_f32 v{U+5}, -v{U+2}, v{U+4}, 1.0"); a(f"v_fma_f32 v{U+4}, v{U+5}, v{U+4}, v{U+4}"); a(f"v_mov_b32 v{U+5}, v{U+4}")
        for e in range(0, 8, 2): a(f"v_pk_mul_f32 v[{T+e}:{T+e+1}], v[{T+e}:{T+e+1}], v[{U+4}:{U+5}]")
        for e in range(4): a(f"v_cvt_pk_bf16_f32 v{OUT+e}, v{T+2*e}, v{T+2*e+1}")

    def gen_fin(self):
        a, L, c = self.a, self.L, self.c
        c("================ final reduce ================")
        L("L_fin")
        a("s_load_dwordx2 s[36:37], s[0:1], 72")
        a("v_lshrrev_b32 v2, 4, v1")
        a("v_and_b32 v3, 15, v1")
        a("s_lshl_b32 s24, s3, 2"); a("v_add_u32 v4, s24, v2")
        a("v_lshlrev_b32 v4, 11, v4"); a("v_lshl_add_u32 v4, v3, 4, v4")
        a("s_lshl_b32 s25, s22, 8"); a("v_add_u32 v4, s25, v4")
        a(f"v_add_u32 v5, {WS_T1O}, v4"); a(f"v_add_u32 v6, {WS_FFO}, v4"); a(f"v_add_u32 v7, {32*2048}, v6")
        a("v_bfrev_b32 v8, v2"); a("v_lshrrev_b32 v8, 30, v8")
        a("v_lshl_add_u32 v8, v3, 2, v8"); a("v_lshlrev_b32 v8, 2, v8")
        a("s_lshl_b32 s26, s3, 8"); a(f"s_add_u32 s26, s26, {L_ACC}"); a("v_add_u32 v8, s26, v8")
        def red(r):
            self.nop(2)
            a(f"v_permlane32_swap_b32 v{r}, v{r+1}"); a(f"v_permlane32_swap_b32 v{r+2}, v{r+3}")
            self.nop(1)
            a(f"v_add_f32 v{r}, v{r}, v{r+1}"); a(f"v_add_f32 v{r+2}, v{r+2}, v{r+3}")
            self.nop(2)
            a(f"v_permlane16_swap_b32 v{r}, v{r+2}")
            self.nop(1)
            a(f"v_add_f32 v{r}, v{r}, v{r+2}")
        if self.stag:
            self.poll_stag("fin1", lambda b: a(f"global_load_dwordx4 v[{b}:{b+3}], v5, s[20:21] sc1"), 1, 4, 44, 48, 12, 10, sleep=self.stag)
        else:
            def loads1(): a("global_load_dwordx4 v[12:15], v5, s[20:21] sc1")
            self.poll_sentinel("fin1", loads1, [12, 13, 14, 15], 10)
        red(12)
        a("ds_write_b32 v8, v12")
        a("v_lshlrev_b32 v9, 2, v1"); a(f"v_add_u32 v9, {L_ACC}, v9")
        a("s_lshl_b32 s25, s22, 7"); a(f"s_add_u32 s25, s25, {L_XR}")
        a("v_lshlrev_b32 v10, 1, v1"); a("v_add_u32 v11, s25, v10")
        a("ds_read_u16 v32, v11")
        a("s_lshl_b32 s27, s22, 8"); a(f"s_add_u32 s27, s27, {WS_HO}")
        a("v_lshlrev_b32 v34, 2, v1"); a("v_add_u32 v34, s27, v34")
        a("s_waitcnt lgkmcnt(0)")
        a("s_barrier")
        a("s_cmp_lg_u32 s3, 0"); a("s_cbranch_scc1 L_fin_fb")
        for w in range(8): a(f"ds_read_b32 v{16+w}, v9 offset:{w*256}")
        a("v_lshlrev_b32 v32, 16, v32")
        for w in range(1, 8):
            a(f"s_waitcnt lgkmcnt({7-w})")
            a(f"v_add_f32 v16, v16, v{16+w}")
        a("v_cvt_pk_bf16_f32 v33, v16, v16"); a("v_and_b32 v16, 0xffff0000, v33")
        a("v_add_f32 v16, v16, v32")
        a("v_cvt_pk_bf16_f32 v33, v16, v16"); a("v_and_b32 v40, 0xffff0000, v33")
        self.store_wide(40, 36, 34)
        L("L_fin_fb")
        a("s_cmp_lt_u32 s3, 6"); a("s_cbranch_scc1 L_fin_two")
        if self.stag:
            self.poll_stag("fin2a", lambda b: a(f"global_load_dwordx4 v[{b}:{b+3}], v6, s[20:21] sc1"), 1, 4, 52, 56, 12, 10, sleep=self.stag)
        else:
            def loads2a(): a("global_load_dwordx4 v[12:15], v6, s[20:21] sc1")
            self.poll_sentinel("fin2a", loads2a, [12, 13, 14, 15], 10)
        a("s_branch L_fin_red")
        L("L_fin_two")
        if self.stag:
            def ld3(b):
                a(f"global_load_dwordx4 v[{b}:{b+3}], v6, s[20:21] sc1")
                a(f"global_load_dwordx4 v[{b+4}:{b+7}], v7, s[20:21] sc1")
            self.poll_stag("fin2b", ld3, 2, 8, 52, 60, 12, 10, sleep=self.stag)
        else:
            self.poll_incr("fin2b", [("global_load_dwordx4 v[12:15], v6, s[20:21] sc1", [12, 13, 14, 15]),
                                     ("global_load_dwordx4 v[16:19], v7, s[20:21] sc1", [16, 17, 18, 19])], 10)
        for e in range(4): a(f"v_add_f32 v{12+e}, v{12+e}, v{16+e}")
        L("L_fin_red")
        self.stamp(5)
        red(12)
        a("ds_write_b32 v8, v12 offset:2048")
        a("s_waitcnt lgkmcnt(0)")
        a("s_barrier")
        a("s_cmp_lg_u32 s3, 0"); a("s_cbranch_scc1 L_exit")
        for w in range(8): a(f"ds_read_b32 v{24+w}, v9 offset:{2048+w*256}")
        for w in range(1, 8):
            a(f"s_waitcnt lgkmcnt({7-w})")
            a(f"v_add_f32 v24, v24, v{24+w}")
        a("v_cvt_pk_bf16_f32 v33, v24, v24"); a("v_and_b32 v24, 0xffff0000, v33")
        a("v_add_f32 v16, v40, v24")
        a("v_cvt_pk_bf16_f32 v33, v16, v16")
        a("s_lshl_b32 s25, s22, 7"); a("v_lshlrev_b32 v10, 1, v1"); a("v_add_u32 v10, s25, v10")
        a("global_store_short v10, v33, s[36:37]")
        a("s_cmp_lg_u32 s22, 0"); a("s_cbranch_scc1 L_fin_end")
        a(f"v_mov_b32 v34, {L_XN + 1020}")
        a("ds_read_b32 v35, v34")
        a("s_waitcnt lgkmcnt(0)")
        a("v_mov_b32 v34, 0")
        a("s_mov_b64 exec, 1")
        a("global_store_dword v34, v35, s[20:21] sc1")
        a("s_mov_b64 exec, -1")
        L("L_fin_end")
        self.stamp(6)
        a("s_branch L_exit")

    def gen_helper(self):
        a, L, c = self.a, self.L, self.c
        c("================ helper wave ================")
        L("L_helper")
        if "nosup" in self.exp: a("s_barrier"); a("s_branch L_exit")
        a("s_setprio 3")
        a("s_load_dwordx2 s[56:57], s[0:1], 0")
        a("s_load_dwordx2 s[8:9], s[0:1], 24")
        if self.b0early:
            a(f"v_mov_b32 v18, {L_QF}"); a("v_mov_b32 v6, 0"); a("ds_write_b32 v18, v6"); a("ds_write_b32 v18, v6 offset:4")
            a("s_waitcnt lgkmcnt(0)")
            a("s_barrier")
        a("s_and_b32 s24, s23, 7"); a("s_lshr_b32 s25, s23, 3")
        a("s_mul_i32 s26, s25, 112")
        a("s_lshl_b32 s27, s22, 3"); a("s_add_u32 s27, s27, s24"); a("s_lshl_b32 s27, s27, 7")
        a("v_lshrrev_b32 v2, 3, v1"); a("v_add_u32 v3, s26, v2"); a("v_lshlrev_b32 v3, 13, v3")
        a("v_and_b32 v4, 7, v1"); a("v_lshl_add_u32 v3, v4, 4, v3"); a("v_add_u32 v3, s27, v3")
        a("v_lshlrev_b32 v5, 4, v1")
        a("v_mov_b32 v6, 0")
        a("s_waitcnt lgkmcnt(0)")
        a("s_mov_b32 s40, s56"); a("s_mov_b32 s41, s57"); a("s_mov_b32 s42, 896"); a("s_mov_b32 s43, 0x20000")
        a("s_mov_b32 s44, s8"); a("s_mov_b32 s45, s9"); a(f"s_mov_b32 s46, {448*4096*2}"); a("s_mov_b32 s47, 0x20000")
        a("s_load_dword s36, s[20:21], 0x0")
        a("buffer_load_dwordx4 v[8:11], v5, s[40:43], 0 offen")
        WQ = 64
        for i in range(14):
            a(f"s_mov_b32 s28, {i*8*8192}")
            if "nowq" not in self.exp: a(f"buffer_load_dwordx4 v[{WQ+4*i}:{WQ+4*i+3}], v3, s[44:47], s28 offen{self.ntw}")
        a("s_cmp_lg_u32 s23, 0"); a("s_cbranch_scc1 L_h_nocnt")
        a("s_lshl_b32 s28, s22, 8"); a(f"s_add_u32 s28, s28, {WS_CNT}"); a("v_mov_b32 v17, s28")
        a("s_mov_b64 exec, 1")
        a("global_store_dword v17, v6, s[20:21] sc1")
        a("s_mov_b64 exec, -1")
        L("L_h_nocnt")
        if not self.b0early:
            a(f"v_mov_b32 v18, {L_QF}"); a("ds_write_b32 v18, v6"); a("ds_write_b32 v18, v6 offset:4")
            a("s_waitcnt lgkmcnt(0)")
            a("s_barrier")
        else:
            a("s_waitcnt lgkmcnt(0)")
        a("s_waitcnt vmcnt(14)" )
        self.stamp(0)
        a(f"v_add_u32 v18, {L_XR}, v5")
        a("v_cmp_gt_u32 vcc, 56, v1")
        a("s_and_saveexec_b64 s[32:33], vcc")
        a("ds_write_b128 v18, v[8:11]")
        a("s_mov_b64 exec, s[32:33]")
        for e in range(4):
            a(f"v_lshlrev_b32 v{20+2*e}, 16, v{8+e}"); a(f"v_and_b32 v{21+2*e}, 0xffff0000, v{8+e}")
        a("s_mul_i32 s36, s36, 0x9E3779B1"); a("s_add_u32 s36, s36, 0x7F4A7C15")
        a("v_mov_b32 v19, s36"); a(f"v_mov_b32 v18, {L_XN+1020}")
        a("ds_write_b32 v18, v19")
        self.layernorm(20, 28, 36, 44)
        a(f"v_add_u32 v18, {L_XN}, v5")
        a("v_cmp_gt_u32 vcc, 56, v1")
        a("s_and_saveexec_b64 s[32:33], vcc")
        a("ds_write_b128 v18, v[44:47]")
        a("s_mov_b64 exec, s[32:33]")
        a("v_add_u32 v18, s26, v2"); a("v_lshlrev_b32 v18, 1, v18"); a(f"v_add_u32 v18, {L_XN}, v18")
        a("s_waitcnt lgkmcnt(0)")
        for i in range(14): a(f"ds_read_u16 v{48+i}, v18 offset:{i*16}")
        for j in range(8): a(f"v_mov_b32 v{28+j}, 0")
        a("s_waitcnt vmcnt(0) lgkmcnt(0)")
        self.stamp(1)
        for i in range(14):
            a(f"v_lshlrev_b32 v62, 16, v{48+i}")
            for w in range(4):
                a(f"v_dot2c_f32_bf16 v{28+2*w}, v{WQ+4*i+w}, v{48+i}")
                a(f"v_dot2c_f32_bf16 v{28+2*w+1}, v{WQ+4*i+w}, v62")
        self.nop(3)
        for j in range(4): a(f"v_permlane32_swap_b32 v{28+j}, v{32+j}")
        self.nop(1)
        for j in range(4): a(f"v_add_f32 v{28+j}, v{28+j}, v{32+j}")
        self.nop(2)
        for j in range(2): a(f"v_permlane16_swap_b32 v{28+j}, v{30+j}")
        self.nop(1)
        for j in range(2): a(f"v_add_f32 v{28+j}, v{28+j}, v{30+j}")
        self.nop(2)
        for j in range(2): a(f"v_add_f32_dpp v{28+j}, v{28+j}, v{28+j} row_ror:8 row_mask:0xf bank_mask:0xf")
        a("v_mov_b32 v30, v29"); a("v_mov_b32 v29, s36"); a("v_mov_b32 v31, s36")
        a("v_lshlrev_b32 v32, 6, v4")
        a("v_bfe_u32 v33, v1, 5, 1"); a("v_lshl_add_u32 v32, v33, 5, v32")
        a("v_bfe_u32 v33, v1, 4, 1"); a("v_lshl_add_u32 v32, v33, 4, v32")
        a("s_lshl_b32 s28, s2, 9"); a(f"s_add_u32 s28, s28, {WS_QG}"); a("v_add_u32 v32, s28, v32")
        a("v_and_b32 v33, 8, v1"); a("v_cmp_eq_u32 vcc, 0, v33")
        a("s_and_saveexec_b64 s[32:33], vcc")
        a("global_store_dwordx4 v32, v[28:31], s[20:21] sc1")
        a("s_mov_b64 exec, s[32:33]")
        self.stamp(2)
        a("s_getpc_b64 s[44:45]")
        L("L_pc")
        a(f"s_sub_u32 s44, s44, L_pc - {KNAME}"); a("s_subb_u32 s45, s45, 0")
        a("v_lshlrev_b32 v60, 7, v1")
        for i in range(0 if "nopf" in self.exp else self.code_kb // 8):
            a(f"v_cmp_gt_u32 vcc, L_end - {KNAME}, v60")
            a("s_and_saveexec_b64 s[46:47], vcc")
            a(f"global_load_dword v{61+i}, v60, s[44:45]")
            a("s_mov_b64 exec, s[46:47]")
            a("v_add_u32 v60, 0x2000, v60")
        a(f"v_mov_b32 v160, {L_QF}"); a("v_mov_b32 v161, 1")
        a("ds_write_b32 v160, v161 offset:4")
        a("v_mov_b32 v153, s36")
        a("s_branch L_sup_gather")
        L("L_h_resets")
        if "nores" in self.exp.split(","): a("s_branch L_exit")
        self.gen_resets("h", self.early_reset == 0)
        a("s_branch L_sup_dma")
        L("L_h_tokens")
        if "notok" in self.exp: a("s_branch L_exit")
        a("s_cmp_eq_u32 s29, 0"); a("s_cbranch_scc1 L_exit")
        a("s_cmp_eq_u32 s29, 1"); a("s_cbranch_scc0 L_h_tok_fin")
        a("v_and_b32 v20, 31, v1"); a("s_lshl_b32 s28, s22, 5"); a("v_add_u32 v20, s28, v20")
        a(f"v_lshlrev_b32 v21, 2, v20"); a(f"v_add_u32 v21, {WS_TOK}, v21")
        self.poll_tag("tok0", 21)
        a("s_branch L_h_end")
        L("L_h_tok_fin")
        a("s_cmp_eq_u32 s29, 3"); a("s_cbranch_scc1 L_h_tok_fin2")
        a("v_min_u32 v20, 6, v1"); a("v_lshlrev_b32 v21, 5, v20"); a("v_add_u32 v21, 22, v21")
        a("v_lshlrev_b32 v21, 2, v21"); a(f"v_add_u32 v21, {WS_TOK}, v21")
        self.poll_tag("tokr", 21)
        a("s_branch L_h_end")
        L("L_h_tok_fin2")
        a("v_and_b32 v20, 31, v1")
        a("v_lshrrev_b32 v21, 2, v20"); a("v_lshlrev_b32 v21, 5, v21"); a("v_and_b32 v22, 3, v20"); a("v_lshl_add_u32 v21, v22, 1, v21")
        a("v_lshlrev_b32 v21, 2, v21"); a(f"v_add_u32 v21, {WS_TOK}, v21")
        self.poll_tag("tok1", 21)
        a("v_min_u32 v20, 55, v1")
        a("v_and_b32 v21, 7, v20"); a("v_lshlrev_b32 v21, 5, v21"); a("v_lshrrev_b32 v22, 3, v20"); a("v_lshl_add_u32 v21, v22, 1, v21")
        a("v_add_u32 v21, 8, v21"); a("v_lshlrev_b32 v21, 2, v21"); a(f"v_add_u32 v21, {WS_TOK}, v21")
        self.poll_tag("tok2", 21)
        L("L_h_end")
        self.stamp(4)
        a("s_branch L_exit")


    def gen_resets(self, p, stores, token=True):
        a, L = self.a, self.L
        st = (lambda ins: self.rs(ins)) if stores else (lambda ins: None)
        a("v_lshlrev_b32 v5, 4, v1")
        a("v_mov_b32 v12, -1"); a("v_mov_b32 v13, -1"); a("v_mov_b32 v14, -1"); a("v_mov_b32 v15, -1")
        a("s_lshl_b32 s28, s2, 11"); a(f"s_add_u32 s28, s28, {WS_H1}"); a("v_add_u32 v16, s28, v5")
        st("global_store_dwordx4 v16, v[12:15], s[20:21] sc1")
        st("global_store_dwordx4 v16, v[12:15], s[20:21] offset:1024 sc1")
        a("s_lshl_b32 s28, s2, 4"); a(f"s_add_u32 s28, s28, {WS_ML}"); a("v_mov_b32 v17, s28")
        a("s_mov_b64 exec, 1")
        st("global_store_dwordx4 v17, v[12:15], s[20:21] sc1")
        a("s_mov_b64 exec, -1")
        a("s_mov_b32 s29, 0")
        a("s_bitcmp1_b32 s23, 0"); a(f"s_cbranch_scc1 L_{p}_role_done")
        a("s_cmp_lt_u32 s23, 8"); a(f"s_cbranch_scc0 L_{p}_not_t1")
        a("s_mov_b32 s29, 1")
        a("s_lshr_b32 s30, s23, 1"); a("s_lshl_b32 s31, s22, 2"); a("s_add_u32 s30, s30, s31")
        a("s_lshl_b32 s31, s30, 11"); a(f"s_add_u32 s31, s31, {WS_T1O}")
        a(f"s_branch L_{p}_reset_role")
        L(f"L_{p}_not_t1")
        a("s_cmp_lt_u32 s23, 22"); a(f"s_cbranch_scc0 L_{p}_not_ffn")
        a("s_mov_b32 s29, 2")
        a("s_sub_u32 s30, s23, 8"); a("s_lshr_b32 s30, s30, 1"); a("s_lshl_b32 s30, s30, 3"); a("s_add_u32 s30, s30, s22")
        a("s_lshl_b32 s31, s30, 11"); a(f"s_add_u32 s31, s31, {WS_FFO}")
        L(f"L_{p}_reset_role")
        a("v_add_u32 v16, s31, v5")
        st("global_store_dwordx4 v16, v[12:15], s[20:21] sc1")
        st("global_store_dwordx4 v16, v[12:15], s[20:21] offset:1024 sc1")
        a(f"s_branch L_{p}_role_done")
        L(f"L_{p}_not_ffn")
        a("s_cmp_eq_u32 s23, 22"); a(f"s_cbranch_scc0 L_{p}_role_done")
        a("s_cmp_lt_u32 s22, 7"); a(f"s_cbranch_scc0 L_{p}_role_done")
        a("s_mov_b32 s29, 3")
        a("s_lshl_b32 s31, s22, 8"); a(f"s_add_u32 s31, s31, {WS_HO}"); a("v_add_u32 v16, s31, v5")
        a("s_mov_b64 exec, 0xffff")
        st("global_store_dwordx4 v16, v[12:15], s[20:21] sc1")
        a("s_mov_b64 exec, -1")
        L(f"L_{p}_role_done")
        if stores and token: self.gen_token()

    def gen_token(self):
        a = self.a
        if True:
            a("s_waitcnt vmcnt(0)")
            a("s_lshl_b32 s28, s2, 2"); a(f"s_add_u32 s28, s28, {WS_TOK}"); a("v_mov_b32 v17, s28"); a("v_mov_b32 v18, s36")
            a("s_mov_b64 exec, 1")
            a("global_store_dword v17, v18, s[20:21] sc1")
            a("s_mov_b64 exec, -1")

    def gen_support(self):
        a, L, c = self.a, self.L, self.c
        c("================ support waves 9..11 (and the helper after its q slice) ================")
        L("L_support")
        if "nosup" in self.exp: a("s_barrier"); a("s_branch L_exit")
        a("s_setprio 3")
        a("s_waitcnt lgkmcnt(0)")
        a("s_load_dword s36, s[20:21], 0x0")
        a("s_barrier")
        if self.early_reset:
            a("s_cmp_eq_u32 s3, 9"); a("s_cbranch_scc0 L_sup_nores")
            self.gen_resets("e", True, token=False)
            L("L_sup_nores")
        a("s_waitcnt lgkmcnt(0)")
        a("s_mul_i32 s36, s36, 0x9E3779B1"); a("s_add_u32 s36, s36, 0x7F4A7C15")
        a("v_mov_b32 v153, s36")
        if self.early_reset:
            a("s_cmp_eq_u32 s3, 9"); a("s_cbranch_scc0 L_sup_notok")
            self.gen_token()
            L("L_sup_notok")
        a(f"v_mov_b32 v160, {L_QF}"); a(f"s_mov_b32 s37, {self.spin_max * 16}")
        L("L_sup_wait")
        a("ds_read_b32 v161, v160 offset:4"); a("s_waitcnt lgkmcnt(0)"); a("v_readfirstlane_b32 s42, v161")
        a("s_cmp_lg_u32 s42, 0"); a("s_cbranch_scc1 L_sup_gather")
        a("s_sleep 2")
        a("s_sub_u32 s37, s37, 1"); a("s_cmp_lg_u32 s37, 0"); a("s_cbranch_scc1 L_sup_wait")
        L("L_sup_gather")
        a("s_load_dwordx2 s[60:61], s[0:1], 32")
        a("s_load_dwordx4 s[64:67], s[0:1], 48")
        a("s_load_dwordx2 s[62:63], s[0:1], 64")
        NSUP = 4
        NCB = 2
        a("s_sub_u32 s28, s3, 8")
        a("s_lshl_b32 s27, s22, 5"); a("s_add_u32 s27, s27, s28"); a("s_lshl_b32 s27, s27, 9"); a(f"s_add_u32 s27, s27, {WS_QG}")
        a("v_lshrrev_b32 v150, 5, v1"); a("v_lshlrev_b32 v150, 12, v150")
        a("v_and_b32 v152, 31, v1"); a("v_lshl_add_u32 v150, v152, 4, v150"); a("v_add_u32 v150, s27, v150")
        a("v_add_u32 v151, 0x2000, v150")
        a("s_lshl_b32 s27, s28, 7"); a(f"s_add_u32 s27, s27, {L_Q}")
        a("v_lshlrev_b32 v152, 2, v152"); a("v_add_u32 v152, s27, v152")
        a(f"s_mov_b32 s37, {self.spin_max}")
        if self.qdelay: a(f"s_sleep {self.qdelay}")
        a("s_mov_b32 s42, 15")
        if "noqp" in self.exp: a("s_branch L_qdone")
        L("L_qpoll")
        for j in range(4):
            k, hf = j >> 1, j & 1
            a(f"s_bitcmp1_b32 s42, {j}"); a(f"s_cbranch_scc0 L_qnl{j}")
            a(f"global_load_dwordx4 v[{40+4*j}:{43+4*j}], {'v150' if hf == 0 else 'v151'}, s[20:21] offset:{k*NSUP*512} sc1")
            L(f"L_qnl{j}")
        a("s_waitcnt vmcnt(0)")
        for j in range(4):
            a(f"v_xor_b32 v154, v{41+4*j}, v153")
            a(f"v_bitop3_b32 v154, v154, v{43+4*j}, v153 bitop3:0xf6")
            a("v_cmp_ne_u32 vcc, 0, v154")
            a(f"s_cbranch_vccnz L_qnc{j}")
            a(f"s_bitset0_b32 s42, {j}")
            L(f"L_qnc{j}")
        a("s_cmp_eq_u32 s42, 0"); a("s_cbranch_scc1 L_qdone")
        a("s_sub_u32 s37, s37, 1"); a("s_cmp_lg_u32 s37, 0"); a("s_cbranch_scc1 L_qpoll")
        L("L_qdone")
        for k in range(NCB):
            b = 40 + 8 * k
            a(f"v_add_f32 v{b}, v{b}, v{b+4}"); a(f"v_add_f32 v{b+2}, v{b+2}, v{b+6}")
            a(f"v_mov_b32 v{b+4}, v{b}"); a(f"v_mov_b32 v{b+6}, v{b+2}")
        self.nop(2)
        for k in range(NCB):
            b = 40 + 8 * k
            a(f"v_permlane32_swap_b32 v{b}, v{b+4}"); a(f"v_permlane32_swap_b32 v{b+2}, v{b+6}")
        self.nop(1)
        for k in range(NCB):
            b = 40 + 8 * k
            a(f"v_add_f32 v{b}, v{b}, v{b+4}"); a(f"v_add_f32 v{b+2}, v{b+2}, v{b+6}")
            a(f"v_cvt_pk_bf16_f32 v{b}, v{b}, v{b+2}")
            a(f"ds_write_b32 v152, v{b} offset:{k*NSUP*128}")
        a("s_waitcnt lgkmcnt(0)")
        self.stamp(5)
        a(f"v_mov_b32 v160, {L_QF}"); a("v_mov_b32 v161, 1")
        a("s_mov_b64 exec, 1")
        a("ds_add_u32 v160, v161")
        a("s_mov_b64 exec, -1")
        if "nob1" not in self.exp: a("s_barrier")
        self.stamp(3)
        a("s_cmp_eq_u32 s3, 8"); a("s_cbranch_scc1 L_h_resets")
        L("L_sup_dma")
        if "nodma" not in self.exp: self.gen_weight_dma()
        a("s_waitcnt vmcnt(0)")
        a("s_cmp_eq_u32 s3, 8"); a("s_cbranch_scc1 L_h_tokens")
        self.stamp(4)
        a("s_branch L_exit")

    def gen_weight_dma(self):
        a, L = self.a, self.L
        NSUP = 4
        a("s_bitcmp1_b32 s23, 0"); a("s_cbranch_scc1 L_wd_done")
        a("s_cmp_lt_u32 s23, 22"); a("s_cbranch_scc0 L_wd_done")
        a("s_sub_u32 s34, s3, 8")
        a("v_lshlrev_b32 v144, 4, v1")
        a("s_cmp_lt_u32 s23, 8"); a("s_cbranch_scc0 L_wd_ffn")
        rows = 128 // NSUP
        a("s_mov_b32 s88, s60"); a("s_mov_b32 s89, s61"); a(f"s_mov_b32 s90, {4096*448*2}"); a("s_mov_b32 s91, 0x20000")
        a("s_lshr_b32 s30, s23, 1"); a("s_lshl_b32 s31, s22, 2"); a("s_add_u32 s30, s30, s31")
        a("s_lshl_b32 s30, s30, 7"); a(f"s_mul_i32 s31, s34, {rows}"); a("s_add_u32 s30, s30, s31")
        a("s_mul_i32 s38, s30, 896")
        a(f"s_mul_i32 s39, s31, {WPITCH}")
        a(f"s_mov_b32 s49, {rows}")
        self.dma_rows("s[88:91]", "v144", "s49")
        a("s_branch L_wd_done")
        L("L_wd_ffn")
        a("s_sub_u32 s30, s23, 8"); a("s_lshr_b32 s30, s30, 1"); a("s_lshl_b32 s30, s30, 3"); a("s_add_u32 s30, s30, s22")
        a("v_lshrrev_b32 v145, 2, v1"); a("v_bfe_u32 v146, v1, 4, 1"); a("v_lshlrev_b32 v146, 1, v146")
        a("v_and_b32 v147, 3, v1"); a("v_xor_b32 v147, v147, v146")
        a("v_mul_u32_u24 v145, 3584, v145"); a("v_lshl_add_u32 v145, v147, 4, v145")
        for m, (plo, base) in enumerate(((64, L_GATE), (66, L_UP))):
            a(f"s_mov_b32 s88, s{plo}"); a(f"s_mov_b32 s89, s{plo+1}"); a(f"s_mov_b32 s90, {448*1792*2}"); a("s_mov_b32 s91, 0x20000")
            a(f"s_mul_i32 s38, s34, {16*3584}"); a("s_lshl_b32 s31, s30, 6"); a("s_add_u32 s38, s38, s31")
            a("s_lshl_b32 s39, s34, 10"); a(f"s_add_u32 s39, s39, {base}")
            a("s_mov_b32 s49, s34")
            lab = self.newlabel("gu")
            L(lab)
            a("s_mov_b32 m0, s39")
            a(f"s_add_u32 s39, s39, {NSUP*1024}")
            a(f"buffer_load_dwordx4 v145, s[88:91], s38 offen{self.ntw if self.ntgu else ''} lds")
            a(f"s_add_u32 s38, s38, {NSUP*16*3584}")
            a(f"s_add_u32 s49, s49, {NSUP}"); a("s_cmp_lt_u32 s49, 28"); a(f"s_cbranch_scc1 {lab}")
        drows = 32 // NSUP
        a("s_mov_b32 s88, s62"); a("s_mov_b32 s89, s63"); a(f"s_mov_b32 s90, {1792*448*2}"); a("s_mov_b32 s91, 0x20000")
        a("s_lshl_b32 s31, s30, 5"); a(f"s_mul_i32 s49, s34, {drows}"); a("s_add_u32 s31, s31, s49")
        a("s_mul_i32 s38, s31, 896")
        a(f"s_mul_i32 s39, s49, {WPITCH}"); a(f"s_add_u32 s39, s39, {L_DOWN}")
        a(f"s_mov_b32 s49, {drows}")
        self.dma_rows("s[88:91]", "v144", "s49")
        L("L_wd_done")

    def dma_rows(self, srd, vaddr, cnt):
        a = self.a
        a("s_mov_b32 exec_hi, 0x00ffffff")
        lab = self.newlabel("rows")
        self.L(lab)
        a("s_mov_b32 m0, s39")
        a(f"s_add_u32 s39, s39, {WPITCH}")
        a(f"buffer_load_dwordx4 {vaddr}, {srd}, s38 offen{self.ntw} lds")
        a("s_add_u32 s38, s38, 896")
        a("s_waitcnt vmcnt(48)")
        a(f"s_sub_u32 {cnt}, {cnt}, 1"); a(f"s_cmp_lg_u32 {cnt}, 0"); a(f"s_cbranch_scc1 {lab}")
        a("s_mov_b64 exec, -1")

    def poll_tag(self, name, addr):
        a = self.a
        lab = self.newlabel(name); done = self.newlabel(name + "d")
        a(f"s_mov_b32 s37, {self.spin_max}")
        self.L(lab)
        a(f"global_load_dword v23, v{addr}, s[20:21] sc1")
        a("s_waitcnt vmcnt(0)")
        a("v_cmp_ne_u32 vcc, s36, v23")
        a(f"s_cbranch_vccz {done}")
        a("s_sleep 8")
        a("s_sub_u32 s37, s37, 1"); a("s_cmp_lg_u32 s37, 0"); a(f"s_cbranch_scc1 {lab}")
        self.L(done)

def emit(path, stf="sc1", ldf="sc1", **kw):
    g = Gen(**kw)
    body = g.build()
    def fix(l):
        if l.rstrip().endswith(" sc1"):
            if "_store_" in l: return l.rstrip()[:-3] + stf
            if "_load_" in l: return l.rstrip()[:-3] + ldf
        return l
    body = [fix(l) for l in body]
    hdr = open("cdna_kernels/" + KNAME[:-7] + ".s.ref").read().split("\n")
    top = [l for l in hdr if l.startswith(";") and "@launch" not in l and "Override launch" not in l and "grid=ceil" not in l]
    top = top[:15]
    out = top + [f"; @launch grid=(256,1,1) block=(768,1,1) lds={LDS_TOTAL}",
                 '.amdgcn_target "amdgcn-amd-amdhsa--gfx950"', ".text", f".globl {KNAME}", ".p2align 8",
                 f".type {KNAME},@function", f"{KNAME}:"]
    out += body
    out += ['.section .rodata,"a"', ".p2align 6", f".amdhsa_kernel {KNAME}",
            "  .amdhsa_next_free_vgpr 168", "  .amdhsa_next_free_sgpr 102", "  .amdhsa_accum_offset 168",
            "  .amdhsa_group_segment_fixed_size 0", "  .amdhsa_kernarg_size 96", "  .amdhsa_user_sgpr_count 2",
            "  .amdhsa_user_sgpr_kernarg_segment_ptr 1", "  .amdhsa_system_sgpr_workgroup_id_x 1",
            "  .amdhsa_float_denorm_mode_32 3", "  .amdhsa_float_denorm_mode_16_64 3",
            ".end_amdhsa_kernel", ""]
    open(path, "w").write("\n".join(out))

if __name__ == "__main__":
    import argparse
    ap = argparse.ArgumentParser()
    ap.add_argument("-o", default="main.s")
    ap.add_argument("--stamps", type=int, default=0)
    ap.add_argument("-S", type=int, default=5)
    ap.add_argument("--exp", default="")
    ap.add_argument("--NS", type=int, default=4)
    ap.add_argument("--TH", type=int, default=4)
    ap.add_argument("--taper", type=int, default=0)
    ap.add_argument("--pipe", type=int, default=1)
    ap.add_argument("--rot", type=int, default=11)
    ap.add_argument("--er", type=int, default=1)
    ap.add_argument("--b0", type=int, default=0)
    ap.add_argument("--ntgu", type=int, default=1)
    ap.add_argument("--stag", type=int, default=0)
    ap.add_argument("--SO", type=int, default=0)
    ap.add_argument("--qd", type=int, default=0)
    ap.add_argument("--stf", default="sc1")
    ap.add_argument("--ldf", default="sc1")
    args = ap.parse_args()
    emit(args.o, stf=args.stf, ldf=args.ldf, S=args.S, NS=args.NS, TH=args.TH, taper=args.taper, pipe=args.pipe, rot=args.rot, early_reset=args.er, b0early=args.b0, ntgu=args.ntgu, stag=args.stag, SO=args.SO, qdelay=args.qd, dbg_stamps=args.stamps, exp=args.exp)
    print("LDS", LDS_TOTAL)
```

```python
import sys

KNAME = "sequential_preLN__gqa_block_cached__geglu_ffn__decode_kernel"

WS_G   = 0x0
WS_QG  = 0x1000
WS_TOK = 0x30000
WS_CNT = 0x38000
WS_H1  = 0x40000
WS_ML  = 0xC0000
WS_T1O = 0xC4000
WS_HO  = 0xD4000
WS_FFO = 0xD8000
WS_DBG = 0x100000
WS_SIZE_USED = 0x200000

WPITCH = 928
L_W    = 0
L_GATE = 0
L_UP   = 28672
L_DOWN = 57344
L_Q    = 118784
L_XR   = L_Q + 1024
L_XN   = L_XR + 1024
L_M    = L_XN + 1024
L_L    = L_M + 64
L_QF   = L_M + 192
L_SCR  = L_M + 256
L_ACC  = L_SCR
L_PRIV = L_SCR + 16384
LDS_TOTAL = L_SCR + 32768

BLOCK = 768
SENT = 0xFFFFFFFF
LOG2E = 1.4426950408889634
import struct
def f2u(x): return struct.unpack("<I", struct.pack("<f", x))[0]
def hexf(x): return "0x%08x" % f2u(x)

class Gen:
    def __init__(self, S=5, NS=4, TH=3, taper=0, tailpf=1, pipe=1, rot=11, early_reset=1, b0early=0, ntgu=1, stag=0, SO=0, qdelay=0, code_kb=16, exp="", dbg_stamps=False, nt_stream=True, nt_w=True, spin_max=20000):
        self.o = []
        self.S = S
        self.NS = NS
        self.qdelay = qdelay
        self.SO = SO
        self.stag = stag
        self.b0early = b0early
        self.ntgu = ntgu
        self.early_reset = early_reset
        self.rot = rot
        self.pipe = pipe
        self.tailpf = tailpf
        self.taper = taper
        self.TH = TH
        self.exp = exp
        self.code_kb = code_kb
        self.stamps = dbg_stamps
        self.nt = " nt" if nt_stream else ""
        self.ntw = " nt" if nt_w else ""
        self.spin_max = spin_max
        self.lab = 0
    def a(self, s): self.o.append("  " + s)
    def L(self, s): self.o.append(s + ":")
    def c(self, s): self.o.append("  ; " + s)
    def newlabel(self, base):
        self.lab += 1
        return f"L_{base}_{self.lab}"
    def rs(self, ins):
        if "noreset" not in self.exp: self.a(ins)
    def nop(self, n):
        while n > 0:
            k = min(n, 16); self.a(f"s_nop {k-1}"); n -= k

    def row_allreduce(self, op, regs):
        for sh in (8, 4, 2, 1):
            if len(regs) < 3: self.nop(2 - (len(regs) - 1) if len(regs) > 0 else 2)
            for r in regs:
                self.a(f"{op}_dpp v{r}, v{r}, v{r} row_ror:{sh} row_mask:0xf bank_mask:0xf")
    def swap_allreduce(self, op, regs, tmps, kind):
        self.nop(1)
        for r, t in zip(regs, tmps): self.a(f"v_mov_b32 v{t}, v{r}")
        self.nop(2)
        for r, t in zip(regs, tmps): self.a(f"v_permlane{kind}_swap_b32 v{r}, v{t}")
        self.nop(1)
        for r, t in zip(regs, tmps): self.a(f"{op} v{r}, v{r}, v{t}")
    def wave_allreduce(self, op, regs, tmps, full=True):
        self.nop(2)
        self.row_allreduce(op, regs)
        self.swap_allreduce(op, regs, tmps, 16)
        if full: self.swap_allreduce(op, regs, tmps, 32)

    def stamp(self, idx):
        if not self.stamps: return
        self.a(f"s_memrealtime s[{70+2*idx}:{71+2*idx}]")
    def stamp_init(self):
        if not self.stamps: return
        for i in range(8): self.a(f"s_mov_b32 s{70+2*i}, 0")
    def stamp_flush(self):
        if not self.stamps: return
        a = self.a
        if self.stamps == 2:
            a("s_memrealtime s[92:93]")
            a("s_load_dwordx2 s[94:95], s[0:1], 80")
            a("s_waitcnt lgkmcnt(0)")
            a("s_lshl_b32 s98, s2, 4"); a("s_add_u32 s98, s98, s3")
            a("s_mov_b32 s99, 0")
            a(f"s_cmp_eq_u32 s98, {22*16}"); a("s_cbranch_scc1 L_dbgw")
            a("s_mov_b32 s99, 32")
            a(f"s_cmp_eq_u32 s98, {1*16+7}"); a("s_cbranch_scc0 L_end")
            self.L("L_dbgw")
            for i in range(7):
                a(f"s_sub_u32 s96, s{70+2*i}, s84"); a(f"v_mov_b32 v{8+i}, s96")
            a("s_sub_u32 s96, s92, s84"); a("v_mov_b32 v15, s96")
            a("v_mov_b32 v16, s99")
            a("s_mov_b64 exec, 1")
            a("global_store_dwordx4 v16, v[8:11], s[94:95]")
            a("global_store_dwordx4 v16, v[12:15], s[94:95] offset:16")
            return
        a("s_waitcnt lgkmcnt(0)")
        for i in range(8): a(f"v_mov_b32 v{8+i}, s{70+2*i}")
        a("s_lshl_b32 s98, s2, 9"); a("s_lshl_b32 s99, s3, 5"); a("s_add_u32 s98, s98, s99"); a(f"s_add_u32 s98, s98, {WS_DBG}")
        a("v_mov_b32 v16, s98")
        a("s_mov_b64 exec, 1")
        a("global_store_dwordx4 v16, v[8:11], s[20:21]")
        a("global_store_dwordx4 v16, v[12:15], s[20:21] offset:16")

    def build(self):
        a, L, c = self.a, self.L, self.c
        Q, KR, VR, ACC, FR, DD, ST, T = 8, 40, 72, 104, 120, 136, 140, 144
        R0, R1, PW, PR = 156, 157, 158, 159
        PT, PREG = FR, FR + 8
        c("---------------- entry ----------------")
        a("s_cmp_ge_u32 s2, 256")
        a("s_cbranch_scc1 L_end")
        self.stamp_init(); self.stamp(7)
        a("s_load_dwordx4 s[4:7], s[0:1], 8")
        a("s_load_dwordx2 s[20:21], s[0:1], 88")
        a("v_lshrrev_b32 v1, 6, v0")
        a("s_lshr_b32 s22, s2, 5")
        a("v_readfirstlane_b32 s3, v1")
        a("s_and_b32 s23, s2, 31")
        a("v_and_b32 v1, 63, v0")
        a("s_cmp_eq_u32 s3, 8")
        a("s_cbranch_scc1 L_helper")
        a("s_cmp_gt_u32 s3, 8")
        a("s_cbranch_scc1 L_support")
        c("---------------- streamer prologue ----------------")
        a("v_lshrrev_b32 v2, 3, v1")
        a("v_lshlrev_b32 v2, 9, v2")
        a("v_and_b32 v7, 7, v1")
        a("v_lshl_add_u32 v2, v7, 4, v2")
        a("v_add_u32 v5, 0x1000, v2")
        a("v_and_b32 v3, 31, v1")
        a("v_lshlrev_b32 v3, 4, v3")
        a("v_lshrrev_b32 v6, 5, v1")
        a("v_lshl_add_u32 v3, v6, 10, v3")
        if "lin" in self.exp.split(","):
            a("v_lshlrev_b32 v3, 4, v1"); a("v_mov_b32 v2, v3"); a("v_add_u32 v5, 0x1000, v2")
        a("v_add_u32 v4, 0x1000, v3")
        a("s_lshl_b32 s24, s23, 3")
        a("s_add_u32 s24, s24, s3")
        a("s_lshl_b32 s40, s24, 13")
        a("s_lshl_b32 s25, s22, 24")
        a("s_waitcnt lgkmcnt(0)")
        a("s_add_u32 s8, s4, s25"); a("s_addc_u32 s9, s5, 0"); a("s_mov_b32 s10, 0x1000000"); a("s_mov_b32 s11, 0x20000")
        a("s_add_u32 s12, s6, s25"); a("s_addc_u32 s13, s7, 0"); a("s_mov_b32 s14, 0x1000000"); a("s_mov_b32 s15, 0x20000")
        a("s_barrier")
        NS = self.NS
        RND = 256
        def first_load(i):
            if "lin" in self.exp.split(","):
                j = i & 7; reg = KR + 4 * i if i < 8 else VR + 4 * (i - 8)
                a(f"buffer_load_dwordx4 v[{reg}:{reg+3}], {'v3' if j < 4 else 'v4'}, {'s[8:11]' if i < 8 else 's[12:15]'}, s40 offen offset:{(j&3)*1024}{self.nt}")
                return
            if i < 8:
                cb, hf = i >> 1, i & 1
                a(f"buffer_load_dwordx4 v[{KR+4*i}:{KR+4*i+3}], {'v2' if hf == 0 else 'v5'}, s[8:11], s40 offen offset:{cb*128}{self.nt}")
            else:
                j = i - 8; iq, b = j >> 1, j & 1
                a(f"buffer_load_dwordx4 v[{VR+4*j}:{VR+4*j+3}], {'v3' if iq < 2 else 'v4'}, s[12:15], s40 offen offset:{(iq&1)*2048 + b*512}{self.nt}")
        def issue_k():
            for i in range(8): first_load(i)
        def issue_v():
            for i in range(8): first_load(8 + i)
        def k_pair(b):
            first_load(2 * b); first_load(2 * b + 1)
        def v_pair(q):
            first_load(8 + 2 * q); first_load(8 + 2 * q + 1)
        NFIRST = self.TH if self.TH else 16
        for i in range(NFIRST): first_load(i)
        FIRST_TILE = True
        a("s_lshl_b32 s46, s22, 8"); a(f"s_add_u32 s46, s46, {WS_CNT}")
        a("s_add_u32 s46, s20, s46"); a("s_addc_u32 s47, s21, 0")
        a("s_mov_b32 s43, 1")
        a("s_mov_b32 s59, 0")
        a("s_mov_b32 s38, s23"); a("s_mov_b32 s39, 0")
        a("s_mov_b32 s50, 0xffff0000"); a("s_mov_b32 s51, 0")
        a("s_mov_b32 s52, 0"); a("s_mov_b32 s53, 0x0000ffff")
        a("s_mov_b32 s54, 0"); a("s_mov_b32 s55, 0xffff0000")
        a("s_mov_b32 s57, 0x05040100"); a("s_mov_b32 s58, 0x07060302")
        a(f"s_mov_b32 s56, {hexf(LOG2E/16)}")
        a("s_mov_b32 s16, s20"); a("s_mov_b32 s17, s21"); a(f"s_mov_b32 s18, {WS_SIZE_USED}"); a("s_mov_b32 s19, 0x20000")
        a("s_lshl_b32 s26, s3, 12"); a(f"s_add_u32 s26, s26, {L_SCR}")
        a(f"v_bfe_u32 v{PW}, v1, 3, 1"); a(f"v_lshlrev_b32 v{PW}, 5, v{PW}")
        a(f"v_bfe_u32 v{T}, v1, 1, 1"); a(f"v_lshl_add_u32 v{PW}, v{T}, 4, v{PW}")
        a(f"v_bfe_u32 v{T}, v1, 2, 1"); a(f"v_lshl_add_u32 v{PW}, v{T}, 3, v{PW}")
        a(f"v_and_b32 v{T}, 1, v1"); a(f"v_lshl_add_u32 v{PW}, v{T}, 1, v{PW}")
        a(f"v_add_u32 v{PW}, s26, v{PW}")
        a(f"v_lshlrev_b32 v{PR}, 4, v6"); a(f"v_add_u32 v{PR}, s26, v{PR}")
        a(f"v_lshrrev_b32 v{T}, 4, v1"); a("v_and_b32 v6, 7, v1"); a(f"v_xor_b32 v6, v6, v{T}")
        a("v_lshlrev_b32 v6, 4, v6")
        a(f"v_lshrrev_b32 v{T+1}, 3, v1"); a(f"v_lshl_add_u32 v6, v{T+1}, 7, v6"); a("v_add_u32 v6, s26, v6")
        a("v_xor_b32 v7, 64, v6"); a("v_add_u32 v7, 0x400, v7")
        a(f"v_bfe_u32 v{R0}, v1, 1, 3"); a(f"v_xor_b32 v{R0}, v{R0}, v{T}")
        a(f"v_lshlrev_b32 v{R0}, 4, v{R0}")
        a(f"v_and_b32 v{T+1}, 15, v1"); a(f"v_lshl_add_u32 v{R0}, v{T+1}, 7, v{R0}"); a(f"v_add_u32 v{R0}, s26, v{R0}")
        a(f"v_xor_b32 v{R1}, 64, v{R0}")
        a(f"v_and_b32 v{T+1}, 1, v1"); a(f"v_lshlrev_b32 v{T+1}, 9, v{T+1}")
        a(f"v_lshl_add_u32 v{T+1}, v{T}, 4, v{T+1}"); a(f"v_add_u32 v{T+1}, {L_Q}, v{T+1}")
        a(f"v_mov_b32 v{ST}, 0xff800000"); a(f"v_mov_b32 v{ST+1}, 0xff800000"); a(f"v_mov_b32 v{ST+2}, 0"); a(f"v_mov_b32 v{ST+3}, 0")
        for j in range(16): a(f"v_mov_b32 v{ACC+j}, 0")
        a(f"v_mov_b32 v160, {L_QF}"); a("s_mov_b32 s42, 0")
        for i in range(NFIRST, 16):
            if self.TH and i >= self.TH:
                a(f"s_cmp_eq_u32 s42, 4"); a(f"s_cbranch_scc1 L_fl{i}")
                a("ds_read_b32 v161, v160"); a("s_waitcnt lgkmcnt(0)"); a("v_readfirstlane_b32 s42, v161")
                a(f"s_cmp_eq_u32 s42, 4"); a(f"s_cbranch_scc1 L_fl{i}")
                a(f"s_waitcnt vmcnt({self.TH-1})")
                L(f"L_fl{i}")
            first_load(i)
        self.stamp(0)
        a(f"s_mov_b32 s37, {self.spin_max * 16}")
        L("L_qwait")
        if "noq" in self.exp: a("s_branch L_qready")
        a("s_cmp_eq_u32 s42, 4"); a("s_cbranch_scc1 L_qready")
        a("s_sleep 1")
        a("ds_read_b32 v161, v160"); a("s_waitcnt lgkmcnt(0)"); a("v_readfirstlane_b32 s42, v161")
        a("s_sub_u32 s37, s37, 1"); a("s_cmp_lg_u32 s37, 0"); a("s_cbranch_scc1 L_qwait")
        L("L_qready")
        if "nob1" not in self.exp: a("s_barrier")
        self.stamp(1)
        for st in range(8):
            a(f"ds_read_b128 v[{Q+4*st}:{Q+4*st+3}], v{T+1} offset:{st*64}")
        a("s_waitcnt lgkmcnt(0)")
        c("---------------- tile loop ----------------")
        L("L_proc")
        NOLD = 8 - NS
        SO = max(self.SO, self.S)
        POOL = self.S * RND + (SO - self.S) * 32 * NOLD
        def claim():
            a(f"s_cmp_lt_u32 s43, {self.S}"); a("s_cbranch_scc1 L_static")
            a(f"s_cmp_lt_u32 s3, {NOLD}"); a("s_cbranch_scc0 L_doclaim")
            a("s_mov_b32 s41, 0x10000")
            if SO > self.S:
                a(f"s_cmp_lt_u32 s43, {SO}"); a("s_cbranch_scc0 L_claimed")
                a(f"s_add_u32 s38, s38, {self.rot}"); a("s_and_b32 s38, s38, 31")
                a(f"s_sub_u32 s41, s43, {self.S}"); a(f"s_mul_i32 s41, s41, {32 * NOLD}")
                a(f"s_mul_i32 s48, s38, {NOLD}"); a("s_add_u32 s41, s41, s48"); a("s_add_u32 s41, s41, s3")
                a(f"s_sub_u32 s41, s41, {POOL - self.S * RND}")
            a("s_branch L_claimed")
            L("L_doclaim")
            a("s_mov_b32 s41, 1")
            a("s_atomic_add s41, s[46:47], 0x0 glc")
            a("s_branch L_claimed")
            L("L_static")
            a(f"s_add_u32 s39, s39, {RND}")
            a(f"s_add_u32 s38, s38, {self.rot}"); a("s_and_b32 s38, s38, 31")
            a("s_lshl_b32 s48, s38, 3"); a("s_add_u32 s48, s48, s3"); a("s_add_u32 s48, s48, s39")
            a(f"s_sub_u32 s41, s48, {POOL}")
            L("L_claimed")
            a("s_add_u32 s43, s43, 1")
        if self.pipe: claim()
        def kmfma(b):
            for e in range(2):
                st = 2 * b + e
                f = FR + 8 * (b & 1) + 4 * e
                src_c = "0" if st == 0 else f"v[{DD}:{DD+3}]"
                a(f"v_mfma_f32_16x16x32_bf16 v[{DD}:{DD+3}], v[{Q+4*st}:{Q+4*st+3}], v[{f}:{f+3}], {src_c}")
        for b in range(4):
            a(f"s_waitcnt vmcnt({6 if self.pipe == 2 else 14 - 2*b})")
            buf = (b & 1) * 2048
            if "nok" not in self.exp:
                a(f"ds_write_b128 v6, v[{KR+8*b}:{KR+8*b+3}] offset:{buf}")
                a(f"ds_write_b128 v7, v[{KR+8*b+4}:{KR+8*b+7}] offset:{buf}")
                f = FR + 8 * (b & 1)
                a(f"ds_read_b128 v[{f}:{f+3}], v{R0} offset:{buf}")
                a(f"ds_read_b128 v[{f+4}:{f+7}], v{R1} offset:{buf}")
            if self.pipe == 2:
                a("s_cmp_eq_u32 s43, 2"); a(f"s_cbranch_scc1 L_nov{b}")
                v_pair(b)
                L(f"L_nov{b}")
            if b > 0 and "nok" not in self.exp:
                a("s_waitcnt lgkmcnt(4)")
                kmfma(b - 1)
        a("s_waitcnt lgkmcnt(0)")
        kmfma(3)
        def resolve():
            a(f"s_add_u32 s41, s41, {POOL}")
            a("s_cmp_lt_u32 s41, 2048")
            a("s_cselect_b32 s10, 0x1000000, 0"); a("s_cselect_b32 s14, 0x1000000, 0"); a("s_cselect_b32 s40, s41, 0")
            a("s_mov_b32 s59, s41")
            a("s_lshl_b32 s40, s40, 13")
        if self.pipe == 1:
            resolve()
            issue_k()
        elif self.pipe == 2:
            resolve()
            self.nop(2)
        else:
            self.nop(8)
        if "nosm" in self.exp: a("s_branch L_aftersm")
        a(f"v_cvt_pk_bf16_f32 v{T}, v{DD}, v{DD+1}")
        a(f"v_lshlrev_b32 v{T+1}, 16, v{T}"); a(f"v_and_b32 v{T+2}, 0xffff0000, v{T}")
        a(f"v_mov_b32 v{T+3}, v{T+1}"); a(f"v_mov_b32 v{T+4}, v{T+2}")
        self.nop(1)
        self.row_allreduce("v_max_f32", [T+3, T+4])
        a(f"v_max_f32 v{T+3}, v{T+3}, v{ST}"); a(f"v_max_f32 v{T+4}, v{T+4}, v{ST+1}")
        a(f"v_cmp_gt_f32 vcc, v{T+3}, v{ST}")
        a(f"v_cmp_gt_f32 s[44:45], v{T+4}, v{ST+1}")
        a("s_or_b64 vcc, vcc, s[44:45]")
        a("s_cbranch_vccz L_norescale")
        a(f"v_sub_f32 v{T+5}, v{ST}, v{T+3}"); a(f"v_sub_f32 v{T+6}, v{ST+1}, v{T+4}")
        a(f"v_mul_f32 v{T+5}, s56, v{T+5}"); a(f"v_mul_f32 v{T+6}, s56, v{T+6}")
        a(f"v_exp_f32 v{T+5}, v{T+5}"); a(f"v_exp_f32 v{T+6}, v{T+6}")
        a(f"v_mov_b32 v{ST}, v{T+3}"); a(f"v_mov_b32 v{ST+1}, v{T+4}")
        for j in range(8):
            a(f"v_mul_f32 v{ACC+j}, v{T+5}, v{ACC+j}"); a(f"v_mul_f32 v{ACC+8+j}, v{T+6}, v{ACC+8+j}")
        a(f"v_mul_f32 v{ST+2}, v{T+5}, v{ST+2}"); a(f"v_mul_f32 v{ST+3}, v{T+6}, v{ST+3}")
        L("L_norescale")
        a(f"v_mul_f32 v{T+5}, s56, v{ST}"); a(f"v_mul_f32 v{T+6}, s56, v{ST+1}")
        a(f"v_fma_f32 v{T+1}, v{T+1}, s56, -v{T+5}"); a(f"v_fma_f32 v{T+2}, v{T+2}, s56, -v{T+6}")
        a(f"v_exp_f32 v{T+1}, v{T+1}"); a(f"v_exp_f32 v{T+2}, v{T+2}")
        self.nop(1)
        a(f"v_cvt_pk_bf16_f32 v{T}, v{T+1}, v{T+2}")
        a(f"v_add_f32 v{ST+2}, v{ST+2}, v{T+1}"); a(f"v_add_f32 v{ST+3}, v{ST+3}, v{T+2}")
        a("s_mov_b64 exec, 0xffff")
        a(f"ds_write_b16 v{PW}, v{T}"); a(f"ds_write_b16_d16_hi v{PW}, v{T} offset:4")
        a("s_mov_b64 exec, -1")
        a(f"ds_read_b128 v[{PREG}:{PREG+3}], v{PR}"); a(f"ds_read_b128 v[{PREG+4}:{PREG+7}], v{PR} offset:32")
        L("L_aftersm")
        if not self.pipe:
            a("s_waitcnt lgkmcnt(0)")
            claim()
        for iq in range(4):
            la, lb = VR + 8 * iq, VR + 8 * iq + 4
            a(f"s_waitcnt vmcnt({6 if self.pipe == 2 else (14 if self.pipe else 6) - 2*iq})")
            if "nopv" not in self.exp:
                for w in range(4):
                    a(f"v_perm_b32 v{PT+2*w}, v{lb+w}, v{la+w}, s57")
                    a(f"v_perm_b32 v{PT+2*w+1}, v{lb+w}, v{la+w}, s58")
            if self.pipe == 2: k_pair(iq)
            if "nopv" in self.exp: continue
            if self.pipe and iq in (0, 2): a(f"s_waitcnt lgkmcnt({1 if iq == 0 else 0})")
            pr = PREG + 4 * (iq >> 1) + 2 * (iq & 1)
            for h in range(2):
                for j in range(8):
                    a(f"v_dot2c_f32_bf16 v{ACC+8*h+j}, v{PT+j}, v{pr+h}")
        if self.pipe:
            if self.pipe == 1: issue_v()
            a("s_cmp_lg_u32 s10, 0"); a("s_cbranch_scc1 L_proc")
        else:
            a("s_waitcnt lgkmcnt(0)")
            resolve()
            a("s_cmp_eq_u32 s10, 0"); a("s_cbranch_scc1 L_stream_done")
            issue_k(); issue_v()
            a("s_branch L_proc")
        L("L_stream_done")
        a("s_waitcnt vmcnt(0)")
        self.stamp(3)
        if self.tailpf:
            a("s_cmp_lg_u32 s3, 0"); a("s_cbranch_scc1 L_nopf")
            a("s_getpc_b64 s[44:45]")
            L("L_pc2")
            a(f"v_lshlrev_b32 v{T}, 7, v1")
            a(f"v_cmp_gt_u32 vcc, L_helper - L_pc2, v{T}")
            a("s_and_saveexec_b64 s[46:47], vcc")
            a(f"global_load_dword v{T+1}, v{T}, s[44:45]")
            a("s_mov_b64 exec, s[46:47]")
            L("L_nopf")
        self.nop(2)
        self.row_allreduce("v_add_f32", [ST+2, ST+3])
        a("s_lshl_b32 s27, s3, 2"); a(f"s_add_u32 s27, s27, {L_M}")
        a(f"v_mov_b32 v{T}, s27")
        a("s_mov_b64 exec, 1")
        a(f"ds_write2_b32 v{T}, v{ST}, v{ST+1} offset0:0 offset1:8")
        a(f"ds_write2_b32 v{T}, v{ST+2}, v{ST+3} offset0:16 offset1:24")
        a("s_mov_b64 exec, -1")
        if "notail" in self.exp: a("s_branch L_exit")
        c("---------------- merge inside the workgroup ----------------")
        self.nop(3)
        for j in range(8): a(f"v_permlane32_swap_b32 v{ACC+j}, v{ACC+8+j}")
        self.nop(1)
        for j in range(8): a(f"v_add_f32 v{ACC+j}, v{ACC+j}, v{ACC+8+j}")
        a("s_lshl_b32 s27, s3, 12"); a(f"s_add_u32 s27, s27, {L_SCR + 1024}")
        a("v_lshlrev_b32 v24, 5, v1"); a("v_add_u32 v24, s27, v24")
        a(f"ds_write_b128 v24, v[{ACC}:{ACC+3}]")
        a(f"ds_write_b128 v24, v[{ACC+4}:{ACC+7}] offset:16")
        a("s_waitcnt lgkmcnt(0)")
        a("s_barrier")
        a("s_cmp_gt_u32 s3, 1"); a("s_cbranch_scc1 L_roles")
        a("s_lshl_b32 s27, s3, 5"); a(f"s_add_u32 s27, s27, {L_M}")
        a("v_mov_b32 v25, s27")
        a("ds_read_b128 v[8:11], v25"); a("ds_read_b128 v[12:15], v25 offset:16")
        a("ds_read_b128 v[16:19], v25 offset:64"); a("ds_read_b128 v[20:23], v25 offset:80")
        a("v_lshlrev_b32 v24, 4, v0"); a(f"v_add_u32 v25, {L_SCR + 1024}, v24")
        for w in range(8):
            a(f"ds_read_b128 v[{28+4*w}:{28+4*w+3}], v25 offset:{w*4096}")
        a("s_lshl_b32 s27, s2, 11"); a(f"s_add_u32 s27, s27, {WS_H1}")
        a("v_add_u32 v24, s27, v24")
        a("s_waitcnt lgkmcnt(10)")
        a("v_max3_f32 v60, v8, v9, v10"); a("v_max3_f32 v60, v60, v11, v12"); a("v_max3_f32 v60, v60, v13, v14"); a("v_max_f32 v60, v60, v15")
        a("v_mul_f32 v61, s56, v60")
        for w in range(8): a(f"v_fma_f32 v{8+w}, v{8+w}, s56, -v61")
        for w in range(8): a(f"v_exp_f32 v{8+w}, v{8+w}")
        a("s_waitcnt lgkmcnt(7)")
        for e in range(4): a(f"v_mul_f32 v{28+e}, v8, v{28+e}")
        for w in range(1, 8):
            a(f"s_waitcnt lgkmcnt({7-w})")
            for e in range(4):
                a(f"v_fma_f32 v{28+e}, v{8+w}, v{28+4*w+e}, v{28+e}")
        a("global_store_dwordx4 v24, v[28:31], s[20:21] sc1")
        a("v_mul_f32 v61, v8, v16")
        for w in range(1, 8): a(f"v_fma_f32 v61, v{8+w}, v{16+w}, v61")
        a("s_lshl_b32 s27, s2, 4"); a("s_lshl_b32 s28, s3, 3"); a("s_add_u32 s27, s27, s28"); a(f"s_add_u32 s27, s27, {WS_ML}")
        a("v_mov_b32 v24, s27")
        a("s_mov_b64 exec, 1")
        a("global_store_dwordx2 v24, v[60:61], s[20:21] sc1")
        a("s_mov_b64 exec, -1")
        c("---------------- role dispatch ----------------")
        L("L_roles")
        self.stamp(4)
        a("s_bitcmp1_b32 s23, 0"); a("s_cbranch_scc1 L_exit")
        a("s_cmp_lt_u32 s23, 8"); a("s_cbranch_scc1 L_t1")
        a("s_cmp_lt_u32 s23, 22"); a("s_cbranch_scc1 L_ffn")
        a("s_cmp_lg_u32 s23, 22"); a("s_cbranch_scc1 L_exit")
        a("s_cmp_lt_u32 s22, 7"); a("s_cbranch_scc1 L_fin")
        a("s_branch L_exit")
        self.gen_t1(); self.gen_ffn(); self.gen_fin(); self.gen_helper(); self.gen_support()
        L("L_exit")
        self.stamp_flush()
        L("L_end")
        a("s_endpgm")
        return self.o

    def poll_sentinel(self, name, loads, regs, tmp, cnt="s30", mask_exec=None):
        a = self.a
        lab = self.newlabel(name)
        a(f"s_mov_b32 {cnt}, {self.spin_max}")
        self.L(lab)
        loads()
        a("s_waitcnt vmcnt(0)")
        rs = list(regs)
        first = True
        while rs:
            if first:
                if len(rs) >= 3:
                    a(f"v_max3_u32 v{tmp}, v{rs[0]}, v{rs[1]}, v{rs[2]}"); rs = rs[3:]
                elif len(rs) == 2:
                    a(f"v_max_u32 v{tmp}, v{rs[0]}, v{rs[1]}"); rs = []
                else:
                    a(f"v_mov_b32 v{tmp}, v{rs[0]}"); rs = []
                first = False
            elif len(rs) >= 2:
                a(f"v_max3_u32 v{tmp}, v{tmp}, v{rs[0]}, v{rs[1]}"); rs = rs[2:]
            else:
                a(f"v_max_u32 v{tmp}, v{tmp}, v{rs[0]}"); rs = []
        a(f"v_cmp_eq_u32 vcc, -1, v{tmp}")
        done = self.newlabel(name + "_done")
        a(f"s_cbranch_vccz {done}")
        a(f"s_sub_u32 {cnt}, {cnt}, 1")
        a(f"s_cmp_lg_u32 {cnt}, 0")
        a(f"s_cbranch_scc1 {lab}")
        self.L(done)

    def poll_incr(self, name, items, tmp, cnt="s30", msk="s31"):
        a = self.a
        lab = self.newlabel(name); done = self.newlabel(name + "_done")
        n = len(items)
        a(f"s_mov_b32 {msk}, {(1 << n) - 1}"); a(f"s_mov_b32 {cnt}, {self.spin_max}")
        self.L(lab)
        for j, (ins, regs) in enumerate(items):
            a(f"s_bitcmp1_b32 {msk}, {j}"); a(f"s_cbranch_scc0 {lab}_nl{j}")
            a(ins)
            self.L(f"{lab}_nl{j}")
        a("s_waitcnt vmcnt(0)")
        for j, (ins, regs) in enumerate(items):
            rs = list(regs)
            if len(rs) == 4:
                a(f"v_max3_u32 v{tmp}, v{rs[0]}, v{rs[1]}, v{rs[2]}"); a(f"v_max_u32 v{tmp}, v{tmp}, v{rs[3]}")
            elif len(rs) == 2:
                a(f"v_max_u32 v{tmp}, v{rs[0]}, v{rs[1]}")
            a(f"v_cmp_eq_u32 vcc, -1, v{tmp}")
            a(f"s_cbranch_vccnz {lab}_nc{j}")
            a(f"s_bitset0_b32 {msk}, {j}")
            self.L(f"{lab}_nc{j}")
        a(f"s_cmp_eq_u32 {msk}, 0"); a(f"s_cbranch_scc1 {done}")
        a(f"s_sub_u32 {cnt}, {cnt}, 1"); a(f"s_cmp_lg_u32 {cnt}, 0"); a(f"s_cbranch_scc1 {lab}")
        self.L(done)

    def poll_stag(self, name, loads, n_ld, nreg, A, B, C, tmp, cnt="s30", sleep=4):
        a = self.a
        lab = self.newlabel(name); dA = lab + "_a"; dB = lab + "_b"; done = lab + "_done"
        def check(base, target):
            rs = list(range(base, base + nreg))
            a(f"v_max3_u32 v{tmp}, v{rs[0]}, v{rs[1]}, v{rs[2]}"); rs = rs[3:]
            while len(rs) >= 2:
                a(f"v_max3_u32 v{tmp}, v{tmp}, v{rs[0]}, v{rs[1]}"); rs = rs[2:]
            if rs: a(f"v_max_u32 v{tmp}, v{tmp}, v{rs[0]}")
            a(f"v_cmp_eq_u32 vcc, -1, v{tmp}")
            a(f"s_cbranch_vccz {target}")
        a(f"s_mov_b32 {cnt}, {self.spin_max}")
        loads(A)
        a(f"s_sleep {sleep}")
        self.L(lab)
        loads(B)
        a(f"s_waitcnt vmcnt({n_ld})")
        check(A, dA)
        loads(A)
        a(f"s_waitcnt vmcnt({n_ld})")
        check(B, dB)
        a(f"s_sub_u32 {cnt}, {cnt}, 1"); a(f"s_cmp_lg_u32 {cnt}, 0"); a(f"s_cbranch_scc1 {lab}")
        self.L(dB)
        for j in range(nreg): a(f"v_mov_b32 v{C+j}, v{B+j}")
        a(f"s_branch {done}")
        self.L(dA)
        for j in range(nreg): a(f"v_mov_b32 v{C+j}, v{A+j}")
        self.L(done)

    def select4(self, dst, d0, d1, d2, d3):
        a = self.a
        a(f"v_cndmask_b32 v{dst}, v{d0}, v{d1}, s[50:51]")
        a(f"v_cndmask_b32 v{dst}, v{dst}, v{d2}, s[52:53]")
        a(f"v_cndmask_b32 v{dst}, v{dst}, v{d3}, s[54:55]")

    def store_wide(self, src, tmp, addr):
        a = self.a
        self.nop(2)
        for j in range(4): a(f"v_mov_b32_dpp v{tmp+j}, v{src} quad_perm:[{j},{j},{j},{j}] row_mask:0xf bank_mask:0xf")
        a("s_mov_b32 exec_lo, 0x11111111"); a("s_mov_b32 exec_hi, 0x11111111")
        a(f"global_store_dwordx4 v{addr}, v[{tmp}:{tmp+3}], s[20:21] sc1")
        a("s_mov_b64 exec, -1")

    def round_bf16_pair(self, dst_pk, x0, x1, o0=None, o1=None):
        a = self.a
        a(f"v_cvt_pk_bf16_f32 v{dst_pk}, v{x0}, v{x1}")
        if o0 is not None: a(f"v_lshlrev_b32 v{o0}, 16, v{dst_pk}")
        if o1 is not None: a(f"v_and_b32 v{o1}, 0xffff0000, v{dst_pk}")

    def gen_t1(self):
        a, L, c = self.a, self.L, self.c
        c("================ T1: softmax combine + wo slice ================")
        L("L_t1")
        a("s_lshr_b32 s24, s23, 1")
        a("v_lshrrev_b32 v2, 2, v1")
        a(f"v_mul_u32_u24 v2, {WPITCH}, v2")
        a("v_and_b32 v3, 3, v1")
        a("v_lshl_add_u32 v2, v3, 3, v2")
        a("s_lshl_b32 s25, s3, 7")
        a("v_add_u32 v2, s25, v2")
        a(f"v_add_u32 v3, {64*WPITCH}, v2")
        BF = 64
        a("s_cmp_eq_u32 s3, 7"); a("s_cbranch_scc1 L_t1_nob")
        for ks in range(4):
            for tt in range(4):
                for h in range(2):
                    r = BF + ((ks * 4 + tt) * 2 + h) * 2
                    base = "v2" if ks < 2 else "v3"
                    off = (32 * (ks & 1) + 16 * h) * WPITCH + tt * 32
                    a(f"ds_read_b64_tr_b16 v[{r}:{r+1}], {base} offset:{off}")
            a("s_waitcnt lgkmcnt(0)")
        L("L_t1_nob")
        a("s_lshl_b32 s26, s22, 5")
        a("v_lshrrev_b32 v6, 5, v1")
        a("v_and_b32 v7, 31, v1")
        a("s_lshl_b32 s27, s3, 2"); a("s_add_u32 s27, s27, s26")
        a("v_add_u32 v8, s27, v6")
        a("v_lshlrev_b32 v9, 11, v8")
        a("v_lshl_add_u32 v9, v7, 4, v9")
        a("s_lshl_b32 s28, s24, 9"); a(f"s_add_u32 s28, s28, {WS_H1 + 2048}")
        a("v_add_u32 v9, s28, v9")
        a("s_lshr_b32 s29, s24, 1"); a("s_lshl_b32 s29, s29, 3"); a(f"s_add_u32 s29, s29, {WS_ML}")
        a("v_add_u32 v11, s26, v7"); a("v_lshlrev_b32 v11, 4, v11"); a("v_add_u32 v11, s29, v11")
        a("s_lshl_b32 s27, s3, 2"); a("v_add_u32 v10, s27, v6"); a("v_lshlrev_b32 v10, 2, v10"); a("v_add_u32 v22, 8, v10")
        a("v_lshl_add_u32 v52, v7, 2, v6"); a("v_lshlrev_b32 v52, 2, v52")
        a("s_lshl_b32 s27, s3, 9"); a(f"s_add_u32 s27, s27, {L_ACC}"); a("v_add_u32 v52, s27, v52")
        a("v_lshlrev_b32 v53, 3, v1"); a(f"v_add_u32 v53, {L_ACC}, v53")
        a("v_lshrrev_b32 v54, 4, v1"); a("v_lshlrev_b32 v55, 4, v54"); a("v_lshlrev_b32 v54, 6, v54")
        a("v_bfe_u32 v56, v1, 1, 2"); a("v_lshl_add_u32 v54, v56, 4, v54")
        a("v_bfe_u32 v56, v1, 3, 1"); a("v_lshl_add_u32 v54, v56, 3, v54")
        a("v_and_b32 v56, 1, v1"); a("v_lshl_add_u32 v54, v56, 2, v54")
        a("s_lshl_b32 s27, s3, 10"); a(f"s_add_u32 s27, s27, {L_PRIV}")
        a("v_add_u32 v54, s27, v54"); a("v_add_u32 v55, s27, v55")
        a("s_lshl_b32 s27, s22, 2"); a("s_add_u32 s27, s27, s24")
        a("s_lshl_b32 s27, s27, 11"); a(f"s_add_u32 s27, s27, {WS_T1O}")
        a("s_lshl_b32 s28, s3, 8"); a("s_add_u32 s27, s27, s28")
        a("v_lshlrev_b32 v56, 2, v1"); a("v_add_u32 v56, s27, v56")
        self.poll_incr("t1", [("global_load_dwordx4 v[12:15], v9, s[20:21] offset:-2048 sc1", [12, 13, 14, 15]),
                              ("global_load_dwordx4 v[16:19], v9, s[20:21] offset:2048 sc1", [16, 17, 18, 19]),
                              ("global_load_dwordx2 v[20:21], v11, s[20:21] sc1", [20, 21])], 24)
        self.stamp(5)
        a("v_mov_b32 v25, v20")
        self.wave_allreduce("v_max_f32", [25], [26], full=False)
        a("v_sub_f32 v27, v20, v25")
        a("v_mul_f32 v27, s56, v27")
        a("v_exp_f32 v27, v27")
        self.nop(1)
        a("ds_bpermute_b32 v28, v10, v27"); a("ds_bpermute_b32 v29, v22, v27")
        a("v_mul_f32 v31, v27, v21")
        self.nop(2)
        self.row_allreduce("v_add_f32", [31])
        a("s_waitcnt lgkmcnt(0)")
        for e in range(4): a(f"v_mul_f32 v{12+e}, v28, v{12+e}")
        for e in range(4): a(f"v_fma_f32 v{12+e}, v29, v{16+e}, v{12+e}")
        self.nop(2)
        a("v_permlane32_swap_b32 v12, v13"); a("v_permlane32_swap_b32 v14, v15")
        self.nop(1)
        a("v_add_f32 v12, v12, v13"); a("v_add_f32 v14, v14, v15")
        a("ds_write_b32 v52, v12"); a("ds_write_b32 v52, v14 offset:8")
        self.swap_allreduce("v_add_f32", [31], [26], 16)
        a("v_rcp_f32 v30, v31")
        a("s_waitcnt lgkmcnt(0)")
        a("s_barrier")
        a("s_cmp_eq_u32 s3, 7"); a("s_cbranch_scc1 L_exit")
        for w in range(8):
            a(f"ds_read_b64 v[{32+2*w}:{32+2*w+1}], v53 offset:{w*512}")
        a("v_fma_f32 v26, -v31, v30, 1.0"); a("v_fma_f32 v30, v26, v30, v30")
        for w in range(1, 8):
            a(f"s_waitcnt lgkmcnt({7-w})")
            a(f"v_add_f32 v32, v32, v{32+2*w}"); a(f"v_add_f32 v33, v33, v{33+2*w}")
        a("v_mul_f32 v32, v30, v32"); a("v_mul_f32 v33, v30, v33")
        a("v_cvt_pk_bf16_f32 v34, v32, v33")
        a("ds_write_b32 v54, v34")
        a("s_waitcnt lgkmcnt(0)")
        for ks in range(4):
            a(f"ds_read_b128 v[{36+4*ks}:{36+4*ks+3}], v55 offset:{ks*64}")
        DD = 128
        for ks in range(4):
            a(f"s_waitcnt lgkmcnt({3-ks})")
            for tt in range(4):
                r = BF + (ks * 4 + tt) * 4
                cc = "0" if ks == 0 else f"v[{DD+4*tt}:{DD+4*tt+3}]"
                a(f"v_mfma_f32_16x16x32_bf16 v[{DD+4*tt}:{DD+4*tt+3}], v[{36+4*ks}:{36+4*ks+3}], v[{r}:{r+3}], {cc}")
        self.nop(8)
        self.select4(21, DD, DD+4, DD+8, DD+12)
        self.store_wide(21, 24, 56)
        self.stamp(6)
        a("s_branch L_exit")

    def gen_ffn(self):
        a, L, c = self.a, self.L, self.c
        c("================ FFN slice ================")
        L("L_ffn")
        a("s_sub_u32 s24, s23, 8"); a("s_lshr_b32 s24, s24, 1"); a("s_lshl_b32 s24, s24, 3"); a("s_add_u32 s24, s24, s22")
        a("v_lshrrev_b32 v2, 2, v1")
        a("v_and_b32 v3, 3, v1")
        a("v_bfe_u32 v4, v1, 4, 1")
        a("v_lshlrev_b32 v5, 6, v2"); a("v_lshl_add_u32 v5, v3, 3, v5")
        a("s_lshl_b32 s25, s3, 12"); a("v_add_u32 v5, s25, v5")
        a("v_lshl_add_u32 v6, v4, 5, v5")
        a("v_xor_b32 v4, 1, v4"); a("v_lshl_add_u32 v7, v4, 5, v5")
        a(f"v_mul_u32_u24 v8, {WPITCH}, v2"); a("v_lshl_add_u32 v8, v3, 3, v8")
        a("s_lshl_b32 s25, s3, 7"); a(f"s_add_u32 s25, s25, {L_DOWN}"); a("v_add_u32 v8, s25, v8")
        BG = 64
        BD = 96
        HN = L_PRIV + 7 * 1024
        a("s_lshl_b32 s27, s3, 10"); a(f"s_add_u32 s27, s27, {L_PRIV}")
        a("s_cmp_eq_u32 s3, 7"); a("s_cbranch_scc1 L_ffn_ln")
        for ksl in range(2):
            for m in range(2):
                for ct in range(2):
                    for h in range(2):
                        r = BG + ((ksl * 2 + m) * 2 + ct) * 4 + 2 * h
                        a(f"ds_read_b64_tr_b16 v[{r}:{r+1}], v{6+ct} offset:{m*L_UP + ksl*2048 + h*1024}")
            a("s_waitcnt lgkmcnt(0)")
        for tt in range(4):
            for h in range(2):
                r = BD + tt * 4 + 2 * h
                a(f"ds_read_b64_tr_b16 v[{r}:{r+1}], v8 offset:{16*h*WPITCH + tt*32}")
        a("v_lshrrev_b32 v37, 4, v1"); a("v_lshlrev_b32 v37, 4, v37")
        a("s_lshl_b32 s28, s3, 7"); a(f"s_add_u32 s28, s28, {HN}"); a("v_add_u32 v37, s28, v37")
        GU = L_ACC + 8192
        a("v_lshlrev_b32 v38, 2, v1")
        a("s_lshl_b32 s28, s3, 8"); a(f"s_add_u32 s28, s28, {GU}"); a("v_add_u32 v116, s28, v38")
        a(f"v_add_u32 v117, {GU}, v38")
        a("v_bfe_u32 v118, v1, 2, 2"); a("v_lshlrev_b32 v118, 4, v118")
        a("v_bfe_u32 v119, v1, 4, 1"); a("v_lshl_add_u32 v118, v119, 3, v118")
        a("v_and_b32 v119, 3, v1"); a("v_lshl_add_u32 v118, v119, 1, v118"); a("v_add_u32 v118, s27, v118")
        a("v_lshrrev_b32 v119, 4, v1"); a("v_lshlrev_b32 v119, 4, v119"); a("v_add_u32 v119, s27, v119")
        a("s_lshl_b32 s28, s24, 11"); a(f"s_add_u32 s28, s28, {WS_FFO}"); a("s_lshl_b32 s29, s3, 8"); a("s_add_u32 s28, s28, s29")
        a("v_add_u32 v120, s28, v38")
        a(f"s_mov_b32 s28, {hexf(0.044715)}"); a(f"s_mov_b32 s29, {hexf(-2.0 * LOG2E * 0.7978845608028654)}")
        a("s_branch L_ffn_bc")
        L("L_ffn_ln")
        a("v_lshlrev_b32 v12, 5, v1"); a(f"v_add_u32 v12, {WS_HO}, v12")
        a("v_lshrrev_b32 v36, 2, v1"); a("v_lshlrev_b32 v44, 6, v36")
        a("v_and_b32 v37, 1, v1"); a("v_lshl_add_u32 v44, v37, 5, v44")
        a("v_bfe_u32 v37, v1, 1, 1"); a("v_lshl_add_u32 v44, v37, 3, v44")
        a(f"v_add_u32 v44, {HN}, v44")
        a("s_mov_b32 exec_hi, 0x00ffffff")
        def loads():
            a("global_load_dwordx4 v[16:19], v12, s[20:21] sc1")
            a("global_load_dwordx4 v[20:23], v12, s[20:21] offset:16 sc1")
        if self.stag:
            def ld2(b):
                a(f"global_load_dwordx4 v[{b}:{b+3}], v12, s[20:21] sc1")
                a(f"global_load_dwordx4 v[{b+4}:{b+7}], v12, s[20:21] offset:16 sc1")
            self.poll_stag("ffn", ld2, 2, 8, 48, 56, 16, 14, sleep=self.stag)
        else:
            self.poll_sentinel("ffn", loads, list(range(16, 24)), 14)
        a("s_mov_b64 exec, -1")
        self.stamp(5)
        self.layernorm(16, 28, 36, 24)
        a("s_mov_b32 exec_hi, 0x00ffffff")
        a("ds_write_b64 v44, v[24:25]"); a("ds_write_b64 v44, v[26:27] offset:16")
        a("s_mov_b64 exec, -1")
        L("L_ffn_bc")
        a("s_waitcnt lgkmcnt(0)")
        a("s_barrier")
        a("s_cmp_eq_u32 s3, 7"); a("s_cbranch_scc1 L_ffn_w7")
        a("ds_read_b128 v[40:43], v37"); a("ds_read_b128 v[44:47], v37 offset:64")
        a("s_waitcnt lgkmcnt(0)")
        DD = 48
        for ksl in range(2):
            for m in range(2):
                for ct in range(2):
                    r = BG + ((ksl * 2 + m) * 2 + ct) * 4
                    d = DD + (m * 2 + ct) * 4
                    cc = "0" if ksl == 0 else f"v[{d}:{d+3}]"
                    a(f"v_mfma_f32_16x16x32_bf16 v[{d}:{d+3}], v[{40+4*ksl}:{40+4*ksl+3}], v[{r}:{r+3}], {cc}")
        self.nop(8)
        self.select4(16, DD, DD+4, DD+8, DD+12)
        a("ds_write_b32 v116, v16")
        L("L_ffn_w7")
        a("s_waitcnt lgkmcnt(0)")
        a("s_barrier")
        a("s_cmp_eq_u32 s3, 7"); a("s_cbranch_scc1 L_exit")
        for w in range(7): a(f"ds_read_b32 v{16+w}, v117 offset:{w*256}")
        for w in range(1, 7):
            a(f"s_waitcnt lgkmcnt({6-w})")
            a(f"v_add_f32 v16, v16, v{16+w}")
        a("v_cvt_pk_bf16_f32 v17, v16, v16")
        a("v_and_b32 v16, 0xffff0000, v17")
        a("v_mov_b32 v17, v16")
        self.nop(2)
        a("v_permlane32_swap_b32 v16, v17")
        self.nop(1)
        k1 = -2.0 * LOG2E * 0.7978845608028654
        a("v_mul_f32 v18, v16, v16")
        a("v_fma_f32 v18, v18, s28, 1.0")
        a("v_mul_f32 v18, v18, v16")
        a("v_mul_f32 v18, s29, v18")
        a("v_exp_f32 v18, v18")
        self.nop(1)
        a("v_add_f32 v18, 1.0, v18")
        a("v_rcp_f32 v18, v18")
        self.nop(1)
        a("v_mul_f32 v18, v16, v18")
        a("v_cvt_pk_bf16_f32 v18, v18, v18"); a("v_and_b32 v18, 0xffff0000, v18")
        a("v_mul_f32 v18, v18, v17")
        a("v_cvt_pk_bf16_f32 v18, v18, v18")
        a("s_mov_b32 exec_hi, 0")
        a("ds_write_b16 v118, v18")
        a("s_mov_b32 exec_hi, -1")
        a("ds_read_b128 v[20:23], v119")
        a("s_waitcnt lgkmcnt(0)")
        for tt in range(4):
            a(f"v_mfma_f32_16x16x32_bf16 v[{DD+4*tt}:{DD+4*tt+3}], v[20:23], v[{BD+4*tt}:{BD+4*tt+3}], 0")
        self.nop(8)
        self.select4(16, DD, DD+4, DD+8, DD+12)
        self.store_wide(16, 20, 120)
        self.stamp(6)
        a("s_branch L_exit")

    def layernorm(self, X, T, U, OUT):
        a = self.a
        a(f"v_readfirstlane_b32 s34, v{X}")
        a(f"v_mov_b32 v{U}, 0"); a(f"v_mov_b32 v{U+1}, 0")
        a("s_mov_b32 exec_hi, 0x00ffffff")
        a("s_mov_b32 s35, s34")
        for e in range(0, 8, 2): a(f"v_pk_add_f32 v[{T+e}:{T+e+1}], v[{X+e}:{X+e+1}], s[34:35] neg_lo:[0,1] neg_hi:[0,1]")
        a(f"v_pk_add_f32 v[{U+4}:{U+5}], v[{T}:{T+1}], v[{T+2}:{T+3}]"); a(f"v_pk_mul_f32 v[{U+6}:{U+7}], v[{T}:{T+1}], v[{T}:{T+1}]")
        a(f"v_pk_add_f32 v[{U+2}:{U+3}], v[{T+4}:{T+5}], v[{T+6}:{T+7}]"); a(f"v_pk_fma_f32 v[{U+6}:{U+7}], v[{T+2}:{T+3}], v[{T+2}:{T+3}], v[{U+6}:{U+7}]")
        a(f"v_pk_add_f32 v[{U+4}:{U+5}], v[{U+4}:{U+5}], v[{U+2}:{U+3}]"); a(f"v_pk_fma_f32 v[{U+6}:{U+7}], v[{T+4}:{T+5}], v[{T+4}:{T+5}], v[{U+6}:{U+7}]")
        a(f"v_pk_fma_f32 v[{U+6}:{U+7}], v[{T+6}:{T+7}], v[{T+6}:{T+7}], v[{U+6}:{U+7}]")
        a(f"v_add_f32 v{U}, v{U+4}, v{U+5}"); a(f"v_add_f32 v{U+1}, v{U+6}, v{U+7}")
        a("s_mov_b64 exec, -1")
        self.wave_allreduce("v_add_f32", [U, U+1], [U+2, U+3])
        a(f"s_mov_b32 s35, {hexf(1.0/448)}")
        a(f"v_mul_f32 v{U}, s35, v{U}"); a(f"v_mul_f32 v{U+1}, s35, v{U+1}")
        a(f"v_fma_f32 v{U+1}, -v{U}, v{U}, v{U+1}")
        a(f"v_add_f32 v{U}, s34, v{U}")
        a(f"v_max_f32 v{U+1}, 0, v{U+1}")
        self.round_bf16_pair(U+2, U, U+1, U, U+1)
        a(f"v_add_f32 v{U+1}, {hexf(1e-5)}, v{U+1}")
        a(f"v_cvt_pk_bf16_f32 v{U+1}, v{U+1}, v{U+1}"); a(f"v_and_b32 v{U+1}, 0xffff0000, v{U+1}")
        a(f"v_sqrt_f32 v{U+2}, v{U+1}")
        a(f"v_mov_b32 v{U+1}, v{U}")
        for e in range(0, 8, 2): a(f"v_pk_add_f32 v[{T+e}:{T+e+1}], v[{X+e}:{X+e+1}], v[{U}:{U+1}] neg_lo:[0,1] neg_hi:[0,1]")
        a(f"v_cvt_pk_bf16_f32 v{U+2}, v{U+2}, v{U+2}"); a(f"v_and_b32 v{U+2}, 0xffff0000, v{U+2}")
        a(f"v_rcp_f32 v{U+4}, v{U+2}")
        for e in range(4): self.round_bf16_pair(U+3, T+2*e, T+2*e+1, T+2*e, T+2*e+1)
        a(f"v_fma_f32 v{U+5}, -v{U+2}, v{U+4}, 1.0"); a(f"v_fma_f32 v{U+4}, v{U+5}, v{U+4}, v{U+4}"); a(f"v_mov_b32 v{U+5}, v{U+4}")
        for e in range(0, 8, 2): a(f"v_pk_mul_f32 v[{T+e}:{T+e+1}], v[{T+e}:{T+e+1}], v[{U+4}:{U+5}]")
        for e in range(4): a(f"v_cvt_pk_bf16_f32 v{OUT+e}, v{T+2*e}, v{T+2*e+1}")

    def gen_fin(self):
        a, L, c = self.a, self.L, self.c
        c("================ final reduce ================")
        L("L_fin")
        a("s_load_dwordx2 s[36:37], s[0:1], 72")
        a("v_lshrrev_b32 v2, 4, v1")
        a("v_and_b32 v3, 15, v1")
        a("s_lshl_b32 s24, s3, 2"); a("v_add_u32 v4, s24, v2")
        a("v_lshlrev_b32 v4, 11, v4"); a("v_lshl_add_u32 v4, v3, 4, v4")
        a("s_lshl_b32 s25, s22, 8"); a("v_add_u32 v4, s25, v4")
        a(f"v_add_u32 v5, {WS_T1O}, v4"); a(f"v_add_u32 v6, {WS_FFO}, v4"); a(f"v_add_u32 v7, {32*2048}, v6")
        a("v_bfrev_b32 v8, v2"); a("v_lshrrev_b32 v8, 30, v8")
        a("v_lshl_add_u32 v8, v3, 2, v8"); a("v_lshlrev_b32 v8, 2, v8")
        a("s_lshl_b32 s26, s3, 8"); a(f"s_add_u32 s26, s26, {L_ACC}"); a("v_add_u32 v8, s26, v8")
        def red(r):
            self.nop(2)
            a(f"v_permlane32_swap_b32 v{r}, v{r+1}"); a(f"v_permlane32_swap_b32 v{r+2}, v{r+3}")
            self.nop(1)
            a(f"v_add_f32 v{r}, v{r}, v{r+1}"); a(f"v_add_f32 v{r+2}, v{r+2}, v{r+3}")
            self.nop(2)
            a(f"v_permlane16_swap_b32 v{r}, v{r+2}")
            self.nop(1)
            a(f"v_add_f32 v{r}, v{r}, v{r+2}")
        if self.stag:
            self.poll_stag("fin1", lambda b: a(f"global_load_dwordx4 v[{b}:{b+3}], v5, s[20:21] sc1"), 1, 4, 44, 48, 12, 10, sleep=self.stag)
        else:
            def loads1(): a("global_load_dwordx4 v[12:15], v5, s[20:21] sc1")
            self.poll_sentinel("fin1", loads1, [12, 13, 14, 15], 10)
        red(12)
        a("ds_write_b32 v8, v12")
        a("v_lshlrev_b32 v9, 2, v1"); a(f"v_add_u32 v9, {L_ACC}, v9")
        a("s_lshl_b32 s25, s22, 7"); a(f"s_add_u32 s25, s25, {L_XR}")
        a("v_lshlrev_b32 v10, 1, v1"); a("v_add_u32 v11, s25, v10")
        a("ds_read_u16 v32, v11")
        a("s_lshl_b32 s27, s22, 8"); a(f"s_add_u32 s27, s27, {WS_HO}")
        a("v_lshlrev_b32 v34, 2, v1"); a("v_add_u32 v34, s27, v34")
        a("s_waitcnt lgkmcnt(0)")
        a("s_barrier")
        a("s_cmp_lg_u32 s3, 0"); a("s_cbranch_scc1 L_fin_fb")
        for w in range(8): a(f"ds_read_b32 v{16+w}, v9 offset:{w*256}")
        a("v_lshlrev_b32 v32, 16, v32")
        for w in range(1, 8):
            a(f"s_waitcnt lgkmcnt({7-w})")
            a(f"v_add_f32 v16, v16, v{16+w}")
        a("v_cvt_pk_bf16_f32 v33, v16, v16"); a("v_and_b32 v16, 0xffff0000, v33")
        a("v_add_f32 v16, v16, v32")
        a("v_cvt_pk_bf16_f32 v33, v16, v16"); a("v_and_b32 v40, 0xffff0000, v33")
        self.store_wide(40, 36, 34)
        L("L_fin_fb")
        a("s_cmp_lt_u32 s3, 6"); a("s_cbranch_scc1 L_fin_two")
        if self.stag:
            self.poll_stag("fin2a", lambda b: a(f"global_load_dwordx4 v[{b}:{b+3}], v6, s[20:21] sc1"), 1, 4, 52, 56, 12, 10, sleep=self.stag)
        else:
            def loads2a(): a("global_load_dwordx4 v[12:15], v6, s[20:21] sc1")
            self.poll_sentinel("fin2a", loads2a, [12, 13, 14, 15], 10)
        a("s_branch L_fin_red")
        L("L_fin_two")
        if self.stag:
            def ld3(b):
                a(f"global_load_dwordx4 v[{b}:{b+3}], v6, s[20:21] sc1")
                a(f"global_load_dwordx4 v[{b+4}:{b+7}], v7, s[20:21] sc1")
            self.poll_stag("fin2b", ld3, 2, 8, 52, 60, 12, 10, sleep=self.stag)
        else:
            self.poll_incr("fin2b", [("global_load_dwordx4 v[12:15], v6, s[20:21] sc1", [12, 13, 14, 15]),
                                     ("global_load_dwordx4 v[16:19], v7, s[20:21] sc1", [16, 17, 18, 19])], 10)
        for e in range(4): a(f"v_add_f32 v{12+e}, v{12+e}, v{16+e}")
        L("L_fin_red")
        self.stamp(5)
        red(12)
        a("ds_write_b32 v8, v12 offset:2048")
        a("s_waitcnt lgkmcnt(0)")
        a("s_barrier")
        a("s_cmp_lg_u32 s3, 0"); a("s_cbranch_scc1 L_exit")
        for w in range(8): a(f"ds_read_b32 v{24+w}, v9 offset:{2048+w*256}")
        for w in range(1, 8):
            a(f"s_waitcnt lgkmcnt({7-w})")
            a(f"v_add_f32 v24, v24, v{24+w}")
        a("v_cvt_pk_bf16_f32 v33, v24, v24"); a("v_and_b32 v24, 0xffff0000, v33")
        a("v_add_f32 v16, v40, v24")
        a("v_cvt_pk_bf16_f32 v33, v16, v16")
        a("s_lshl_b32 s25, s22, 7"); a("v_lshlrev_b32 v10, 1, v1"); a("v_add_u32 v10, s25, v10")
        a("global_store_short v10, v33, s[36:37]")
        a("s_cmp_lg_u32 s22, 0"); a("s_cbranch_scc1 L_fin_end")
        a(f"v_mov_b32 v34, {L_XN + 1020}")
        a("ds_read_b32 v35, v34")
        a("s_waitcnt lgkmcnt(0)")
        a("v_mov_b32 v34, 0")
        a("s_mov_b64 exec, 1")
        a("global_store_dword v34, v35, s[20:21] sc1")
        a("s_mov_b64 exec, -1")
        L("L_fin_end")
        self.stamp(6)
        a("s_branch L_exit")

    def gen_helper(self):
        a, L, c = self.a, self.L, self.c
        c("================ helper wave ================")
        L("L_helper")
        if "nosup" in self.exp: a("s_barrier"); a("s_branch L_exit")
        a("s_setprio 3")
        a("s_load_dwordx2 s[56:57], s[0:1], 0")
        a("s_load_dwordx2 s[8:9], s[0:1], 24")
        if self.b0early:
            a(f"v_mov_b32 v18, {L_QF}"); a("v_mov_b32 v6, 0"); a("ds_write_b32 v18, v6"); a("ds_write_b32 v18, v6 offset:4")
            a("s_waitcnt lgkmcnt(0)")
            a("s_barrier")
        a("s_and_b32 s24, s23, 7"); a("s_lshr_b32 s25, s23, 3")
        a("s_mul_i32 s26, s25, 112")
        a("s_lshl_b32 s27, s22, 3"); a("s_add_u32 s27, s27, s24"); a("s_lshl_b32 s27, s27, 7")
        a("v_lshrrev_b32 v2, 3, v1"); a("v_add_u32 v3, s26, v2"); a("v_lshlrev_b32 v3, 13, v3")
        a("v_and_b32 v4, 7, v1"); a("v_lshl_add_u32 v3, v4, 4, v3"); a("v_add_u32 v3, s27, v3")
        a("v_lshlrev_b32 v5, 4, v1")
        a("v_mov_b32 v6, 0")
        a("s_waitcnt lgkmcnt(0)")
        a("s_mov_b32 s40, s56"); a("s_mov_b32 s41, s57"); a("s_mov_b32 s42, 896"); a("s_mov_b32 s43, 0x20000")
        a("s_mov_b32 s44, s8"); a("s_mov_b32 s45, s9"); a(f"s_mov_b32 s46, {448*4096*2}"); a("s_mov_b32 s47, 0x20000")
        a("s_load_dword s36, s[20:21], 0x0")
        a("buffer_load_dwordx4 v[8:11], v5, s[40:43], 0 offen")
        WQ = 64
        for i in range(14):
            a(f"s_mov_b32 s28, {i*8*8192}")
            if "nowq" not in self.exp: a(f"buffer_load_dwordx4 v[{WQ+4*i}:{WQ+4*i+3}], v3, s[44:47], s28 offen{self.ntw}")
        a("s_cmp_lg_u32 s23, 0"); a("s_cbranch_scc1 L_h_nocnt")
        a("s_lshl_b32 s28, s22, 8"); a(f"s_add_u32 s28, s28, {WS_CNT}"); a("v_mov_b32 v17, s28")
        a("s_mov_b64 exec, 1")
        a("global_store_dword v17, v6, s[20:21] sc1")
        a("s_mov_b64 exec, -1")
        L("L_h_nocnt")
        if not self.b0early:
            a(f"v_mov_b32 v18, {L_QF}"); a("ds_write_b32 v18, v6"); a("ds_write_b32 v18, v6 offset:4")
            a("s_waitcnt lgkmcnt(0)")
            a("s_barrier")
        else:
            a("s_waitcnt lgkmcnt(0)")
        a("s_waitcnt vmcnt(14)" )
        self.stamp(0)
        a(f"v_add_u32 v18, {L_XR}, v5")
        a("v_cmp_gt_u32 vcc, 56, v1")
        a("s_and_saveexec_b64 s[32:33], vcc")
        a("ds_write_b128 v18, v[8:11]")
        a("s_mov_b64 exec, s[32:33]")
        for e in range(4):
            a(f"v_lshlrev_b32 v{20+2*e}, 16, v{8+e}"); a(f"v_and_b32 v{21+2*e}, 0xffff0000, v{8+e}")
        a("s_mul_i32 s36, s36, 0x9E3779B1"); a("s_add_u32 s36, s36, 0x7F4A7C15")
        a("v_mov_b32 v19, s36"); a(f"v_mov_b32 v18, {L_XN+1020}")
        a("ds_write_b32 v18, v19")
        self.layernorm(20, 28, 36, 44)
        a(f"v_add_u32 v18, {L_XN}, v5")
        a("v_cmp_gt_u32 vcc, 56, v1")
        a("s_and_saveexec_b64 s[32:33], vcc")
        a("ds_write_b128 v18, v[44:47]")
        a("s_mov_b64 exec, s[32:33]")
        a("v_add_u32 v18, s26, v2"); a("v_lshlrev_b32 v18, 1, v18"); a(f"v_add_u32 v18, {L_XN}, v18")
        a("s_waitcnt lgkmcnt(0)")
        for i in range(14): a(f"ds_read_u16 v{48+i}, v18 offset:{i*16}")
        for j in range(8): a(f"v_mov_b32 v{28+j}, 0")
        a("s_waitcnt vmcnt(0) lgkmcnt(0)")
        self.stamp(1)
        for i in range(14):
            a(f"v_lshlrev_b32 v62, 16, v{48+i}")
            for w in range(4):
                a(f"v_dot2c_f32_bf16 v{28+2*w}, v{WQ+4*i+w}, v{48+i}")
                a(f"v_dot2c_f32_bf16 v{28+2*w+1}, v{WQ+4*i+w}, v62")
        self.nop(3)
        for j in range(4): a(f"v_permlane32_swap_b32 v{28+j}, v{32+j}")
        self.nop(1)
        for j in range(4): a(f"v_add_f32 v{28+j}, v{28+j}, v{32+j}")
        self.nop(2)
        for j in range(2): a(f"v_permlane16_swap_b32 v{28+j}, v{30+j}")
        self.nop(1)
        for j in range(2): a(f"v_add_f32 v{28+j}, v{28+j}, v{30+j}")
        self.nop(2)
        for j in range(2): a(f"v_add_f32_dpp v{28+j}, v{28+j}, v{28+j} row_ror:8 row_mask:0xf bank_mask:0xf")
        a("v_mov_b32 v30, v29"); a("v_mov_b32 v29, s36"); a("v_mov_b32 v31, s36")
        a("v_lshlrev_b32 v32, 6, v4")
        a("v_bfe_u32 v33, v1, 5, 1"); a("v_lshl_add_u32 v32, v33, 5, v32")
        a("v_bfe_u32 v33, v1, 4, 1"); a("v_lshl_add_u32 v32, v33, 4, v32")
        a("s_lshl_b32 s28, s2, 9"); a(f"s_add_u32 s28, s28, {WS_QG}"); a("v_add_u32 v32, s28, v32")
        a("v_and_b32 v33, 8, v1"); a("v_cmp_eq_u32 vcc, 0, v33")
        a("s_and_saveexec_b64 s[32:33], vcc")
        a("global_store_dwordx4 v32, v[28:31], s[20:21] sc1")
        a("s_mov_b64 exec, s[32:33]")
        self.stamp(2)
        a("s_getpc_b64 s[44:45]")
        L("L_pc")
        a(f"s_sub_u32 s44, s44, L_pc - {KNAME}"); a("s_subb_u32 s45, s45, 0")
        a("v_lshlrev_b32 v60, 7, v1")
        for i in range(0 if "nopf" in self.exp else self.code_kb // 8):
            a(f"v_cmp_gt_u32 vcc, L_end - {KNAME}, v60")
            a("s_and_saveexec_b64 s[46:47], vcc")
            a(f"global_load_dword v{61+i}, v60, s[44:45]")
            a("s_mov_b64 exec, s[46:47]")
            a("v_add_u32 v60, 0x2000, v60")
        a(f"v_mov_b32 v160, {L_QF}"); a("v_mov_b32 v161, 1")
        a("ds_write_b32 v160, v161 offset:4")
        a("v_mov_b32 v153, s36")
        a("s_branch L_sup_gather")
        L("L_h_resets")
        if "nores" in self.exp.split(","): a("s_branch L_exit")
        self.gen_resets("h", self.early_reset == 0)
        a("s_branch L_sup_dma")
        L("L_h_tokens")
        if "notok" in self.exp: a("s_branch L_exit")
        a("s_cmp_eq_u32 s29, 0"); a("s_cbranch_scc1 L_exit")
        a("s_cmp_eq_u32 s29, 1"); a("s_cbranch_scc0 L_h_tok_fin")
        a("v_and_b32 v20, 31, v1"); a("s_lshl_b32 s28, s22, 5"); a("v_add_u32 v20, s28, v20")
        a(f"v_lshlrev_b32 v21, 2, v20"); a(f"v_add_u32 v21, {WS_TOK}, v21")
        self.poll_tag("tok0", 21)
        a("s_branch L_h_end")
        L("L_h_tok_fin")
        a("s_cmp_eq_u32 s29, 3"); a("s_cbranch_scc1 L_h_tok_fin2")
        a("v_min_u32 v20, 6, v1"); a("v_lshlrev_b32 v21, 5, v20"); a("v_add_u32 v21, 22, v21")
        a("v_lshlrev_b32 v21, 2, v21"); a(f"v_add_u32 v21, {WS_TOK}, v21")
        self.poll_tag("tokr", 21)
        a("s_branch L_h_end")
        L("L_h_tok_fin2")
        a("v_and_b32 v20, 31, v1")
        a("v_lshrrev_b32 v21, 2, v20"); a("v_lshlrev_b32 v21, 5, v21"); a("v_and_b32 v22, 3, v20"); a("v_lshl_add_u32 v21, v22, 1, v21")
        a("v_lshlrev_b32 v21, 2, v21"); a(f"v_add_u32 v21, {WS_TOK}, v21")
        self.poll_tag("tok1", 21)
        a("v_min_u32 v20, 55, v1")
        a("v_and_b32 v21, 7, v20"); a("v_lshlrev_b32 v21, 5, v21"); a("v_lshrrev_b32 v22, 3, v20"); a("v_lshl_add_u32 v21, v22, 1, v21")
        a("v_add_u32 v21, 8, v21"); a("v_lshlrev_b32 v21, 2, v21"); a(f"v_add_u32 v21, {WS_TOK}, v21")
        self.poll_tag("tok2", 21)
        L("L_h_end")
        self.stamp(4)
        a("s_branch L_exit")


    def gen_resets(self, p, stores, token=True):
        a, L = self.a, self.L
        st = (lambda ins: self.rs(ins)) if stores else (lambda ins: None)
        a("v_lshlrev_b32 v5, 4, v1")
        a("v_mov_b32 v12, -1"); a("v_mov_b32 v13, -1"); a("v_mov_b32 v14, -1"); a("v_mov_b32 v15, -1")
        a("s_lshl_b32 s28, s2, 11"); a(f"s_add_u32 s28, s28, {WS_H1}"); a("v_add_u32 v16, s28, v5")
        st("global_store_dwordx4 v16, v[12:15], s[20:21] sc1")
        st("global_store_dwordx4 v16, v[12:15], s[20:21] offset:1024 sc1")
        a("s_lshl_b32 s28, s2, 4"); a(f"s_add_u32 s28, s28, {WS_ML}"); a("v_mov_b32 v17, s28")
        a("s_mov_b64 exec, 1")
        st("global_store_dwordx4 v17, v[12:15], s[20:21] sc1")
        a("s_mov_b64 exec, -1")
        a("s_mov_b32 s29, 0")
        a("s_bitcmp1_b32 s23, 0"); a(f"s_cbranch_scc1 L_{p}_role_done")
        a("s_cmp_lt_u32 s23, 8"); a(f"s_cbranch_scc0 L_{p}_not_t1")
        a("s_mov_b32 s29, 1")
        a("s_lshr_b32 s30, s23, 1"); a("s_lshl_b32 s31, s22, 2"); a("s_add_u32 s30, s30, s31")
        a("s_lshl_b32 s31, s30, 11"); a(f"s_add_u32 s31, s31, {WS_T1O}")
        a(f"s_branch L_{p}_reset_role")
        L(f"L_{p}_not_t1")
        a("s_cmp_lt_u32 s23, 22"); a(f"s_cbranch_scc0 L_{p}_not_ffn")
        a("s_mov_b32 s29, 2")
        a("s_sub_u32 s30, s23, 8"); a("s_lshr_b32 s30, s30, 1"); a("s_lshl_b32 s30, s30, 3"); a("s_add_u32 s30, s30, s22")
        a("s_lshl_b32 s31, s30, 11"); a(f"s_add_u32 s31, s31, {WS_FFO}")
        L(f"L_{p}_reset_role")
        a("v_add_u32 v16, s31, v5")
        st("global_store_dwordx4 v16, v[12:15], s[20:21] sc1")
        st("global_store_dwordx4 v16, v[12:15], s[20:21] offset:1024 sc1")
        a(f"s_branch L_{p}_role_done")
        L(f"L_{p}_not_ffn")
        a("s_cmp_eq_u32 s23, 22"); a(f"s_cbranch_scc0 L_{p}_role_done")
        a("s_cmp_lt_u32 s22, 7"); a(f"s_cbranch_scc0 L_{p}_role_done")
        a("s_mov_b32 s29, 3")
        a("s_lshl_b32 s31, s22, 8"); a(f"s_add_u32 s31, s31, {WS_HO}"); a("v_add_u32 v16, s31, v5")
        a("s_mov_b64 exec, 0xffff")
        st("global_store_dwordx4 v16, v[12:15], s[20:21] sc1")
        a("s_mov_b64 exec, -1")
        L(f"L_{p}_role_done")
        if stores and token: self.gen_token()

    def gen_token(self):
        a = self.a
        if True:
            a("s_waitcnt vmcnt(0)")
            a("s_lshl_b32 s28, s2, 2"); a(f"s_add_u32 s28, s28, {WS_TOK}"); a("v_mov_b32 v17, s28"); a("v_mov_b32 v18, s36")
            a("s_mov_b64 exec, 1")
            a("global_store_dword v17, v18, s[20:21] sc1")
            a("s_mov_b64 exec, -1")

    def gen_support(self):
        a, L, c = self.a, self.L, self.c
        c("================ support waves 9..11 (and the helper after its q slice) ================")
        L("L_support")
        if "nosup" in self.exp: a("s_barrier"); a("s_branch L_exit")
        a("s_setprio 3")
        a("s_waitcnt lgkmcnt(0)")
        a("s_load_dword s36, s[20:21], 0x0")
        a("s_barrier")
        if self.early_reset:
            a("s_cmp_eq_u32 s3, 9"); a("s_cbranch_scc0 L_sup_nores")
            self.gen_resets("e", True, token=False)
            L("L_sup_nores")
        a("s_waitcnt lgkmcnt(0)")
        a("s_mul_i32 s36, s36, 0x9E3779B1"); a("s_add_u32 s36, s36, 0x7F4A7C15")
        a("v_mov_b32 v153, s36")
        if self.early_reset:
            a("s_cmp_eq_u32 s3, 9"); a("s_cbranch_scc0 L_sup_notok")
            self.gen_token()
            L("L_sup_notok")
        a(f"v_mov_b32 v160, {L_QF}"); a(f"s_mov_b32 s37, {self.spin_max * 16}")
        L("L_sup_wait")
        a("ds_read_b32 v161, v160 offset:4"); a("s_waitcnt lgkmcnt(0)"); a("v_readfirstlane_b32 s42, v161")
        a("s_cmp_lg_u32 s42, 0"); a("s_cbranch_scc1 L_sup_gather")
        a("s_sleep 2")
        a("s_sub_u32 s37, s37, 1"); a("s_cmp_lg_u32 s37, 0"); a("s_cbranch_scc1 L_sup_wait")
        L("L_sup_gather")
        a("s_load_dwordx2 s[60:61], s[0:1], 32")
        a("s_load_dwordx4 s[64:67], s[0:1], 48")
        a("s_load_dwordx2 s[62:63], s[0:1], 64")
        NSUP = 4
        NCB = 2
        a("s_sub_u32 s28, s3, 8")
        a("s_lshl_b32 s27, s22, 5"); a("s_add_u32 s27, s27, s28"); a("s_lshl_b32 s27, s27, 9"); a(f"s_add_u32 s27, s27, {WS_QG}")
        a("v_lshrrev_b32 v150, 5, v1"); a("v_lshlrev_b32 v150, 12, v150")
        a("v_and_b32 v152, 31, v1"); a("v_lshl_add_u32 v150, v152, 4, v150"); a("v_add_u32 v150, s27, v150")
        a("v_add_u32 v151, 0x2000, v150")
        a("s_lshl_b32 s27, s28, 7"); a(f"s_add_u32 s27, s27, {L_Q}")
        a("v_lshlrev_b32 v152, 2, v152"); a("v_add_u32 v152, s27, v152")
        a(f"s_mov_b32 s37, {self.spin_max}")
        if self.qdelay: a(f"s_sleep {self.qdelay}")
        a("s_mov_b32 s42, 15")
        if "noqp" in self.exp: a("s_branch L_qdone")
        L("L_qpoll")
        for j in range(4):
            k, hf = j >> 1, j & 1
            a(f"s_bitcmp1_b32 s42, {j}"); a(f"s_cbranch_scc0 L_qnl{j}")
            a(f"global_load_dwordx4 v[{40+4*j}:{43+4*j}], {'v150' if hf == 0 else 'v151'}, s[20:21] offset:{k*NSUP*512} sc1")
            L(f"L_qnl{j}")
        a("s_waitcnt vmcnt(0)")
        for j in range(4):
            a(f"v_xor_b32 v154, v{41+4*j}, v153")
            a(f"v_bitop3_b32 v154, v154, v{43+4*j}, v153 bitop3:0xf6")
            a("v_cmp_ne_u32 vcc, 0, v154")
            a(f"s_cbranch_vccnz L_qnc{j}")
            a(f"s_bitset0_b32 s42, {j}")
            L(f"L_qnc{j}")
        a("s_cmp_eq_u32 s42, 0"); a("s_cbranch_scc1 L_qdone")
        a("s_sub_u32 s37, s37, 1"); a("s_cmp_lg_u32 s37, 0"); a("s_cbranch_scc1 L_qpoll")
        L("L_qdone")
        for k in range(NCB):
            b = 40 + 8 * k
            a(f"v_add_f32 v{b}, v{b}, v{b+4}"); a(f"v_add_f32 v{b+2}, v{b+2}, v{b+6}")
            a(f"v_mov_b32 v{b+4}, v{b}"); a(f"v_mov_b32 v{b+6}, v{b+2}")
        self.nop(2)
        for k in range(NCB):
            b = 40 + 8 * k
            a(f"v_permlane32_swap_b32 v{b}, v{b+4}"); a(f"v_permlane32_swap_b32 v{b+2}, v{b+6}")
        self.nop(1)
        for k in range(NCB):
            b = 40 + 8 * k
            a(f"v_add_f32 v{b}, v{b}, v{b+4}"); a(f"v_add_f32 v{b+2}, v{b+2}, v{b+6}")
            a(f"v_cvt_pk_bf16_f32 v{b}, v{b}, v{b+2}")
            a(f"ds_write_b32 v152, v{b} offset:{k*NSUP*128}")
        a("s_waitcnt lgkmcnt(0)")
        self.stamp(5)
        a(f"v_mov_b32 v160, {L_QF}"); a("v_mov_b32 v161, 1")
        a("s_mov_b64 exec, 1")
        a("ds_add_u32 v160, v161")
        a("s_mov_b64 exec, -1")
        if "nob1" not in self.exp: a("s_barrier")
        self.stamp(3)
        a("s_cmp_eq_u32 s3, 8"); a("s_cbranch_scc1 L_h_resets")
        L("L_sup_dma")
        if "nodma" not in self.exp: self.gen_weight_dma()
        a("s_waitcnt vmcnt(0)")
        a("s_cmp_eq_u32 s3, 8"); a("s_cbranch_scc1 L_h_tokens")
        self.stamp(4)
        a("s_branch L_exit")

    def gen_weight_dma(self):
        a, L = self.a, self.L
        NSUP = 4
        a("s_bitcmp1_b32 s23, 0"); a("s_cbranch_scc1 L_wd_done")
        a("s_cmp_lt_u32 s23, 22"); a("s_cbranch_scc0 L_wd_done")
        a("s_sub_u32 s34, s3, 8")
        a("v_lshlrev_b32 v144, 4, v1")
        a("s_cmp_lt_u32 s23, 8"); a("s_cbranch_scc0 L_wd_ffn")
        rows = 128 // NSUP
        a("s_mov_b32 s88, s60"); a("s_mov_b32 s89, s61"); a(f"s_mov_b32 s90, {4096*448*2}"); a("s_mov_b32 s91, 0x20000")
        a("s_lshr_b32 s30, s23, 1"); a("s_lshl_b32 s31, s22, 2"); a("s_add_u32 s30, s30, s31")
        a("s_lshl_b32 s30, s30, 7"); a(f"s_mul_i32 s31, s34, {rows}"); a("s_add_u32 s30, s30, s31")
        a("s_mul_i32 s38, s30, 896")
        a(f"s_mul_i32 s39, s31, {WPITCH}")
        a(f"s_mov_b32 s49, {rows}")
        self.dma_rows("s[88:91]", "v144", "s49")
        a("s_branch L_wd_done")
        L("L_wd_ffn")
        a("s_sub_u32 s30, s23, 8"); a("s_lshr_b32 s30, s30, 1"); a("s_lshl_b32 s30, s30, 3"); a("s_add_u32 s30, s30, s22")
        a("v_lshrrev_b32 v145, 2, v1"); a("v_bfe_u32 v146, v1, 4, 1"); a("v_lshlrev_b32 v146, 1, v146")
        a("v_and_b32 v147, 3, v1"); a("v_xor_b32 v147, v147, v146")
        a("v_mul_u32_u24 v145, 3584, v145"); a("v_lshl_add_u32 v145, v147, 4, v145")
        for m, (plo, base) in enumerate(((64, L_GATE), (66, L_UP))):
            a(f"s_mov_b32 s88, s{plo}"); a(f"s_mov_b32 s89, s{plo+1}"); a(f"s_mov_b32 s90, {448*1792*2}"); a("s_mov_b32 s91, 0x20000")
            a(f"s_mul_i32 s38, s34, {16*3584}"); a("s_lshl_b32 s31, s30, 6"); a("s_add_u32 s38, s38, s31")
            a("s_lshl_b32 s39, s34, 10"); a(f"s_add_u32 s39, s39, {base}")
            a("s_mov_b32 s49, s34")
            lab = self.newlabel("gu")
            L(lab)
            a("s_mov_b32 m0, s39")
            a(f"s_add_u32 s39, s39, {NSUP*1024}")
            a(f"buffer_load_dwordx4 v145, s[88:91], s38 offen{self.ntw if self.ntgu else ''} lds")
            a(f"s_add_u32 s38, s38, {NSUP*16*3584}")
            a(f"s_add_u32 s49, s49, {NSUP}"); a("s_cmp_lt_u32 s49, 28"); a(f"s_cbranch_scc1 {lab}")
        drows = 32 // NSUP
        a("s_mov_b32 s88, s62"); a("s_mov_b32 s89, s63"); a(f"s_mov_b32 s90, {1792*448*2}"); a("s_mov_b32 s91, 0x20000")
        a("s_lshl_b32 s31, s30, 5"); a(f"s_mul_i32 s49, s34, {drows}"); a("s_add_u32 s31, s31, s49")
        a("s_mul_i32 s38, s31, 896")
        a(f"s_mul_i32 s39, s49, {WPITCH}"); a(f"s_add_u32 s39, s39, {L_DOWN}")
        a(f"s_mov_b32 s49, {drows}")
        self.dma_rows("s[88:91]", "v144", "s49")
        L("L_wd_done")

    def dma_rows(self, srd, vaddr, cnt):
        a = self.a
        a("s_mov_b32 exec_hi, 0x00ffffff")
        lab = self.newlabel("rows")
        self.L(lab)
        a("s_mov_b32 m0, s39")
        a(f"s_add_u32 s39, s39, {WPITCH}")
        a(f"buffer_load_dwordx4 {vaddr}, {srd}, s38 offen{self.ntw} lds")
        a("s_add_u32 s38, s38, 896")
        a("s_waitcnt vmcnt(48)")
        a(f"s_sub_u32 {cnt}, {cnt}, 1"); a(f"s_cmp_lg_u32 {cnt}, 0"); a(f"s_cbranch_scc1 {lab}")
        a("s_mov_b64 exec, -1")

    def poll_tag(self, name, addr):
        a = self.a
        lab = self.newlabel(name); done = self.newlabel(name + "d")
        a(f"s_mov_b32 s37, {self.spin_max}")
        self.L(lab)
        a(f"global_load_dword v23, v{addr}, s[20:21] sc1")
        a("s_waitcnt vmcnt(0)")
        a("v_cmp_ne_u32 vcc, s36, v23")
        a(f"s_cbranch_vccz {done}")
        a("s_sleep 8")
        a("s_sub_u32 s37, s37, 1"); a("s_cmp_lg_u32 s37, 0"); a(f"s_cbranch_scc1 {lab}")
        self.L(done)

def emit(path, stf="sc1", ldf="sc1", **kw):
    g = Gen(**kw)
    body = g.build()
    def fix(l):
        if l.rstrip().endswith(" sc1"):
            if "_store_" in l: return l.rstrip()[:-3] + stf
            if "_load_" in l: return l.rstrip()[:-3] + ldf
        return l
    body = [fix(l) for l in body]
    hdr = open("cdna_kernels/" + KNAME[:-7] + ".s.ref").read().split("\n")
    top = [l for l in hdr if l.startswith(";") and "@launch" not in l and "Override launch" not in l and "grid=ceil" not in l]
    top = top[:15]
    out = top + [f"; @launch grid=(256,1,1) block=(768,1,1) lds={LDS_TOTAL}",
                 '.amdgcn_target "amdgcn-amd-amdhsa--gfx950"', ".text", f".globl {KNAME}", ".p2align 8",
                 f".type {KNAME},@function", f"{KNAME}:"]
    out += body
    out += ['.section .rodata,"a"', ".p2align 6", f".amdhsa_kernel {KNAME}",
            "  .amdhsa_next_free_vgpr 168", "  .amdhsa_next_free_sgpr 102", "  .amdhsa_accum_offset 168",
            "  .amdhsa_group_segment_fixed_size 0", "  .amdhsa_kernarg_size 96", "  .amdhsa_user_sgpr_count 2",
            "  .amdhsa_user_sgpr_kernarg_segment_ptr 1", "  .amdhsa_system_sgpr_workgroup_id_x 1",
            "  .amdhsa_float_denorm_mode_32 3", "  .amdhsa_float_denorm_mode_16_64 3",
            ".end_amdhsa_kernel", ""]
    open(path, "w").write("\n".join(out))

if __name__ == "__main__":
    import argparse
    ap = argparse.ArgumentParser()
    ap.add_argument("-o", default="main.s")
    ap.add_argument("--stamps", type=int, default=0)
    ap.add_argument("-S", type=int, default=5)
    ap.add_argument("--exp", default="")
    ap.add_argument("--NS", type=int, default=4)
    ap.add_argument("--TH", type=int, default=4)
    ap.add_argument("--taper", type=int, default=0)
    ap.add_argument("--pipe", type=int, default=1)
    ap.add_argument("--rot", type=int, default=11)
    ap.add_argument("--er", type=int, default=1)
    ap.add_argument("--b0", type=int, default=0)
    ap.add_argument("--ntgu", type=int, default=1)
    ap.add_argument("--stag", type=int, default=0)
    ap.add_argument("--SO", type=int, default=0)
    ap.add_argument("--qd", type=int, default=0)
    ap.add_argument("--stf", default="sc1")
    ap.add_argument("--ldf", default="sc1")
    args = ap.parse_args()
    emit(args.o, stf=args.stf, ldf=args.ldf, S=args.S, NS=args.NS, TH=args.TH, taper=args.taper, pipe=args.pipe, rot=args.rot, early_reset=args.er, b0early=args.b0, ntgu=args.ntgu, stag=args.stag, SO=args.SO, qdelay=args.qd, dbg_stamps=args.stamps, exp=args.exp)
    print("LDS", LDS_TOTAL)
```

```python
import sys

KNAME = "sequential_preLN__gqa_block_cached__geglu_ffn__decode_kernel"

WS_G   = 0x0
WS_QG  = 0x1000
WS_TOK = 0x30000
WS_CNT = 0x38000
WS_H1  = 0x40000
WS_ML  = 0xC0000
WS_T1O = 0xC4000
WS_HO  = 0xD4000
WS_FFO = 0xD8000
WS_DBG = 0x100000
WS_SIZE_USED = 0x200000

WPITCH = 928
L_W    = 0
L_GATE = 0
L_UP   = 28672
L_DOWN = 57344
L_Q    = 118784
L_XR   = L_Q + 1024
L_XN   = L_XR + 1024
L_M    = L_XN + 1024
L_L    = L_M + 64
L_QF   = L_M + 192
L_SCR  = L_M + 256
L_ACC  = L_SCR
L_PRIV = L_SCR + 16384
LDS_TOTAL = L_SCR + 32768

BLOCK = 768
SENT = 0xFFFFFFFF
LOG2E = 1.4426950408889634
import struct
def f2u(x): return struct.unpack("<I", struct.pack("<f", x))[0]
def hexf(x): return "0x%08x" % f2u(x)

class Gen:
    def __init__(self, S=5, NS=4, TH=3, taper=0, tailpf=1, pipe=1, rot=11, early_reset=1, b0early=0, ntgu=1, stag=0, SO=0, qdelay=0, tlbpf=0, code_kb=16, exp="", dbg_stamps=False, nt_stream=True, nt_w=True, spin_max=20000):
        self.o = []
        self.S = S
        self.NS = NS
        self.tlbpf = tlbpf
        self.qdelay = qdelay
        self.SO = SO
        self.stag = stag
        self.b0early = b0early
        self.ntgu = ntgu
        self.early_reset = early_reset
        self.rot = rot
        self.pipe = pipe
        self.tailpf = tailpf
        self.taper = taper
        self.TH = TH
        self.exp = exp
        self.code_kb = code_kb
        self.stamps = dbg_stamps
        self.nt = " nt" if nt_stream else ""
        self.ntw = " nt" if nt_w else ""
        self.spin_max = spin_max
        self.lab = 0
    def a(self, s): self.o.append("  " + s)
    def L(self, s): self.o.append(s + ":")
    def c(self, s): self.o.append("  ; " + s)
    def newlabel(self, base):
        self.lab += 1
        return f"L_{base}_{self.lab}"
    def rs(self, ins):
        if "noreset" not in self.exp: self.a(ins)
    def nop(self, n):
        while n > 0:
            k = min(n, 16); self.a(f"s_nop {k-1}"); n -= k

    def row_allreduce(self, op, regs):
        for sh in (8, 4, 2, 1):
            if len(regs) < 3: self.nop(2 - (len(regs) - 1) if len(regs) > 0 else 2)
            for r in regs:
                self.a(f"{op}_dpp v{r}, v{r}, v{r} row_ror:{sh} row_mask:0xf bank_mask:0xf")
    def swap_allreduce(self, op, regs, tmps, kind):
        self.nop(1)
        for r, t in zip(regs, tmps): self.a(f"v_mov_b32 v{t}, v{r}")
        self.nop(2)
        for r, t in zip(regs, tmps): self.a(f"v_permlane{kind}_swap_b32 v{r}, v{t}")
        self.nop(1)
        for r, t in zip(regs, tmps): self.a(f"{op} v{r}, v{r}, v{t}")
    def wave_allreduce(self, op, regs, tmps, full=True):
        self.nop(2)
        self.row_allreduce(op, regs)
        self.swap_allreduce(op, regs, tmps, 16)
        if full: self.swap_allreduce(op, regs, tmps, 32)

    def stamp(self, idx):
        if not self.stamps: return
        self.a(f"s_memrealtime s[{70+2*idx}:{71+2*idx}]")
    def stamp_init(self):
        if not self.stamps: return
        for i in range(8): self.a(f"s_mov_b32 s{70+2*i}, 0")
    def stamp_flush(self):
        if not self.stamps: return
        a = self.a
        if self.stamps == 2:
            a("s_memrealtime s[92:93]")
            a("s_load_dwordx2 s[94:95], s[0:1], 80")
            a("s_waitcnt lgkmcnt(0)")
            a("s_lshl_b32 s98, s2, 4"); a("s_add_u32 s98, s98, s3")
            a("s_mov_b32 s99, 0")
            a(f"s_cmp_eq_u32 s98, {22*16}"); a("s_cbranch_scc1 L_dbgw")
            a("s_mov_b32 s99, 32")
            a(f"s_cmp_eq_u32 s98, {1*16+7}"); a("s_cbranch_scc0 L_end")
            self.L("L_dbgw")
            for i in range(7):
                a(f"s_sub_u32 s96, s{70+2*i}, s84"); a(f"v_mov_b32 v{8+i}, s96")
            a("s_sub_u32 s96, s92, s84"); a("v_mov_b32 v15, s96")
            a("v_mov_b32 v16, s99")
            a("s_mov_b64 exec, 1")
            a("global_store_dwordx4 v16, v[8:11], s[94:95]")
            a("global_store_dwordx4 v16, v[12:15], s[94:95] offset:16")
            return
        a("s_waitcnt lgkmcnt(0)")
        for i in range(8): a(f"v_mov_b32 v{8+i}, s{70+2*i}")
        a("s_lshl_b32 s98, s2, 9"); a("s_lshl_b32 s99, s3, 5"); a("s_add_u32 s98, s98, s99"); a(f"s_add_u32 s98, s98, {WS_DBG}")
        a("v_mov_b32 v16, s98")
        a("s_mov_b64 exec, 1")
        a("global_store_dwordx4 v16, v[8:11], s[20:21]")
        a("global_store_dwordx4 v16, v[12:15], s[20:21] offset:16")

    def build(self):
        a, L, c = self.a, self.L, self.c
        Q, KR, VR, ACC, FR, DD, ST, T = 8, 40, 72, 104, 120, 136, 140, 144
        R0, R1, PW, PR = 156, 157, 158, 159
        PT, PREG = FR, FR + 8
        c("---------------- entry ----------------")
        a("s_cmp_ge_u32 s2, 256")
        a("s_cbranch_scc1 L_end")
        self.stamp_init(); self.stamp(7)
        a("s_load_dwordx4 s[4:7], s[0:1], 8")
        a("s_load_dwordx2 s[20:21], s[0:1], 88")
        a("v_lshrrev_b32 v1, 6, v0")
        a("s_lshr_b32 s22, s2, 5")
        a("v_readfirstlane_b32 s3, v1")
        a("s_and_b32 s23, s2, 31")
        a("v_and_b32 v1, 63, v0")
        a("s_cmp_eq_u32 s3, 8")
        a("s_cbranch_scc1 L_helper")
        a("s_cmp_gt_u32 s3, 8")
        a("s_cbranch_scc1 L_support")
        c("---------------- streamer prologue ----------------")
        a("v_lshrrev_b32 v2, 3, v1")
        a("v_lshlrev_b32 v2, 9, v2")
        a("v_and_b32 v7, 7, v1")
        a("v_lshl_add_u32 v2, v7, 4, v2")
        a("v_add_u32 v5, 0x1000, v2")
        a("v_and_b32 v3, 31, v1")
        a("v_lshlrev_b32 v3, 4, v3")
        a("v_lshrrev_b32 v6, 5, v1")
        a("v_lshl_add_u32 v3, v6, 10, v3")
        if "lin" in self.exp.split(","):
            a("v_lshlrev_b32 v3, 4, v1"); a("v_mov_b32 v2, v3"); a("v_add_u32 v5, 0x1000, v2")
        a("v_add_u32 v4, 0x1000, v3")
        a("s_lshl_b32 s24, s23, 3")
        a("s_add_u32 s24, s24, s3")
        a("s_lshl_b32 s40, s24, 13")
        a("s_lshl_b32 s25, s22, 24")
        a("s_waitcnt lgkmcnt(0)")
        a("s_add_u32 s8, s4, s25"); a("s_addc_u32 s9, s5, 0"); a("s_mov_b32 s10, 0x1000000"); a("s_mov_b32 s11, 0x20000")
        a("s_add_u32 s12, s6, s25"); a("s_addc_u32 s13, s7, 0"); a("s_mov_b32 s14, 0x1000000"); a("s_mov_b32 s15, 0x20000")
        a("s_barrier")
        NS = self.NS
        RND = 256
        def first_load(i):
            if "lin" in self.exp.split(","):
                j = i & 7; reg = KR + 4 * i if i < 8 else VR + 4 * (i - 8)
                a(f"buffer_load_dwordx4 v[{reg}:{reg+3}], {'v3' if j < 4 else 'v4'}, {'s[8:11]' if i < 8 else 's[12:15]'}, s40 offen offset:{(j&3)*1024}{self.nt}")
                return
            if i < 8:
                cb, hf = i >> 1, i & 1
                a(f"buffer_load_dwordx4 v[{KR+4*i}:{KR+4*i+3}], {'v2' if hf == 0 else 'v5'}, s[8:11], s40 offen offset:{cb*128}{self.nt}")
            else:
                j = i - 8; iq, b = j >> 1, j & 1
                a(f"buffer_load_dwordx4 v[{VR+4*j}:{VR+4*j+3}], {'v3' if iq < 2 else 'v4'}, s[12:15], s40 offen offset:{(iq&1)*2048 + b*512}{self.nt}")
        def issue_k():
            for i in range(8): first_load(i)
        def issue_v():
            for i in range(8): first_load(8 + i)
        def k_pair(b):
            first_load(2 * b); first_load(2 * b + 1)
        def v_pair(q):
            first_load(8 + 2 * q); first_load(8 + 2 * q + 1)
        NFIRST = self.TH if self.TH else 16
        for i in range(NFIRST): first_load(i)
        FIRST_TILE = True
        a("s_lshl_b32 s46, s22, 8"); a(f"s_add_u32 s46, s46, {WS_CNT}")
        a("s_add_u32 s46, s20, s46"); a("s_addc_u32 s47, s21, 0")
        a("s_mov_b32 s43, 1")
        a("s_mov_b32 s59, 0")
        a("s_mov_b32 s38, s23"); a("s_mov_b32 s39, 0")
        a("s_mov_b32 s50, 0xffff0000"); a("s_mov_b32 s51, 0")
        a("s_mov_b32 s52, 0"); a("s_mov_b32 s53, 0x0000ffff")
        a("s_mov_b32 s54, 0"); a("s_mov_b32 s55, 0xffff0000")
        a("s_mov_b32 s57, 0x05040100"); a("s_mov_b32 s58, 0x07060302")
        a(f"s_mov_b32 s56, {hexf(LOG2E/16)}")
        a("s_mov_b32 s16, s20"); a("s_mov_b32 s17, s21"); a(f"s_mov_b32 s18, {WS_SIZE_USED}"); a("s_mov_b32 s19, 0x20000")
        a("s_lshl_b32 s26, s3, 12"); a(f"s_add_u32 s26, s26, {L_SCR}")
        a(f"v_bfe_u32 v{PW}, v1, 3, 1"); a(f"v_lshlrev_b32 v{PW}, 5, v{PW}")
        a(f"v_bfe_u32 v{T}, v1, 1, 1"); a(f"v_lshl_add_u32 v{PW}, v{T}, 4, v{PW}")
        a(f"v_bfe_u32 v{T}, v1, 2, 1"); a(f"v_lshl_add_u32 v{PW}, v{T}, 3, v{PW}")
        a(f"v_and_b32 v{T}, 1, v1"); a(f"v_lshl_add_u32 v{PW}, v{T}, 1, v{PW}")
        a(f"v_add_u32 v{PW}, s26, v{PW}")
        a(f"v_lshlrev_b32 v{PR}, 4, v6"); a(f"v_add_u32 v{PR}, s26, v{PR}")
        a(f"v_lshrrev_b32 v{T}, 4, v1"); a("v_and_b32 v6, 7, v1"); a(f"v_xor_b32 v6, v6, v{T}")
        a("v_lshlrev_b32 v6, 4, v6")
        a(f"v_lshrrev_b32 v{T+1}, 3, v1"); a(f"v_lshl_add_u32 v6, v{T+1}, 7, v6"); a("v_add_u32 v6, s26, v6")
        a("v_xor_b32 v7, 64, v6"); a("v_add_u32 v7, 0x400, v7")
        a(f"v_bfe_u32 v{R0}, v1, 1, 3"); a(f"v_xor_b32 v{R0}, v{R0}, v{T}")
        a(f"v_lshlrev_b32 v{R0}, 4, v{R0}")
        a(f"v_and_b32 v{T+1}, 15, v1"); a(f"v_lshl_add_u32 v{R0}, v{T+1}, 7, v{R0}"); a(f"v_add_u32 v{R0}, s26, v{R0}")
        a(f"v_xor_b32 v{R1}, 64, v{R0}")
        a(f"v_and_b32 v{T+1}, 1, v1"); a(f"v_lshlrev_b32 v{T+1}, 9, v{T+1}")
        a(f"v_lshl_add_u32 v{T+1}, v{T}, 4, v{T+1}"); a(f"v_add_u32 v{T+1}, {L_Q}, v{T+1}")
        a(f"v_mov_b32 v{ST}, 0xff800000"); a(f"v_mov_b32 v{ST+1}, 0xff800000"); a(f"v_mov_b32 v{ST+2}, 0"); a(f"v_mov_b32 v{ST+3}, 0")
        for j in range(16): a(f"v_mov_b32 v{ACC+j}, 0")
        a(f"v_mov_b32 v160, {L_QF}"); a("s_mov_b32 s42, 0")
        for i in range(NFIRST, 16):
            if self.TH and i >= self.TH:
                a(f"s_cmp_eq_u32 s42, 4"); a(f"s_cbranch_scc1 L_fl{i}")
                a("ds_read_b32 v161, v160"); a("s_waitcnt lgkmcnt(0)"); a("v_readfirstlane_b32 s42, v161")
                a(f"s_cmp_eq_u32 s42, 4"); a(f"s_cbranch_scc1 L_fl{i}")
                a(f"s_waitcnt vmcnt({self.TH-1})")
                L(f"L_fl{i}")
            first_load(i)
        self.stamp(0)
        a(f"s_mov_b32 s37, {self.spin_max * 16}")
        L("L_qwait")
        if "noq" in self.exp: a("s_branch L_qready")
        a("s_cmp_eq_u32 s42, 4"); a("s_cbranch_scc1 L_qready")
        a("s_sleep 1")
        a("ds_read_b32 v161, v160"); a("s_waitcnt lgkmcnt(0)"); a("v_readfirstlane_b32 s42, v161")
        a("s_sub_u32 s37, s37, 1"); a("s_cmp_lg_u32 s37, 0"); a("s_cbranch_scc1 L_qwait")
        L("L_qready")
        if "nob1" not in self.exp: a("s_barrier")
        self.stamp(1)
        for st in range(8):
            a(f"ds_read_b128 v[{Q+4*st}:{Q+4*st+3}], v{T+1} offset:{st*64}")
        a("s_waitcnt lgkmcnt(0)")
        c("---------------- tile loop ----------------")
        L("L_proc")
        NOLD = 8 - NS
        SO = max(self.SO, self.S)
        POOL = self.S * RND + (SO - self.S) * 32 * NOLD
        def claim():
            a(f"s_cmp_lt_u32 s43, {self.S}"); a("s_cbranch_scc1 L_static")
            a(f"s_cmp_lt_u32 s3, {NOLD}"); a("s_cbranch_scc0 L_doclaim")
            a("s_mov_b32 s41, 0x10000")
            if SO > self.S:
                a(f"s_cmp_lt_u32 s43, {SO}"); a("s_cbranch_scc0 L_claimed")
                a(f"s_add_u32 s38, s38, {self.rot}"); a("s_and_b32 s38, s38, 31")
                a(f"s_sub_u32 s41, s43, {self.S}"); a(f"s_mul_i32 s41, s41, {32 * NOLD}")
                a(f"s_mul_i32 s48, s38, {NOLD}"); a("s_add_u32 s41, s41, s48"); a("s_add_u32 s41, s41, s3")
                a(f"s_sub_u32 s41, s41, {POOL - self.S * RND}")
            a("s_branch L_claimed")
            L("L_doclaim")
            a("s_mov_b32 s41, 1")
            a("s_atomic_add s41, s[46:47], 0x0 glc")
            a("s_branch L_claimed")
            L("L_static")
            a(f"s_add_u32 s39, s39, {RND}")
            a(f"s_add_u32 s38, s38, {self.rot}"); a("s_and_b32 s38, s38, 31")
            a("s_lshl_b32 s48, s38, 3"); a("s_add_u32 s48, s48, s3"); a("s_add_u32 s48, s48, s39")
            a(f"s_sub_u32 s41, s48, {POOL}")
            L("L_claimed")
            a("s_add_u32 s43, s43, 1")
        if self.pipe: claim()
        def kmfma(b):
            for e in range(2):
                st = 2 * b + e
                f = FR + 8 * (b & 1) + 4 * e
                src_c = "0" if st == 0 else f"v[{DD}:{DD+3}]"
                a(f"v_mfma_f32_16x16x32_bf16 v[{DD}:{DD+3}], v[{Q+4*st}:{Q+4*st+3}], v[{f}:{f+3}], {src_c}")
        for b in range(4):
            a(f"s_waitcnt vmcnt({6 if self.pipe == 2 else 14 - 2*b})")
            buf = (b & 1) * 2048
            if "nok" not in self.exp:
                a(f"ds_write_b128 v6, v[{KR+8*b}:{KR+8*b+3}] offset:{buf}")
                a(f"ds_write_b128 v7, v[{KR+8*b+4}:{KR+8*b+7}] offset:{buf}")
                f = FR + 8 * (b & 1)
                a(f"ds_read_b128 v[{f}:{f+3}], v{R0} offset:{buf}")
                a(f"ds_read_b128 v[{f+4}:{f+7}], v{R1} offset:{buf}")
            if self.pipe == 2:
                a("s_cmp_eq_u32 s43, 2"); a(f"s_cbranch_scc1 L_nov{b}")
                v_pair(b)
                L(f"L_nov{b}")
            if b > 0 and "nok" not in self.exp:
                a("s_waitcnt lgkmcnt(4)")
                kmfma(b - 1)
        a("s_waitcnt lgkmcnt(0)")
        kmfma(3)
        def resolve():
            a(f"s_add_u32 s41, s41, {POOL}")
            a("s_cmp_lt_u32 s41, 2048")
            a("s_cselect_b32 s10, 0x1000000, 0"); a("s_cselect_b32 s14, 0x1000000, 0"); a("s_cselect_b32 s40, s41, 0")
            a("s_mov_b32 s59, s41")
            a("s_lshl_b32 s40, s40, 13")
        if self.pipe == 1:
            resolve()
            issue_k()
        elif self.pipe == 2:
            resolve()
            self.nop(2)
        else:
            self.nop(8)
        if "nosm" in self.exp: a("s_branch L_aftersm")
        a(f"v_cvt_pk_bf16_f32 v{T}, v{DD}, v{DD+1}")
        a(f"v_lshlrev_b32 v{T+1}, 16, v{T}"); a(f"v_and_b32 v{T+2}, 0xffff0000, v{T}")
        a(f"v_mov_b32 v{T+3}, v{T+1}"); a(f"v_mov_b32 v{T+4}, v{T+2}")
        self.nop(1)
        self.row_allreduce("v_max_f32", [T+3, T+4])
        a(f"v_max_f32 v{T+3}, v{T+3}, v{ST}"); a(f"v_max_f32 v{T+4}, v{T+4}, v{ST+1}")
        a(f"v_cmp_gt_f32 vcc, v{T+3}, v{ST}")
        a(f"v_cmp_gt_f32 s[44:45], v{T+4}, v{ST+1}")
        a("s_or_b64 vcc, vcc, s[44:45]")
        a("s_cbranch_vccz L_norescale")
        a(f"v_sub_f32 v{T+5}, v{ST}, v{T+3}"); a(f"v_sub_f32 v{T+6}, v{ST+1}, v{T+4}")
        a(f"v_mul_f32 v{T+5}, s56, v{T+5}"); a(f"v_mul_f32 v{T+6}, s56, v{T+6}")
        a(f"v_exp_f32 v{T+5}, v{T+5}"); a(f"v_exp_f32 v{T+6}, v{T+6}")
        a(f"v_mov_b32 v{ST}, v{T+3}"); a(f"v_mov_b32 v{ST+1}, v{T+4}")
        for j in range(8):
            a(f"v_mul_f32 v{ACC+j}, v{T+5}, v{ACC+j}"); a(f"v_mul_f32 v{ACC+8+j}, v{T+6}, v{ACC+8+j}")
        a(f"v_mul_f32 v{ST+2}, v{T+5}, v{ST+2}"); a(f"v_mul_f32 v{ST+3}, v{T+6}, v{ST+3}")
        L("L_norescale")
        a(f"v_mul_f32 v{T+5}, s56, v{ST}"); a(f"v_mul_f32 v{T+6}, s56, v{ST+1}")
        a(f"v_fma_f32 v{T+1}, v{T+1}, s56, -v{T+5}"); a(f"v_fma_f32 v{T+2}, v{T+2}, s56, -v{T+6}")
        a(f"v_exp_f32 v{T+1}, v{T+1}"); a(f"v_exp_f32 v{T+2}, v{T+2}")
        self.nop(1)
        a(f"v_cvt_pk_bf16_f32 v{T}, v{T+1}, v{T+2}")
        a(f"v_add_f32 v{ST+2}, v{ST+2}, v{T+1}"); a(f"v_add_f32 v{ST+3}, v{ST+3}, v{T+2}")
        a("s_mov_b64 exec, 0xffff")
        a(f"ds_write_b16 v{PW}, v{T}"); a(f"ds_write_b16_d16_hi v{PW}, v{T} offset:4")
        a("s_mov_b64 exec, -1")
        a(f"ds_read_b128 v[{PREG}:{PREG+3}], v{PR}"); a(f"ds_read_b128 v[{PREG+4}:{PREG+7}], v{PR} offset:32")
        L("L_aftersm")
        if not self.pipe:
            a("s_waitcnt lgkmcnt(0)")
            claim()
        for iq in range(4):
            la, lb = VR + 8 * iq, VR + 8 * iq + 4
            a(f"s_waitcnt vmcnt({6 if self.pipe == 2 else (14 if self.pipe else 6) - 2*iq})")
            if "nopv" not in self.exp:
                for w in range(4):
                    a(f"v_perm_b32 v{PT+2*w}, v{lb+w}, v{la+w}, s57")
                    a(f"v_perm_b32 v{PT+2*w+1}, v{lb+w}, v{la+w}, s58")
            if self.pipe == 2: k_pair(iq)
            if "nopv" in self.exp: continue
            if self.pipe and iq in (0, 2): a(f"s_waitcnt lgkmcnt({1 if iq == 0 else 0})")
            pr = PREG + 4 * (iq >> 1) + 2 * (iq & 1)
            for h in range(2):
                for j in range(8):
                    a(f"v_dot2c_f32_bf16 v{ACC+8*h+j}, v{PT+j}, v{pr+h}")
        if self.pipe:
            if self.pipe == 1: issue_v()
            a("s_cmp_lg_u32 s10, 0"); a("s_cbranch_scc1 L_proc")
        else:
            a("s_waitcnt lgkmcnt(0)")
            resolve()
            a("s_cmp_eq_u32 s10, 0"); a("s_cbranch_scc1 L_stream_done")
            issue_k(); issue_v()
            a("s_branch L_proc")
        L("L_stream_done")
        a("s_waitcnt vmcnt(0)")
        self.stamp(3)
        if self.tailpf:
            a("s_cmp_lg_u32 s3, 0"); a("s_cbranch_scc1 L_nopf")
            a("s_getpc_b64 s[44:45]")
            L("L_pc2")
            a(f"v_lshlrev_b32 v{T}, 7, v1")
            a(f"v_cmp_gt_u32 vcc, L_helper - L_pc2, v{T}")
            a("s_and_saveexec_b64 s[46:47], vcc")
            a(f"global_load_dword v{T+1}, v{T}, s[44:45]")
            a("s_mov_b64 exec, s[46:47]")
            L("L_nopf")
        self.nop(2)
        self.row_allreduce("v_add_f32", [ST+2, ST+3])
        a("s_lshl_b32 s27, s3, 2"); a(f"s_add_u32 s27, s27, {L_M}")
        a(f"v_mov_b32 v{T}, s27")
        a("s_mov_b64 exec, 1")
        a(f"ds_write2_b32 v{T}, v{ST}, v{ST+1} offset0:0 offset1:8")
        a(f"ds_write2_b32 v{T}, v{ST+2}, v{ST+3} offset0:16 offset1:24")
        a("s_mov_b64 exec, -1")
        if "notail" in self.exp: a("s_branch L_exit")
        c("---------------- merge inside the workgroup ----------------")
        self.nop(3)
        for j in range(8): a(f"v_permlane32_swap_b32 v{ACC+j}, v{ACC+8+j}")
        self.nop(1)
        for j in range(8): a(f"v_add_f32 v{ACC+j}, v{ACC+j}, v{ACC+8+j}")
        a("s_lshl_b32 s27, s3, 12"); a(f"s_add_u32 s27, s27, {L_SCR + 1024}")
        a("v_lshlrev_b32 v24, 5, v1"); a("v_add_u32 v24, s27, v24")
        a(f"ds_write_b128 v24, v[{ACC}:{ACC+3}]")
        a(f"ds_write_b128 v24, v[{ACC+4}:{ACC+7}] offset:16")
        a("s_waitcnt lgkmcnt(0)")
        a("s_barrier")
        a("s_cmp_gt_u32 s3, 1"); a("s_cbranch_scc1 L_roles")
        a("s_lshl_b32 s27, s3, 5"); a(f"s_add_u32 s27, s27, {L_M}")
        a("v_mov_b32 v25, s27")
        a("ds_read_b128 v[8:11], v25"); a("ds_read_b128 v[12:15], v25 offset:16")
        a("ds_read_b128 v[16:19], v25 offset:64"); a("ds_read_b128 v[20:23], v25 offset:80")
        a("v_lshlrev_b32 v24, 4, v0"); a(f"v_add_u32 v25, {L_SCR + 1024}, v24")
        for w in range(8):
            a(f"ds_read_b128 v[{28+4*w}:{28+4*w+3}], v25 offset:{w*4096}")
        a("s_lshl_b32 s27, s2, 11"); a(f"s_add_u32 s27, s27, {WS_H1}")
        a("v_add_u32 v24, s27, v24")
        a("s_waitcnt lgkmcnt(10)")
        a("v_max3_f32 v60, v8, v9, v10"); a("v_max3_f32 v60, v60, v11, v12"); a("v_max3_f32 v60, v60, v13, v14"); a("v_max_f32 v60, v60, v15")
        a("v_mul_f32 v61, s56, v60")
        for w in range(8): a(f"v_fma_f32 v{8+w}, v{8+w}, s56, -v61")
        for w in range(8): a(f"v_exp_f32 v{8+w}, v{8+w}")
        a("s_waitcnt lgkmcnt(7)")
        for e in range(4): a(f"v_mul_f32 v{28+e}, v8, v{28+e}")
        for w in range(1, 8):
            a(f"s_waitcnt lgkmcnt({7-w})")
            for e in range(4):
                a(f"v_fma_f32 v{28+e}, v{8+w}, v{28+4*w+e}, v{28+e}")
        a("global_store_dwordx4 v24, v[28:31], s[20:21] sc1")
        a("v_mul_f32 v61, v8, v16")
        for w in range(1, 8): a(f"v_fma_f32 v61, v{8+w}, v{16+w}, v61")
        a("s_lshl_b32 s27, s2, 4"); a("s_lshl_b32 s28, s3, 3"); a("s_add_u32 s27, s27, s28"); a(f"s_add_u32 s27, s27, {WS_ML}")
        a("v_mov_b32 v24, s27")
        a("s_mov_b64 exec, 1")
        a("global_store_dwordx2 v24, v[60:61], s[20:21] sc1")
        a("s_mov_b64 exec, -1")
        c("---------------- role dispatch ----------------")
        L("L_roles")
        self.stamp(4)
        a("s_bitcmp1_b32 s23, 0"); a("s_cbranch_scc1 L_exit")
        a("s_cmp_lt_u32 s23, 8"); a("s_cbranch_scc1 L_t1")
        a("s_cmp_lt_u32 s23, 22"); a("s_cbranch_scc1 L_ffn")
        a("s_cmp_lg_u32 s23, 22"); a("s_cbranch_scc1 L_exit")
        a("s_cmp_lt_u32 s22, 7"); a("s_cbranch_scc1 L_fin")
        a("s_branch L_exit")
        self.gen_t1(); self.gen_ffn(); self.gen_fin(); self.gen_helper(); self.gen_support()
        L("L_exit")
        self.stamp_flush()
        L("L_end")
        a("s_endpgm")
        return self.o

    def poll_sentinel(self, name, loads, regs, tmp, cnt="s30", mask_exec=None):
        a = self.a
        lab = self.newlabel(name)
        a(f"s_mov_b32 {cnt}, {self.spin_max}")
        self.L(lab)
        loads()
        a("s_waitcnt vmcnt(0)")
        rs = list(regs)
        first = True
        while rs:
            if first:
                if len(rs) >= 3:
                    a(f"v_max3_u32 v{tmp}, v{rs[0]}, v{rs[1]}, v{rs[2]}"); rs = rs[3:]
                elif len(rs) == 2:
                    a(f"v_max_u32 v{tmp}, v{rs[0]}, v{rs[1]}"); rs = []
                else:
                    a(f"v_mov_b32 v{tmp}, v{rs[0]}"); rs = []
                first = False
            elif len(rs) >= 2:
                a(f"v_max3_u32 v{tmp}, v{tmp}, v{rs[0]}, v{rs[1]}"); rs = rs[2:]
            else:
                a(f"v_max_u32 v{tmp}, v{tmp}, v{rs[0]}"); rs = []
        a(f"v_cmp_eq_u32 vcc, -1, v{tmp}")
        done = self.newlabel(name + "_done")
        a(f"s_cbranch_vccz {done}")
        a(f"s_sub_u32 {cnt}, {cnt}, 1")
        a(f"s_cmp_lg_u32 {cnt}, 0")
        a(f"s_cbranch_scc1 {lab}")
        self.L(done)

    def poll_incr(self, name, items, tmp, cnt="s30", msk="s31"):
        a = self.a
        lab = self.newlabel(name); done = self.newlabel(name + "_done")
        n = len(items)
        a(f"s_mov_b32 {msk}, {(1 << n) - 1}"); a(f"s_mov_b32 {cnt}, {self.spin_max}")
        self.L(lab)
        for j, (ins, regs) in enumerate(items):
            a(f"s_bitcmp1_b32 {msk}, {j}"); a(f"s_cbranch_scc0 {lab}_nl{j}")
            a(ins)
            self.L(f"{lab}_nl{j}")
        a("s_waitcnt vmcnt(0)")
        for j, (ins, regs) in enumerate(items):
            rs = list(regs)
            if len(rs) == 4:
                a(f"v_max3_u32 v{tmp}, v{rs[0]}, v{rs[1]}, v{rs[2]}"); a(f"v_max_u32 v{tmp}, v{tmp}, v{rs[3]}")
            elif len(rs) == 2:
                a(f"v_max_u32 v{tmp}, v{rs[0]}, v{rs[1]}")
            a(f"v_cmp_eq_u32 vcc, -1, v{tmp}")
            a(f"s_cbranch_vccnz {lab}_nc{j}")
            a(f"s_bitset0_b32 {msk}, {j}")
            self.L(f"{lab}_nc{j}")
        a(f"s_cmp_eq_u32 {msk}, 0"); a(f"s_cbranch_scc1 {done}")
        a(f"s_sub_u32 {cnt}, {cnt}, 1"); a(f"s_cmp_lg_u32 {cnt}, 0"); a(f"s_cbranch_scc1 {lab}")
        self.L(done)

    def poll_stag(self, name, loads, n_ld, nreg, A, B, C, tmp, cnt="s30", sleep=4):
        a = self.a
        lab = self.newlabel(name); dA = lab + "_a"; dB = lab + "_b"; done = lab + "_done"
        def check(base, target):
            rs = list(range(base, base + nreg))
            a(f"v_max3_u32 v{tmp}, v{rs[0]}, v{rs[1]}, v{rs[2]}"); rs = rs[3:]
            while len(rs) >= 2:
                a(f"v_max3_u32 v{tmp}, v{tmp}, v{rs[0]}, v{rs[1]}"); rs = rs[2:]
            if rs: a(f"v_max_u32 v{tmp}, v{tmp}, v{rs[0]}")
            a(f"v_cmp_eq_u32 vcc, -1, v{tmp}")
            a(f"s_cbranch_vccz {target}")
        a(f"s_mov_b32 {cnt}, {self.spin_max}")
        loads(A)
        a(f"s_sleep {sleep}")
        self.L(lab)
        loads(B)
        a(f"s_waitcnt vmcnt({n_ld})")
        check(A, dA)
        loads(A)
        a(f"s_waitcnt vmcnt({n_ld})")
        check(B, dB)
        a(f"s_sub_u32 {cnt}, {cnt}, 1"); a(f"s_cmp_lg_u32 {cnt}, 0"); a(f"s_cbranch_scc1 {lab}")
        self.L(dB)
        for j in range(nreg): a(f"v_mov_b32 v{C+j}, v{B+j}")
        a(f"s_branch {done}")
        self.L(dA)
        for j in range(nreg): a(f"v_mov_b32 v{C+j}, v{A+j}")
        self.L(done)

    def select4(self, dst, d0, d1, d2, d3):
        a = self.a
        a(f"v_cndmask_b32 v{dst}, v{d0}, v{d1}, s[50:51]")
        a(f"v_cndmask_b32 v{dst}, v{dst}, v{d2}, s[52:53]")
        a(f"v_cndmask_b32 v{dst}, v{dst}, v{d3}, s[54:55]")

    def store_wide(self, src, tmp, addr):
        a = self.a
        self.nop(2)
        for j in range(4): a(f"v_mov_b32_dpp v{tmp+j}, v{src} quad_perm:[{j},{j},{j},{j}] row_mask:0xf bank_mask:0xf")
        a("s_mov_b32 exec_lo, 0x11111111"); a("s_mov_b32 exec_hi, 0x11111111")
        a(f"global_store_dwordx4 v{addr}, v[{tmp}:{tmp+3}], s[20:21] sc1")
        a("s_mov_b64 exec, -1")

    def round_bf16_pair(self, dst_pk, x0, x1, o0=None, o1=None):
        a = self.a
        a(f"v_cvt_pk_bf16_f32 v{dst_pk}, v{x0}, v{x1}")
        if o0 is not None: a(f"v_lshlrev_b32 v{o0}, 16, v{dst_pk}")
        if o1 is not None: a(f"v_and_b32 v{o1}, 0xffff0000, v{dst_pk}")

    def gen_t1(self):
        a, L, c = self.a, self.L, self.c
        c("================ T1: softmax combine + wo slice ================")
        L("L_t1")
        a("s_lshr_b32 s24, s23, 1")
        a("v_lshrrev_b32 v2, 2, v1")
        a(f"v_mul_u32_u24 v2, {WPITCH}, v2")
        a("v_and_b32 v3, 3, v1")
        a("v_lshl_add_u32 v2, v3, 3, v2")
        a("s_lshl_b32 s25, s3, 7")
        a("v_add_u32 v2, s25, v2")
        a(f"v_add_u32 v3, {64*WPITCH}, v2")
        BF = 64
        a("s_cmp_eq_u32 s3, 7"); a("s_cbranch_scc1 L_t1_nob")
        for ks in range(4):
            for tt in range(4):
                for h in range(2):
                    r = BF + ((ks * 4 + tt) * 2 + h) * 2
                    base = "v2" if ks < 2 else "v3"
                    off = (32 * (ks & 1) + 16 * h) * WPITCH + tt * 32
                    a(f"ds_read_b64_tr_b16 v[{r}:{r+1}], {base} offset:{off}")
            a("s_waitcnt lgkmcnt(0)")
        L("L_t1_nob")
        a("s_lshl_b32 s26, s22, 5")
        a("v_lshrrev_b32 v6, 5, v1")
        a("v_and_b32 v7, 31, v1")
        a("s_lshl_b32 s27, s3, 2"); a("s_add_u32 s27, s27, s26")
        a("v_add_u32 v8, s27, v6")
        a("v_lshlrev_b32 v9, 11, v8")
        a("v_lshl_add_u32 v9, v7, 4, v9")
        a("s_lshl_b32 s28, s24, 9"); a(f"s_add_u32 s28, s28, {WS_H1 + 2048}")
        a("v_add_u32 v9, s28, v9")
        a("s_lshr_b32 s29, s24, 1"); a("s_lshl_b32 s29, s29, 3"); a(f"s_add_u32 s29, s29, {WS_ML}")
        a("v_add_u32 v11, s26, v7"); a("v_lshlrev_b32 v11, 4, v11"); a("v_add_u32 v11, s29, v11")
        a("s_lshl_b32 s27, s3, 2"); a("v_add_u32 v10, s27, v6"); a("v_lshlrev_b32 v10, 2, v10"); a("v_add_u32 v22, 8, v10")
        a("v_lshl_add_u32 v52, v7, 2, v6"); a("v_lshlrev_b32 v52, 2, v52")
        a("s_lshl_b32 s27, s3, 9"); a(f"s_add_u32 s27, s27, {L_ACC}"); a("v_add_u32 v52, s27, v52")
        a("v_lshlrev_b32 v53, 3, v1"); a(f"v_add_u32 v53, {L_ACC}, v53")
        a("v_lshrrev_b32 v54, 4, v1"); a("v_lshlrev_b32 v55, 4, v54"); a("v_lshlrev_b32 v54, 6, v54")
        a("v_bfe_u32 v56, v1, 1, 2"); a("v_lshl_add_u32 v54, v56, 4, v54")
        a("v_bfe_u32 v56, v1, 3, 1"); a("v_lshl_add_u32 v54, v56, 3, v54")
        a("v_and_b32 v56, 1, v1"); a("v_lshl_add_u32 v54, v56, 2, v54")
        a("s_lshl_b32 s27, s3, 10"); a(f"s_add_u32 s27, s27, {L_PRIV}")
        a("v_add_u32 v54, s27, v54"); a("v_add_u32 v55, s27, v55")
        a("s_lshl_b32 s27, s22, 2"); a("s_add_u32 s27, s27, s24")
        a("s_lshl_b32 s27, s27, 11"); a(f"s_add_u32 s27, s27, {WS_T1O}")
        a("s_lshl_b32 s28, s3, 8"); a("s_add_u32 s27, s27, s28")
        a("v_lshlrev_b32 v56, 2, v1"); a("v_add_u32 v56, s27, v56")
        self.poll_incr("t1", [("global_load_dwordx4 v[12:15], v9, s[20:21] offset:-2048 sc1", [12, 13, 14, 15]),
                              ("global_load_dwordx4 v[16:19], v9, s[20:21] offset:2048 sc1", [16, 17, 18, 19]),
                              ("global_load_dwordx2 v[20:21], v11, s[20:21] sc1", [20, 21])], 24)
        self.stamp(5)
        a("v_mov_b32 v25, v20")
        self.wave_allreduce("v_max_f32", [25], [26], full=False)
        a("v_sub_f32 v27, v20, v25")
        a("v_mul_f32 v27, s56, v27")
        a("v_exp_f32 v27, v27")
        self.nop(1)
        a("ds_bpermute_b32 v28, v10, v27"); a("ds_bpermute_b32 v29, v22, v27")
        a("v_mul_f32 v31, v27, v21")
        self.nop(2)
        self.row_allreduce("v_add_f32", [31])
        a("s_waitcnt lgkmcnt(0)")
        for e in range(4): a(f"v_mul_f32 v{12+e}, v28, v{12+e}")
        for e in range(4): a(f"v_fma_f32 v{12+e}, v29, v{16+e}, v{12+e}")
        self.nop(2)
        a("v_permlane32_swap_b32 v12, v13"); a("v_permlane32_swap_b32 v14, v15")
        self.nop(1)
        a("v_add_f32 v12, v12, v13"); a("v_add_f32 v14, v14, v15")
        a("ds_write_b32 v52, v12"); a("ds_write_b32 v52, v14 offset:8")
        self.swap_allreduce("v_add_f32", [31], [26], 16)
        a("v_rcp_f32 v30, v31")
        a("s_waitcnt lgkmcnt(0)")
        a("s_barrier")
        a("s_cmp_eq_u32 s3, 7"); a("s_cbranch_scc1 L_exit")
        for w in range(8):
            a(f"ds_read_b64 v[{32+2*w}:{32+2*w+1}], v53 offset:{w*512}")
        a("v_fma_f32 v26, -v31, v30, 1.0"); a("v_fma_f32 v30, v26, v30, v30")
        for w in range(1, 8):
            a(f"s_waitcnt lgkmcnt({7-w})")
            a(f"v_add_f32 v32, v32, v{32+2*w}"); a(f"v_add_f32 v33, v33, v{33+2*w}")
        a("v_mul_f32 v32, v30, v32"); a("v_mul_f32 v33, v30, v33")
        a("v_cvt_pk_bf16_f32 v34, v32, v33")
        a("ds_write_b32 v54, v34")
        a("s_waitcnt lgkmcnt(0)")
        for ks in range(4):
            a(f"ds_read_b128 v[{36+4*ks}:{36+4*ks+3}], v55 offset:{ks*64}")
        DD = 128
        for ks in range(4):
            a(f"s_waitcnt lgkmcnt({3-ks})")
            for tt in range(4):
                r = BF + (ks * 4 + tt) * 4
                cc = "0" if ks == 0 else f"v[{DD+4*tt}:{DD+4*tt+3}]"
                a(f"v_mfma_f32_16x16x32_bf16 v[{DD+4*tt}:{DD+4*tt+3}], v[{36+4*ks}:{36+4*ks+3}], v[{r}:{r+3}], {cc}")
        self.nop(8)
        self.select4(21, DD, DD+4, DD+8, DD+12)
        self.store_wide(21, 24, 56)
        self.stamp(6)
        a("s_branch L_exit")

    def gen_ffn(self):
        a, L, c = self.a, self.L, self.c
        c("================ FFN slice ================")
        L("L_ffn")
        a("s_sub_u32 s24, s23, 8"); a("s_lshr_b32 s24, s24, 1"); a("s_lshl_b32 s24, s24, 3"); a("s_add_u32 s24, s24, s22")
        a("v_lshrrev_b32 v2, 2, v1")
        a("v_and_b32 v3, 3, v1")
        a("v_bfe_u32 v4, v1, 4, 1")
        a("v_lshlrev_b32 v5, 6, v2"); a("v_lshl_add_u32 v5, v3, 3, v5")
        a("s_lshl_b32 s25, s3, 12"); a("v_add_u32 v5, s25, v5")
        a("v_lshl_add_u32 v6, v4, 5, v5")
        a("v_xor_b32 v4, 1, v4"); a("v_lshl_add_u32 v7, v4, 5, v5")
        a(f"v_mul_u32_u24 v8, {WPITCH}, v2"); a("v_lshl_add_u32 v8, v3, 3, v8")
        a("s_lshl_b32 s25, s3, 7"); a(f"s_add_u32 s25, s25, {L_DOWN}"); a("v_add_u32 v8, s25, v8")
        BG = 64
        BD = 96
        HN = L_PRIV + 7 * 1024
        a("s_lshl_b32 s27, s3, 10"); a(f"s_add_u32 s27, s27, {L_PRIV}")
        a("s_cmp_eq_u32 s3, 7"); a("s_cbranch_scc1 L_ffn_ln")
        for ksl in range(2):
            for m in range(2):
                for ct in range(2):
                    for h in range(2):
                        r = BG + ((ksl * 2 + m) * 2 + ct) * 4 + 2 * h
                        a(f"ds_read_b64_tr_b16 v[{r}:{r+1}], v{6+ct} offset:{m*L_UP + ksl*2048 + h*1024}")
            a("s_waitcnt lgkmcnt(0)")
        for tt in range(4):
            for h in range(2):
                r = BD + tt * 4 + 2 * h
                a(f"ds_read_b64_tr_b16 v[{r}:{r+1}], v8 offset:{16*h*WPITCH + tt*32}")
        a("v_lshrrev_b32 v37, 4, v1"); a("v_lshlrev_b32 v37, 4, v37")
        a("s_lshl_b32 s28, s3, 7"); a(f"s_add_u32 s28, s28, {HN}"); a("v_add_u32 v37, s28, v37")
        GU = L_ACC + 8192
        a("v_lshlrev_b32 v38, 2, v1")
        a("s_lshl_b32 s28, s3, 8"); a(f"s_add_u32 s28, s28, {GU}"); a("v_add_u32 v116, s28, v38")
        a(f"v_add_u32 v117, {GU}, v38")
        a("v_bfe_u32 v118, v1, 2, 2"); a("v_lshlrev_b32 v118, 4, v118")
        a("v_bfe_u32 v119, v1, 4, 1"); a("v_lshl_add_u32 v118, v119, 3, v118")
        a("v_and_b32 v119, 3, v1"); a("v_lshl_add_u32 v118, v119, 1, v118"); a("v_add_u32 v118, s27, v118")
        a("v_lshrrev_b32 v119, 4, v1"); a("v_lshlrev_b32 v119, 4, v119"); a("v_add_u32 v119, s27, v119")
        a("s_lshl_b32 s28, s24, 11"); a(f"s_add_u32 s28, s28, {WS_FFO}"); a("s_lshl_b32 s29, s3, 8"); a("s_add_u32 s28, s28, s29")
        a("v_add_u32 v120, s28, v38")
        a(f"s_mov_b32 s28, {hexf(0.044715)}"); a(f"s_mov_b32 s29, {hexf(-2.0 * LOG2E * 0.7978845608028654)}")
        a("s_branch L_ffn_bc")
        L("L_ffn_ln")
        a("v_lshlrev_b32 v12, 5, v1"); a(f"v_add_u32 v12, {WS_HO}, v12")
        a("v_lshrrev_b32 v36, 2, v1"); a("v_lshlrev_b32 v44, 6, v36")
        a("v_and_b32 v37, 1, v1"); a("v_lshl_add_u32 v44, v37, 5, v44")
        a("v_bfe_u32 v37, v1, 1, 1"); a("v_lshl_add_u32 v44, v37, 3, v44")
        a(f"v_add_u32 v44, {HN}, v44")
        a("s_mov_b32 exec_hi, 0x00ffffff")
        def loads():
            a("global_load_dwordx4 v[16:19], v12, s[20:21] sc1")
            a("global_load_dwordx4 v[20:23], v12, s[20:21] offset:16 sc1")
        if self.stag:
            def ld2(b):
                a(f"global_load_dwordx4 v[{b}:{b+3}], v12, s[20:21] sc1")
                a(f"global_load_dwordx4 v[{b+4}:{b+7}], v12, s[20:21] offset:16 sc1")
            self.poll_stag("ffn", ld2, 2, 8, 48, 56, 16, 14, sleep=self.stag)
        else:
            self.poll_sentinel("ffn", loads, list(range(16, 24)), 14)
        a("s_mov_b64 exec, -1")
        self.stamp(5)
        self.layernorm(16, 28, 36, 24)
        a("s_mov_b32 exec_hi, 0x00ffffff")
        a("ds_write_b64 v44, v[24:25]"); a("ds_write_b64 v44, v[26:27] offset:16")
        a("s_mov_b64 exec, -1")
        L("L_ffn_bc")
        a("s_waitcnt lgkmcnt(0)")
        a("s_barrier")
        a("s_cmp_eq_u32 s3, 7"); a("s_cbranch_scc1 L_ffn_w7")
        a("ds_read_b128 v[40:43], v37"); a("ds_read_b128 v[44:47], v37 offset:64")
        a("s_waitcnt lgkmcnt(0)")
        DD = 48
        for ksl in range(2):
            for m in range(2):
                for ct in range(2):
                    r = BG + ((ksl * 2 + m) * 2 + ct) * 4
                    d = DD + (m * 2 + ct) * 4
                    cc = "0" if ksl == 0 else f"v[{d}:{d+3}]"
                    a(f"v_mfma_f32_16x16x32_bf16 v[{d}:{d+3}], v[{40+4*ksl}:{40+4*ksl+3}], v[{r}:{r+3}], {cc}")
        self.nop(8)
        self.select4(16, DD, DD+4, DD+8, DD+12)
        a("ds_write_b32 v116, v16")
        L("L_ffn_w7")
        a("s_waitcnt lgkmcnt(0)")
        a("s_barrier")
        a("s_cmp_eq_u32 s3, 7"); a("s_cbranch_scc1 L_exit")
        for w in range(7): a(f"ds_read_b32 v{16+w}, v117 offset:{w*256}")
        for w in range(1, 7):
            a(f"s_waitcnt lgkmcnt({6-w})")
            a(f"v_add_f32 v16, v16, v{16+w}")
        a("v_cvt_pk_bf16_f32 v17, v16, v16")
        a("v_and_b32 v16, 0xffff0000, v17")
        a("v_mov_b32 v17, v16")
        self.nop(2)
        a("v_permlane32_swap_b32 v16, v17")
        self.nop(1)
        k1 = -2.0 * LOG2E * 0.7978845608028654
        a("v_mul_f32 v18, v16, v16")
        a("v_fma_f32 v18, v18, s28, 1.0")
        a("v_mul_f32 v18, v18, v16")
        a("v_mul_f32 v18, s29, v18")
        a("v_exp_f32 v18, v18")
        self.nop(1)
        a("v_add_f32 v18, 1.0, v18")
        a("v_rcp_f32 v18, v18")
        self.nop(1)
        a("v_mul_f32 v18, v16, v18")
        a("v_cvt_pk_bf16_f32 v18, v18, v18"); a("v_and_b32 v18, 0xffff0000, v18")
        a("v_mul_f32 v18, v18, v17")
        a("v_cvt_pk_bf16_f32 v18, v18, v18")
        a("s_mov_b32 exec_hi, 0")
        a("ds_write_b16 v118, v18")
        a("s_mov_b32 exec_hi, -1")
        a("ds_read_b128 v[20:23], v119")
        a("s_waitcnt lgkmcnt(0)")
        for tt in range(4):
            a(f"v_mfma_f32_16x16x32_bf16 v[{DD+4*tt}:{DD+4*tt+3}], v[20:23], v[{BD+4*tt}:{BD+4*tt+3}], 0")
        self.nop(8)
        self.select4(16, DD, DD+4, DD+8, DD+12)
        self.store_wide(16, 20, 120)
        self.stamp(6)
        a("s_branch L_exit")

    def layernorm(self, X, T, U, OUT):
        a = self.a
        a(f"v_readfirstlane_b32 s34, v{X}")
        a(f"v_mov_b32 v{U}, 0"); a(f"v_mov_b32 v{U+1}, 0")
        a("s_mov_b32 exec_hi, 0x00ffffff")
        a("s_mov_b32 s35, s34")
        for e in range(0, 8, 2): a(f"v_pk_add_f32 v[{T+e}:{T+e+1}], v[{X+e}:{X+e+1}], s[34:35] neg_lo:[0,1] neg_hi:[0,1]")
        a(f"v_pk_add_f32 v[{U+4}:{U+5}], v[{T}:{T+1}], v[{T+2}:{T+3}]"); a(f"v_pk_mul_f32 v[{U+6}:{U+7}], v[{T}:{T+1}], v[{T}:{T+1}]")
        a(f"v_pk_add_f32 v[{U+2}:{U+3}], v[{T+4}:{T+5}], v[{T+6}:{T+7}]"); a(f"v_pk_fma_f32 v[{U+6}:{U+7}], v[{T+2}:{T+3}], v[{T+2}:{T+3}], v[{U+6}:{U+7}]")
        a(f"v_pk_add_f32 v[{U+4}:{U+5}], v[{U+4}:{U+5}], v[{U+2}:{U+3}]"); a(f"v_pk_fma_f32 v[{U+6}:{U+7}], v[{T+4}:{T+5}], v[{T+4}:{T+5}], v[{U+6}:{U+7}]")
        a(f"v_pk_fma_f32 v[{U+6}:{U+7}], v[{T+6}:{T+7}], v[{T+6}:{T+7}], v[{U+6}:{U+7}]")
        a(f"v_add_f32 v{U}, v{U+4}, v{U+5}"); a(f"v_add_f32 v{U+1}, v{U+6}, v{U+7}")
        a("s_mov_b64 exec, -1")
        self.wave_allreduce("v_add_f32", [U, U+1], [U+2, U+3])
        a(f"s_mov_b32 s35, {hexf(1.0/448)}")
        a(f"v_mul_f32 v{U}, s35, v{U}"); a(f"v_mul_f32 v{U+1}, s35, v{U+1}")
        a(f"v_fma_f32 v{U+1}, -v{U}, v{U}, v{U+1}")
        a(f"v_add_f32 v{U}, s34, v{U}")
        a(f"v_max_f32 v{U+1}, 0, v{U+1}")
        self.round_bf16_pair(U+2, U, U+1, U, U+1)
        a(f"v_add_f32 v{U+1}, {hexf(1e-5)}, v{U+1}")
        a(f"v_cvt_pk_bf16_f32 v{U+1}, v{U+1}, v{U+1}"); a(f"v_and_b32 v{U+1}, 0xffff0000, v{U+1}")
        a(f"v_sqrt_f32 v{U+2}, v{U+1}")
        a(f"v_mov_b32 v{U+1}, v{U}")
        for e in range(0, 8, 2): a(f"v_pk_add_f32 v[{T+e}:{T+e+1}], v[{X+e}:{X+e+1}], v[{U}:{U+1}] neg_lo:[0,1] neg_hi:[0,1]")
        a(f"v_cvt_pk_bf16_f32 v{U+2}, v{U+2}, v{U+2}"); a(f"v_and_b32 v{U+2}, 0xffff0000, v{U+2}")
        a(f"v_rcp_f32 v{U+4}, v{U+2}")
        for e in range(4): self.round_bf16_pair(U+3, T+2*e, T+2*e+1, T+2*e, T+2*e+1)
        a(f"v_fma_f32 v{U+5}, -v{U+2}, v{U+4}, 1.0"); a(f"v_fma_f32 v{U+4}, v{U+5}, v{U+4}, v{U+4}"); a(f"v_mov_b32 v{U+5}, v{U+4}")
        for e in range(0, 8, 2): a(f"v_pk_mul_f32 v[{T+e}:{T+e+1}], v[{T+e}:{T+e+1}], v[{U+4}:{U+5}]")
        for e in range(4): a(f"v_cvt_pk_bf16_f32 v{OUT+e}, v{T+2*e}, v{T+2*e+1}")

    def gen_fin(self):
        a, L, c = self.a, self.L, self.c
        c("================ final reduce ================")
        L("L_fin")
        a("s_load_dwordx2 s[36:37], s[0:1], 72")
        a("v_lshrrev_b32 v2, 4, v1")
        a("v_and_b32 v3, 15, v1")
        a("s_lshl_b32 s24, s3, 2"); a("v_add_u32 v4, s24, v2")
        a("v_lshlrev_b32 v4, 11, v4"); a("v_lshl_add_u32 v4, v3, 4, v4")
        a("s_lshl_b32 s25, s22, 8"); a("v_add_u32 v4, s25, v4")
        a(f"v_add_u32 v5, {WS_T1O}, v4"); a(f"v_add_u32 v6, {WS_FFO}, v4"); a(f"v_add_u32 v7, {32*2048}, v6")
        a("v_bfrev_b32 v8, v2"); a("v_lshrrev_b32 v8, 30, v8")
        a("v_lshl_add_u32 v8, v3, 2, v8"); a("v_lshlrev_b32 v8, 2, v8")
        a("s_lshl_b32 s26, s3, 8"); a(f"s_add_u32 s26, s26, {L_ACC}"); a("v_add_u32 v8, s26, v8")
        def red(r):
            self.nop(2)
            a(f"v_permlane32_swap_b32 v{r}, v{r+1}"); a(f"v_permlane32_swap_b32 v{r+2}, v{r+3}")
            self.nop(1)
            a(f"v_add_f32 v{r}, v{r}, v{r+1}"); a(f"v_add_f32 v{r+2}, v{r+2}, v{r+3}")
            self.nop(2)
            a(f"v_permlane16_swap_b32 v{r}, v{r+2}")
            self.nop(1)
            a(f"v_add_f32 v{r}, v{r}, v{r+2}")
        if self.stag:
            self.poll_stag("fin1", lambda b: a(f"global_load_dwordx4 v[{b}:{b+3}], v5, s[20:21] sc1"), 1, 4, 44, 48, 12, 10, sleep=self.stag)
        else:
            def loads1(): a("global_load_dwordx4 v[12:15], v5, s[20:21] sc1")
            self.poll_sentinel("fin1", loads1, [12, 13, 14, 15], 10)
        red(12)
        a("ds_write_b32 v8, v12")
        a("v_lshlrev_b32 v9, 2, v1"); a(f"v_add_u32 v9, {L_ACC}, v9")
        a("s_lshl_b32 s25, s22, 7"); a(f"s_add_u32 s25, s25, {L_XR}")
        a("v_lshlrev_b32 v10, 1, v1"); a("v_add_u32 v11, s25, v10")
        a("ds_read_u16 v32, v11")
        a("s_lshl_b32 s27, s22, 8"); a(f"s_add_u32 s27, s27, {WS_HO}")
        a("v_lshlrev_b32 v34, 2, v1"); a("v_add_u32 v34, s27, v34")
        a("s_waitcnt lgkmcnt(0)")
        a("s_barrier")
        a("s_cmp_lg_u32 s3, 0"); a("s_cbranch_scc1 L_fin_fb")
        for w in range(8): a(f"ds_read_b32 v{16+w}, v9 offset:{w*256}")
        a("v_lshlrev_b32 v32, 16, v32")
        for w in range(1, 8):
            a(f"s_waitcnt lgkmcnt({7-w})")
            a(f"v_add_f32 v16, v16, v{16+w}")
        a("v_cvt_pk_bf16_f32 v33, v16, v16"); a("v_and_b32 v16, 0xffff0000, v33")
        a("v_add_f32 v16, v16, v32")
        a("v_cvt_pk_bf16_f32 v33, v16, v16"); a("v_and_b32 v40, 0xffff0000, v33")
        self.store_wide(40, 36, 34)
        L("L_fin_fb")
        a("s_cmp_lt_u32 s3, 6"); a("s_cbranch_scc1 L_fin_two")
        if self.stag:
            self.poll_stag("fin2a", lambda b: a(f"global_load_dwordx4 v[{b}:{b+3}], v6, s[20:21] sc1"), 1, 4, 52, 56, 12, 10, sleep=self.stag)
        else:
            def loads2a(): a("global_load_dwordx4 v[12:15], v6, s[20:21] sc1")
            self.poll_sentinel("fin2a", loads2a, [12, 13, 14, 15], 10)
        a("s_branch L_fin_red")
        L("L_fin_two")
        if self.stag:
            def ld3(b):
                a(f"global_load_dwordx4 v[{b}:{b+3}], v6, s[20:21] sc1")
                a(f"global_load_dwordx4 v[{b+4}:{b+7}], v7, s[20:21] sc1")
            self.poll_stag("fin2b", ld3, 2, 8, 52, 60, 12, 10, sleep=self.stag)
        else:
            self.poll_incr("fin2b", [("global_load_dwordx4 v[12:15], v6, s[20:21] sc1", [12, 13, 14, 15]),
                                     ("global_load_dwordx4 v[16:19], v7, s[20:21] sc1", [16, 17, 18, 19])], 10)
        for e in range(4): a(f"v_add_f32 v{12+e}, v{12+e}, v{16+e}")
        L("L_fin_red")
        self.stamp(5)
        red(12)
        a("ds_write_b32 v8, v12 offset:2048")
        a("s_waitcnt lgkmcnt(0)")
        a("s_barrier")
        a("s_cmp_lg_u32 s3, 0"); a("s_cbranch_scc1 L_exit")
        for w in range(8): a(f"ds_read_b32 v{24+w}, v9 offset:{2048+w*256}")
        for w in range(1, 8):
            a(f"s_waitcnt lgkmcnt({7-w})")
            a(f"v_add_f32 v24, v24, v{24+w}")
        a("v_cvt_pk_bf16_f32 v33, v24, v24"); a("v_and_b32 v24, 0xffff0000, v33")
        a("v_add_f32 v16, v40, v24")
        a("v_cvt_pk_bf16_f32 v33, v16, v16")
        a("s_lshl_b32 s25, s22, 7"); a("v_lshlrev_b32 v10, 1, v1"); a("v_add_u32 v10, s25, v10")
        a("global_store_short v10, v33, s[36:37]")
        a("s_cmp_lg_u32 s22, 0"); a("s_cbranch_scc1 L_fin_end")
        a(f"v_mov_b32 v34, {L_XN + 1020}")
        a("ds_read_b32 v35, v34")
        a("s_waitcnt lgkmcnt(0)")
        a("v_mov_b32 v34, 0")
        a("s_mov_b64 exec, 1")
        a("global_store_dword v34, v35, s[20:21] sc1")
        a("s_mov_b64 exec, -1")
        L("L_fin_end")
        self.stamp(6)
        a("s_branch L_exit")

    def gen_helper(self):
        a, L, c = self.a, self.L, self.c
        c("================ helper wave ================")
        L("L_helper")
        if "nosup" in self.exp: a("s_barrier"); a("s_branch L_exit")
        a("s_setprio 3")
        a("s_load_dwordx2 s[56:57], s[0:1], 0")
        a("s_load_dwordx2 s[8:9], s[0:1], 24")
        if self.b0early:
            a(f"v_mov_b32 v18, {L_QF}"); a("v_mov_b32 v6, 0"); a("ds_write_b32 v18, v6"); a("ds_write_b32 v18, v6 offset:4")
            a("s_waitcnt lgkmcnt(0)")
            a("s_barrier")
        a("s_and_b32 s24, s23, 7"); a("s_lshr_b32 s25, s23, 3")
        a("s_mul_i32 s26, s25, 112")
        a("s_lshl_b32 s27, s22, 3"); a("s_add_u32 s27, s27, s24"); a("s_lshl_b32 s27, s27, 7")
        a("v_lshrrev_b32 v2, 3, v1"); a("v_add_u32 v3, s26, v2"); a("v_lshlrev_b32 v3, 13, v3")
        a("v_and_b32 v4, 7, v1"); a("v_lshl_add_u32 v3, v4, 4, v3"); a("v_add_u32 v3, s27, v3")
        a("v_lshlrev_b32 v5, 4, v1")
        a("v_mov_b32 v6, 0")
        a("s_waitcnt lgkmcnt(0)")
        a("s_mov_b32 s40, s56"); a("s_mov_b32 s41, s57"); a("s_mov_b32 s42, 896"); a("s_mov_b32 s43, 0x20000")
        a("s_mov_b32 s44, s8"); a("s_mov_b32 s45, s9"); a(f"s_mov_b32 s46, {448*4096*2}"); a("s_mov_b32 s47, 0x20000")
        a("s_load_dword s36, s[20:21], 0x0")
        a("buffer_load_dwordx4 v[8:11], v5, s[40:43], 0 offen")
        WQ = 64
        for i in range(14):
            a(f"s_mov_b32 s28, {i*8*8192}")
            if "nowq" not in self.exp: a(f"buffer_load_dwordx4 v[{WQ+4*i}:{WQ+4*i+3}], v3, s[44:47], s28 offen{self.ntw}")
        a("s_cmp_lg_u32 s23, 0"); a("s_cbranch_scc1 L_h_nocnt")
        a("s_lshl_b32 s28, s22, 8"); a(f"s_add_u32 s28, s28, {WS_CNT}"); a("v_mov_b32 v17, s28")
        a("s_mov_b64 exec, 1")
        a("global_store_dword v17, v6, s[20:21] sc1")
        a("s_mov_b64 exec, -1")
        L("L_h_nocnt")
        if not self.b0early:
            a(f"v_mov_b32 v18, {L_QF}"); a("ds_write_b32 v18, v6"); a("ds_write_b32 v18, v6 offset:4")
            a("s_waitcnt lgkmcnt(0)")
            a("s_barrier")
        else:
            a("s_waitcnt lgkmcnt(0)")
        a("s_waitcnt vmcnt(14)" )
        self.stamp(0)
        a(f"v_add_u32 v18, {L_XR}, v5")
        a("v_cmp_gt_u32 vcc, 56, v1")
        a("s_and_saveexec_b64 s[32:33], vcc")
        a("ds_write_b128 v18, v[8:11]")
        a("s_mov_b64 exec, s[32:33]")
        for e in range(4):
            a(f"v_lshlrev_b32 v{20+2*e}, 16, v{8+e}"); a(f"v_and_b32 v{21+2*e}, 0xffff0000, v{8+e}")
        a("s_mul_i32 s36, s36, 0x9E3779B1"); a("s_add_u32 s36, s36, 0x7F4A7C15")
        a("v_mov_b32 v19, s36"); a(f"v_mov_b32 v18, {L_XN+1020}")
        a("ds_write_b32 v18, v19")
        self.layernorm(20, 28, 36, 44)
        a(f"v_add_u32 v18, {L_XN}, v5")
        a("v_cmp_gt_u32 vcc, 56, v1")
        a("s_and_saveexec_b64 s[32:33], vcc")
        a("ds_write_b128 v18, v[44:47]")
        a("s_mov_b64 exec, s[32:33]")
        a("v_add_u32 v18, s26, v2"); a("v_lshlrev_b32 v18, 1, v18"); a(f"v_add_u32 v18, {L_XN}, v18")
        a("s_waitcnt lgkmcnt(0)")
        for i in range(14): a(f"ds_read_u16 v{48+i}, v18 offset:{i*16}")
        for j in range(8): a(f"v_mov_b32 v{28+j}, 0")
        a("s_waitcnt vmcnt(0) lgkmcnt(0)")
        self.stamp(1)
        for i in range(14):
            a(f"v_lshlrev_b32 v62, 16, v{48+i}")
            for w in range(4):
                a(f"v_dot2c_f32_bf16 v{28+2*w}, v{WQ+4*i+w}, v{48+i}")
                a(f"v_dot2c_f32_bf16 v{28+2*w+1}, v{WQ+4*i+w}, v62")
        self.nop(3)
        for j in range(4): a(f"v_permlane32_swap_b32 v{28+j}, v{32+j}")
        self.nop(1)
        for j in range(4): a(f"v_add_f32 v{28+j}, v{28+j}, v{32+j}")
        self.nop(2)
        for j in range(2): a(f"v_permlane16_swap_b32 v{28+j}, v{30+j}")
        self.nop(1)
        for j in range(2): a(f"v_add_f32 v{28+j}, v{28+j}, v{30+j}")
        self.nop(2)
        for j in range(2): a(f"v_add_f32_dpp v{28+j}, v{28+j}, v{28+j} row_ror:8 row_mask:0xf bank_mask:0xf")
        a("v_mov_b32 v30, v29"); a("v_mov_b32 v29, s36"); a("v_mov_b32 v31, s36")
        a("v_lshlrev_b32 v32, 6, v4")
        a("v_bfe_u32 v33, v1, 5, 1"); a("v_lshl_add_u32 v32, v33, 5, v32")
        a("v_bfe_u32 v33, v1, 4, 1"); a("v_lshl_add_u32 v32, v33, 4, v32")
        a("s_lshl_b32 s28, s2, 9"); a(f"s_add_u32 s28, s28, {WS_QG}"); a("v_add_u32 v32, s28, v32")
        a("v_and_b32 v33, 8, v1"); a("v_cmp_eq_u32 vcc, 0, v33")
        a("s_and_saveexec_b64 s[32:33], vcc")
        a("global_store_dwordx4 v32, v[28:31], s[20:21] sc1")
        a("s_mov_b64 exec, s[32:33]")
        self.stamp(2)
        a("s_getpc_b64 s[44:45]")
        L("L_pc")
        a(f"s_sub_u32 s44, s44, L_pc - {KNAME}"); a("s_subb_u32 s45, s45, 0")
        a("v_lshlrev_b32 v60, 7, v1")
        for i in range(0 if "nopf" in self.exp else self.code_kb // 8):
            a(f"v_cmp_gt_u32 vcc, L_end - {KNAME}, v60")
            a("s_and_saveexec_b64 s[46:47], vcc")
            a(f"global_load_dword v{61+i}, v60, s[44:45]")
            a("s_mov_b64 exec, s[46:47]")
            a("v_add_u32 v60, 0x2000, v60")
        a(f"v_mov_b32 v160, {L_QF}"); a("v_mov_b32 v161, 1")
        a("ds_write_b32 v160, v161 offset:4")
        a("v_mov_b32 v153, s36")
        a("s_branch L_sup_gather")
        L("L_h_resets")
        if "nores" in self.exp.split(","): a("s_branch L_exit")
        self.gen_resets("h", self.early_reset == 0)
        a("s_branch L_sup_dma")
        L("L_h_tokens")
        if "notok" in self.exp: a("s_branch L_exit")
        a("s_cmp_eq_u32 s29, 0"); a("s_cbranch_scc1 L_exit")
        a("s_cmp_eq_u32 s29, 1"); a("s_cbranch_scc0 L_h_tok_fin")
        a("v_and_b32 v20, 31, v1"); a("s_lshl_b32 s28, s22, 5"); a("v_add_u32 v20, s28, v20")
        a(f"v_lshlrev_b32 v21, 2, v20"); a(f"v_add_u32 v21, {WS_TOK}, v21")
        self.poll_tag("tok0", 21)
        a("s_branch L_h_end")
        L("L_h_tok_fin")
        a("s_cmp_eq_u32 s29, 3"); a("s_cbranch_scc1 L_h_tok_fin2")
        a("v_min_u32 v20, 6, v1"); a("v_lshlrev_b32 v21, 5, v20"); a("v_add_u32 v21, 22, v21")
        a("v_lshlrev_b32 v21, 2, v21"); a(f"v_add_u32 v21, {WS_TOK}, v21")
        self.poll_tag("tokr", 21)
        a("s_branch L_h_end")
        L("L_h_tok_fin2")
        a("v_and_b32 v20, 31, v1")
        a("v_lshrrev_b32 v21, 2, v20"); a("v_lshlrev_b32 v21, 5, v21"); a("v_and_b32 v22, 3, v20"); a("v_lshl_add_u32 v21, v22, 1, v21")
        a("v_lshlrev_b32 v21, 2, v21"); a(f"v_add_u32 v21, {WS_TOK}, v21")
        self.poll_tag("tok1", 21)
        a("v_min_u32 v20, 55, v1")
        a("v_and_b32 v21, 7, v20"); a("v_lshlrev_b32 v21, 5, v21"); a("v_lshrrev_b32 v22, 3, v20"); a("v_lshl_add_u32 v21, v22, 1, v21")
        a("v_add_u32 v21, 8, v21"); a("v_lshlrev_b32 v21, 2, v21"); a(f"v_add_u32 v21, {WS_TOK}, v21")
        self.poll_tag("tok2", 21)
        L("L_h_end")
        self.stamp(4)
        a("s_branch L_exit")


    def gen_resets(self, p, stores, token=True):
        a, L = self.a, self.L
        st = (lambda ins: self.rs(ins)) if stores else (lambda ins: None)
        a("v_lshlrev_b32 v5, 4, v1")
        a("v_mov_b32 v12, -1"); a("v_mov_b32 v13, -1"); a("v_mov_b32 v14, -1"); a("v_mov_b32 v15, -1")
        a("s_lshl_b32 s28, s2, 11"); a(f"s_add_u32 s28, s28, {WS_H1}"); a("v_add_u32 v16, s28, v5")
        st("global_store_dwordx4 v16, v[12:15], s[20:21] sc1")
        st("global_store_dwordx4 v16, v[12:15], s[20:21] offset:1024 sc1")
        a("s_lshl_b32 s28, s2, 4"); a(f"s_add_u32 s28, s28, {WS_ML}"); a("v_mov_b32 v17, s28")
        a("s_mov_b64 exec, 1")
        st("global_store_dwordx4 v17, v[12:15], s[20:21] sc1")
        a("s_mov_b64 exec, -1")
        a("s_mov_b32 s29, 0")
        a("s_bitcmp1_b32 s23, 0"); a(f"s_cbranch_scc1 L_{p}_role_done")
        a("s_cmp_lt_u32 s23, 8"); a(f"s_cbranch_scc0 L_{p}_not_t1")
        a("s_mov_b32 s29, 1")
        a("s_lshr_b32 s30, s23, 1"); a("s_lshl_b32 s31, s22, 2"); a("s_add_u32 s30, s30, s31")
        a("s_lshl_b32 s31, s30, 11"); a(f"s_add_u32 s31, s31, {WS_T1O}")
        a(f"s_branch L_{p}_reset_role")
        L(f"L_{p}_not_t1")
        a("s_cmp_lt_u32 s23, 22"); a(f"s_cbranch_scc0 L_{p}_not_ffn")
        a("s_mov_b32 s29, 2")
        a("s_sub_u32 s30, s23, 8"); a("s_lshr_b32 s30, s30, 1"); a("s_lshl_b32 s30, s30, 3"); a("s_add_u32 s30, s30, s22")
        a("s_lshl_b32 s31, s30, 11"); a(f"s_add_u32 s31, s31, {WS_FFO}")
        L(f"L_{p}_reset_role")
        a("v_add_u32 v16, s31, v5")
        st("global_store_dwordx4 v16, v[12:15], s[20:21] sc1")
        st("global_store_dwordx4 v16, v[12:15], s[20:21] offset:1024 sc1")
        a(f"s_branch L_{p}_role_done")
        L(f"L_{p}_not_ffn")
        a("s_cmp_eq_u32 s23, 22"); a(f"s_cbranch_scc0 L_{p}_role_done")
        a("s_cmp_lt_u32 s22, 7"); a(f"s_cbranch_scc0 L_{p}_role_done")
        a("s_mov_b32 s29, 3")
        a("s_lshl_b32 s31, s22, 8"); a(f"s_add_u32 s31, s31, {WS_HO}"); a("v_add_u32 v16, s31, v5")
        a("s_mov_b64 exec, 0xffff")
        st("global_store_dwordx4 v16, v[12:15], s[20:21] sc1")
        a("s_mov_b64 exec, -1")
        L(f"L_{p}_role_done")
        if stores and token: self.gen_token()

    def gen_token(self):
        a = self.a
        if True:
            a("s_waitcnt vmcnt(0)")
            a("s_lshl_b32 s28, s2, 2"); a(f"s_add_u32 s28, s28, {WS_TOK}"); a("v_mov_b32 v17, s28"); a("v_mov_b32 v18, s36")
            a("s_mov_b64 exec, 1")
            a("global_store_dword v17, v18, s[20:21] sc1")
            a("s_mov_b64 exec, -1")

    def gen_support(self):
        a, L, c = self.a, self.L, self.c
        c("================ support waves 9..11 (and the helper after its q slice) ================")
        L("L_support")
        if "nosup" in self.exp: a("s_barrier"); a("s_branch L_exit")
        a("s_setprio 3")
        a("s_waitcnt lgkmcnt(0)")
        a("s_load_dword s36, s[20:21], 0x0")
        a("s_barrier")
        if self.tlbpf:
            a("s_cmp_eq_u32 s3, 10"); a("s_cbranch_scc0 L_sup_notlb")
            a("s_cmp_lt_u32 s23, 8"); a("s_cbranch_scc0 L_sup_notlb")
            a("s_lshl_b32 s24, s22, 24")
            a("v_and_b32 v20, 7, v1"); a("v_lshlrev_b32 v20, 21, v20"); a("v_add_u32 v20, s24, v20")
            a("s_mov_b64 exec, 0xff")
            a("global_load_dword v21, v20, s[4:5] nt"); a("global_load_dword v22, v20, s[6:7] nt")
            a("s_mov_b64 exec, -1")
            L("L_sup_notlb")
        if self.early_reset:
            a("s_cmp_eq_u32 s3, 9"); a("s_cbranch_scc0 L_sup_nores")
            self.gen_resets("e", True, token=False)
            L("L_sup_nores")
        a("s_waitcnt lgkmcnt(0)")
        a("s_mul_i32 s36, s36, 0x9E3779B1"); a("s_add_u32 s36, s36, 0x7F4A7C15")
        a("v_mov_b32 v153, s36")
        if self.early_reset:
            a("s_cmp_eq_u32 s3, 9"); a("s_cbranch_scc0 L_sup_notok")
            self.gen_token()
            L("L_sup_notok")
        a(f"v_mov_b32 v160, {L_QF}"); a(f"s_mov_b32 s37, {self.spin_max * 16}")
        L("L_sup_wait")
        a("ds_read_b32 v161, v160 offset:4"); a("s_waitcnt lgkmcnt(0)"); a("v_readfirstlane_b32 s42, v161")
        a("s_cmp_lg_u32 s42, 0"); a("s_cbranch_scc1 L_sup_gather")
        a("s_sleep 2")
        a("s_sub_u32 s37, s37, 1"); a("s_cmp_lg_u32 s37, 0"); a("s_cbranch_scc1 L_sup_wait")
        L("L_sup_gather")
        a("s_load_dwordx2 s[60:61], s[0:1], 32")
        a("s_load_dwordx4 s[64:67], s[0:1], 48")
        a("s_load_dwordx2 s[62:63], s[0:1], 64")
        NSUP = 4
        NCB = 2
        a("s_sub_u32 s28, s3, 8")
        a("s_lshl_b32 s27, s22, 5"); a("s_add_u32 s27, s27, s28"); a("s_lshl_b32 s27, s27, 9"); a(f"s_add_u32 s27, s27, {WS_QG}")
        a("v_lshrrev_b32 v150, 5, v1"); a("v_lshlrev_b32 v150, 12, v150")
        a("v_and_b32 v152, 31, v1"); a("v_lshl_add_u32 v150, v152, 4, v150"); a("v_add_u32 v150, s27, v150")
        a("v_add_u32 v151, 0x2000, v150")
        a("s_lshl_b32 s27, s28, 7"); a(f"s_add_u32 s27, s27, {L_Q}")
        a("v_lshlrev_b32 v152, 2, v152"); a("v_add_u32 v152, s27, v152")
        a(f"s_mov_b32 s37, {self.spin_max}")
        if self.qdelay: a(f"s_sleep {self.qdelay}")
        a("s_mov_b32 s42, 15")
        if "noqp" in self.exp: a("s_branch L_qdone")
        L("L_qpoll")
        for j in range(4):
            k, hf = j >> 1, j & 1
            a(f"s_bitcmp1_b32 s42, {j}"); a(f"s_cbranch_scc0 L_qnl{j}")
            a(f"global_load_dwordx4 v[{40+4*j}:{43+4*j}], {'v150' if hf == 0 else 'v151'}, s[20:21] offset:{k*NSUP*512} sc1")
            L(f"L_qnl{j}")
        a("s_waitcnt vmcnt(0)")
        for j in range(4):
            a(f"v_xor_b32 v154, v{41+4*j}, v153")
            a(f"v_bitop3_b32 v154, v154, v{43+4*j}, v153 bitop3:0xf6")
            a("v_cmp_ne_u32 vcc, 0, v154")
            a(f"s_cbranch_vccnz L_qnc{j}")
            a(f"s_bitset0_b32 s42, {j}")
            L(f"L_qnc{j}")
        a("s_cmp_eq_u32 s42, 0"); a("s_cbranch_scc1 L_qdone")
        a("s_sub_u32 s37, s37, 1"); a("s_cmp_lg_u32 s37, 0"); a("s_cbranch_scc1 L_qpoll")
        L("L_qdone")
        for k in range(NCB):
            b = 40 + 8 * k
            a(f"v_add_f32 v{b}, v{b}, v{b+4}"); a(f"v_add_f32 v{b+2}, v{b+2}, v{b+6}")
            a(f"v_mov_b32 v{b+4}, v{b}"); a(f"v_mov_b32 v{b+6}, v{b+2}")
        self.nop(2)
        for k in range(NCB):
            b = 40 + 8 * k
            a(f"v_permlane32_swap_b32 v{b}, v{b+4}"); a(f"v_permlane32_swap_b32 v{b+2}, v{b+6}")
        self.nop(1)
        for k in range(NCB):
            b = 40 + 8 * k
            a(f"v_add_f32 v{b}, v{b}, v{b+4}"); a(f"v_add_f32 v{b+2}, v{b+2}, v{b+6}")
            a(f"v_cvt_pk_bf16_f32 v{b}, v{b}, v{b+2}")
            a(f"ds_write_b32 v152, v{b} offset:{k*NSUP*128}")
        a("s_waitcnt lgkmcnt(0)")
        self.stamp(5)
        a(f"v_mov_b32 v160, {L_QF}"); a("v_mov_b32 v161, 1")
        a("s_mov_b64 exec, 1")
        a("ds_add_u32 v160, v161")
        a("s_mov_b64 exec, -1")
        if "nob1" not in self.exp: a("s_barrier")
        self.stamp(3)
        a("s_cmp_eq_u32 s3, 8"); a("s_cbranch_scc1 L_h_resets")
        L("L_sup_dma")
        if "nodma" not in self.exp: self.gen_weight_dma()
        a("s_waitcnt vmcnt(0)")
        a("s_cmp_eq_u32 s3, 8"); a("s_cbranch_scc1 L_h_tokens")
        self.stamp(4)
        a("s_branch L_exit")

    def gen_weight_dma(self):
        a, L = self.a, self.L
        NSUP = 4
        a("s_bitcmp1_b32 s23, 0"); a("s_cbranch_scc1 L_wd_done")
        a("s_cmp_lt_u32 s23, 22"); a("s_cbranch_scc0 L_wd_done")
        a("s_sub_u32 s34, s3, 8")
        a("v_lshlrev_b32 v144, 4, v1")
        a("s_cmp_lt_u32 s23, 8"); a("s_cbranch_scc0 L_wd_ffn")
        rows = 128 // NSUP
        a("s_mov_b32 s88, s60"); a("s_mov_b32 s89, s61"); a(f"s_mov_b32 s90, {4096*448*2}"); a("s_mov_b32 s91, 0x20000")
        a("s_lshr_b32 s30, s23, 1"); a("s_lshl_b32 s31, s22, 2"); a("s_add_u32 s30, s30, s31")
        a("s_lshl_b32 s30, s30, 7"); a(f"s_mul_i32 s31, s34, {rows}"); a("s_add_u32 s30, s30, s31")
        a("s_mul_i32 s38, s30, 896")
        a(f"s_mul_i32 s39, s31, {WPITCH}")
        a(f"s_mov_b32 s49, {rows}")
        self.dma_rows("s[88:91]", "v144", "s49")
        a("s_branch L_wd_done")
        L("L_wd_ffn")
        a("s_sub_u32 s30, s23, 8"); a("s_lshr_b32 s30, s30, 1"); a("s_lshl_b32 s30, s30, 3"); a("s_add_u32 s30, s30, s22")
        a("v_lshrrev_b32 v145, 2, v1"); a("v_bfe_u32 v146, v1, 4, 1"); a("v_lshlrev_b32 v146, 1, v146")
        a("v_and_b32 v147, 3, v1"); a("v_xor_b32 v147, v147, v146")
        a("v_mul_u32_u24 v145, 3584, v145"); a("v_lshl_add_u32 v145, v147, 4, v145")
        for m, (plo, base) in enumerate(((64, L_GATE), (66, L_UP))):
            a(f"s_mov_b32 s88, s{plo}"); a(f"s_mov_b32 s89, s{plo+1}"); a(f"s_mov_b32 s90, {448*1792*2}"); a("s_mov_b32 s91, 0x20000")
            a(f"s_mul_i32 s38, s34, {16*3584}"); a("s_lshl_b32 s31, s30, 6"); a("s_add_u32 s38, s38, s31")
            a("s_lshl_b32 s39, s34, 10"); a(f"s_add_u32 s39, s39, {base}")
            a("s_mov_b32 s49, s34")
            lab = self.newlabel("gu")
            L(lab)
            a("s_mov_b32 m0, s39")
            a(f"s_add_u32 s39, s39, {NSUP*1024}")
            a(f"buffer_load_dwordx4 v145, s[88:91], s38 offen{self.ntw if self.ntgu else ''} lds")
            a(f"s_add_u32 s38, s38, {NSUP*16*3584}")
            a(f"s_add_u32 s49, s49, {NSUP}"); a("s_cmp_lt_u32 s49, 28"); a(f"s_cbranch_scc1 {lab}")
        drows = 32 // NSUP
        a("s_mov_b32 s88, s62"); a("s_mov_b32 s89, s63"); a(f"s_mov_b32 s90, {1792*448*2}"); a("s_mov_b32 s91, 0x20000")
        a("s_lshl_b32 s31, s30, 5"); a(f"s_mul_i32 s49, s34, {drows}"); a("s_add_u32 s31, s31, s49")
        a("s_mul_i32 s38, s31, 896")
        a(f"s_mul_i32 s39, s49, {WPITCH}"); a(f"s_add_u32 s39, s39, {L_DOWN}")
        a(f"s_mov_b32 s49, {drows}")
        self.dma_rows("s[88:91]", "v144", "s49")
        L("L_wd_done")

    def dma_rows(self, srd, vaddr, cnt):
        a = self.a
        a("s_mov_b32 exec_hi, 0x00ffffff")
        lab = self.newlabel("rows")
        self.L(lab)
        a("s_mov_b32 m0, s39")
        a(f"s_add_u32 s39, s39, {WPITCH}")
        a(f"buffer_load_dwordx4 {vaddr}, {srd}, s38 offen{self.ntw} lds")
        a("s_add_u32 s38, s38, 896")
        a("s_waitcnt vmcnt(48)")
        a(f"s_sub_u32 {cnt}, {cnt}, 1"); a(f"s_cmp_lg_u32 {cnt}, 0"); a(f"s_cbranch_scc1 {lab}")
        a("s_mov_b64 exec, -1")

    def poll_tag(self, name, addr):
        a = self.a
        lab = self.newlabel(name); done = self.newlabel(name + "d")
        a(f"s_mov_b32 s37, {self.spin_max}")
        self.L(lab)
        a(f"global_load_dword v23, v{addr}, s[20:21] sc1")
        a("s_waitcnt vmcnt(0)")
        a("v_cmp_ne_u32 vcc, s36, v23")
        a(f"s_cbranch_vccz {done}")
        a("s_sleep 8")
        a("s_sub_u32 s37, s37, 1"); a("s_cmp_lg_u32 s37, 0"); a(f"s_cbranch_scc1 {lab}")
        self.L(done)

def emit(path, stf="sc1", ldf="sc1", **kw):
    g = Gen(**kw)
    body = g.build()
    def fix(l):
        if l.rstrip().endswith(" sc1"):
            if "_store_" in l: return l.rstrip()[:-3] + stf
            if "_load_" in l: return l.rstrip()[:-3] + ldf
        return l
    body = [fix(l) for l in body]
    hdr = open("cdna_kernels/" + KNAME[:-7] + ".s.ref").read().split("\n")
    top = [l for l in hdr if l.startswith(";") and "@launch" not in l and "Override launch" not in l and "grid=ceil" not in l]
    top = top[:15]
    doc = [
        "; Design (generated by a hand-written Python generator):",
        ";  256 workgroups x 12 waves, one per CU. g = wg>>5 is the KV head, s = wg&31 the slot in the group.",
        ";  waves 0-7 stream K/V tiles of 16 keys (nt loads; K through an LDS transpose into MFMA, V with dot2; online softmax),",
        ";   static tiles first, then tiles claimed from a per-group counter by waves 4-7.",
        ";  wave 8 computes a slice of q = LN(x) wq, waves 8-11 gather q, copy the tail weights into LDS, reset the hand-off slots.",
        ";  tail: partial (m, l, o) -> 32 WGs combine + wo slice -> 7 WGs reduce to h -> 56 WGs LN + GEGLU slice -> 7 WGs final sum.",
        ";  hand-offs: write-through stores + sc1 polls; q uses {value, tag} granules, the rest sentinel slots reset in this launch.",
    ]
    out = top + [f"; @launch grid=(256,1,1) block=(768,1,1) lds={LDS_TOTAL}"] + doc + [
                 '.amdgcn_target "amdgcn-amd-amdhsa--gfx950"', ".text", f".globl {KNAME}", ".p2align 8",
                 f".type {KNAME},@function", f"{KNAME}:"]
    out += body
    out += ['.section .rodata,"a"', ".p2align 6", f".amdhsa_kernel {KNAME}",
            "  .amdhsa_next_free_vgpr 168", "  .amdhsa_next_free_sgpr 102", "  .amdhsa_accum_offset 168",
            "  .amdhsa_group_segment_fixed_size 0", "  .amdhsa_kernarg_size 96", "  .amdhsa_user_sgpr_count 2",
            "  .amdhsa_user_sgpr_kernarg_segment_ptr 1", "  .amdhsa_system_sgpr_workgroup_id_x 1",
            "  .amdhsa_float_denorm_mode_32 3", "  .amdhsa_float_denorm_mode_16_64 3",
            ".end_amdhsa_kernel", ""]
    open(path, "w").write("\n".join(out))

if __name__ == "__main__":
    import argparse
    ap = argparse.ArgumentParser()
    ap.add_argument("-o", default="main.s")
    ap.add_argument("--stamps", type=int, default=0)
    ap.add_argument("-S", type=int, default=5)
    ap.add_argument("--exp", default="")
    ap.add_argument("--NS", type=int, default=4)
    ap.add_argument("--TH", type=int, default=4)
    ap.add_argument("--taper", type=int, default=0)
    ap.add_argument("--pipe", type=int, default=1)
    ap.add_argument("--rot", type=int, default=11)
    ap.add_argument("--er", type=int, default=1)
    ap.add_argument("--b0", type=int, default=0)
    ap.add_argument("--ntgu", type=int, default=1)
    ap.add_argument("--stag", type=int, default=0)
    ap.add_argument("--SO", type=int, default=0)
    ap.add_argument("--qd", type=int, default=0)
    ap.add_argument("--tlb", type=int, default=0)
    ap.add_argument("--stf", default="sc1")
    ap.add_argument("--ldf", default="sc1")
    args = ap.parse_args()
    emit(args.o, stf=args.stf, ldf=args.ldf, S=args.S, NS=args.NS, TH=args.TH, taper=args.taper, pipe=args.pipe, rot=args.rot, early_reset=args.er, b0early=args.b0, ntgu=args.ntgu, stag=args.stag, SO=args.SO, qdelay=args.qd, tlbpf=args.tlb, dbg_stamps=args.stamps, exp=args.exp)
    print("LDS", LDS_TOTAL)
```
